```python
import torch

def _softmax(x, axis=-1):
    return torch.softmax(x, dim=axis)

def _gelu(x):
    return torch.nn.functional.gelu(x, approximate='tanh')

def _silu(x):
    return torch.nn.functional.silu(x)

def _sigmoid(x):
    return torch.sigmoid(x)

def _layernorm(x, axis=-1, eps=1e-05):
    m = x.mean(dim=axis, keepdim=True)
    v = x.var(dim=axis, keepdim=True, unbiased=False)
    return (x - m) / torch.sqrt(v + eps)

def _scatter_add(tgt, idx, src, axis=0):
    return tgt.clone().index_add_(axis, idx, src)

def _segment_sum(src, seg, n):
    out = torch.zeros((n,) + src.shape[1:], dtype=src.dtype)
    return out.index_add_(0, seg, src)

def _pad(x, pw):
    flat = tuple((v for pair in reversed(pw) for v in pair))
    return torch.nn.functional.pad(x, flat)
kernel_name = 'adaLN_cond__ssm_conv_s4d__mixer_gmlp__prompt'

def setup_inputs():

    _w = lambda a: (lambda t: t.to(torch.bfloat16) if t.is_floating_point() else t)(torch.as_tensor(a))

    def _A_setup():
        Bsz, L, D, N = (1, 2048, 512, 128)
        return {'u': _w((lambda *s: torch.randn(*s, dtype=torch.bfloat16) * 0.05)(Bsz, L, D)), 'log_A_real': _w((lambda *s: torch.randn(*s, dtype=torch.bfloat16) * 3.2)(D, N) * 0.5), 'A_imag': _w((lambda *s: torch.randn(*s, dtype=torch.bfloat16) * 0.2)(D, N) * 3.14), 'C_real': _w((lambda *s: torch.randn(*s, dtype=torch.bfloat16) * 0.8)(D, N) / N ** 0.5), 'C_imag': _w((lambda *s: torch.randn(*s, dtype=torch.bfloat16) * 0.8)(D, N) / N ** 0.5), 'log_dt': _w((lambda *s: torch.randn(*s, dtype=torch.bfloat16) * 0.2)(D) * 0.5 - 4.0), 'D_skip': _w((lambda *s: torch.randn(*s, dtype=torch.bfloat16) * 0.2)(D))}
    _A_in = _A_setup()

    def _B_setup():
        B, S, D, F = (1, 2048, 512, 1376)
        Fh = F // 2
        return {'x': _w((lambda *s: torch.randn(*s, dtype=torch.bfloat16) * 0.05)(B, S, D)), 'w_in': _w((lambda *s: torch.randn(*s, dtype=torch.bfloat16) * 0.4)(D, 2 * Fh)), 'w_sp': _w(0.01 * (lambda *s: torch.randn(*s, dtype=torch.bfloat16) * 0.4)(S, S)), 'b_sp': _w(1.0 + 0.01 * (lambda *s: torch.randn(*s, dtype=torch.bfloat16) * 0.05)(S)), 'w_out': _w((lambda *s: torch.randn(*s, dtype=torch.bfloat16) * 0.05)(Fh, D))}
    _B_in = _B_setup()
    return {'A_u': _A_in['u'], 'A_log_A_real': _A_in['log_A_real'], 'A_A_imag': _A_in['A_imag'], 'A_C_real': _A_in['C_real'], 'A_C_imag': _A_in['C_imag'], 'A_log_dt': _A_in['log_dt'], 'A_D_skip': _A_in['D_skip'], 'B_x': _B_in['x'], 'B_w_in': _B_in['w_in'], 'B_w_sp': _B_in['w_sp'], 'B_b_sp': _B_in['b_sp'], 'B_w_out': _B_in['w_out'], 'c': _w((lambda *s: torch.randn(*s, dtype=torch.bfloat16) * 0.2)(1, 512) * 8.0), 'w_mod': _w((lambda *s: torch.randn(*s, dtype=torch.bfloat16) * 0.2)(512, 6 * 512) * 512 ** (-0.5) * 8.0)}

def reference(A_u, A_log_A_real, A_A_imag, A_C_real, A_C_imag, A_log_dt, A_D_skip, B_x, B_w_in, B_w_sp, B_b_sp, B_w_out, c, w_mod):

    def _A_ref(u, log_A_real, A_imag, C_real, C_imag, log_dt, D_skip):
        L = u.shape[1]
        dt = torch.exp(log_dt)
        A = -torch.exp(log_A_real) + 1j * A_imag
        C = (C_real + 1j * C_imag) * dt[:, None]
        pos = (lambda x, dt: x.to(dt))(torch.arange(L), log_dt.dtype)
        P = torch.exp((A * dt[:, None])[:, :, None] * pos[None, None, :])
        K = 2.0 * torch.einsum('dn,dnl->dl', C, P).real
        L2 = 2 * L
        u_t = (lambda x, *d: x.permute(*d))(u, 0, 2, 1)
        Kf = (lambda x, *a, **k: torch.fft.rfft(x.float(), *a, **k))(K, L2)
        Uf = (lambda x, *a, **k: torch.fft.rfft(x.float(), *a, **k))(u_t, L2)
        y = (lambda x, *a, **k: torch.fft.irfft(x, *a, **k).to(torch.bfloat16))(Uf * Kf[None, :, :], L2)[:, :, :L]
        y = (lambda x, *d: x.permute(*d))(y, 0, 2, 1)
        return y + u * D_skip[None, None, :]

    def _B_ref(x, w_in, w_sp, b_sp, w_out):
        B, S, D = x.shape
        F = w_in.shape[-1]
        Fh = F // 2
        z = _gelu(torch.einsum('bsd,df->bsf', x, w_in))
        z1 = z[..., :Fh].clone()
        z2 = _layernorm(z[..., Fh:], axis=-1)
        g = torch.einsum('ts,bsf->btf', w_sp, z2) + b_sp[None, :, None]
        return torch.einsum('bsf,fd->bsd', z1 * g, w_out)
    x = A_u
    mod = (_silu(c) @ w_mod).reshape(c.shape[0], 6, 1, -1)
    sa, ca, ga, sb, cb, gb = (mod[:, 0].clone(), mod[:, 1].clone(), mod[:, 2].clone(), mod[:, 3].clone(), mod[:, 4].clone(), mod[:, 5].clone())
    h = _layernorm(x, axis=-1) * (1 + ca) + sa
    x = x + ga * _A_ref(h, A_log_A_real, A_A_imag, A_C_real, A_C_imag, A_log_dt, A_D_skip)
    h = _layernorm(x, axis=-1) * (1 + cb) + sb
    x = x + gb * _B_ref(h, B_w_in, B_w_sp, B_b_sp, B_w_out)
    return x
```

```python
import re

REG_RE = re.compile(r"^(-|abs\()?\s*([vas])(\d+)\)?$")
RNG_RE = re.compile(r"^(-|abs\()?\s*([vas])\[(\d+):(\d+)\]\)?$")

TRANS = ("v_exp_f32", "v_log_f32", "v_rcp_f32", "v_rsq_f32", "v_sqrt_f32", "v_sin_f32", "v_cos_f32",
         "v_rcp_iflag_f32", "v_exp_f16", "v_rcp_f16")


def parse_regs(op):
    op = op.strip()
    if op.startswith("|") and op.endswith("|"):
        op = op[1:-1]
    if op.startswith("-|") and op.endswith("|"):
        op = op[2:-1]
    m = REG_RE.match(op)
    if m:
        return [(m.group(2), int(m.group(3)))]
    m = RNG_RE.match(op)
    if m:
        return [(m.group(2), i) for i in range(int(m.group(3)), int(m.group(4)) + 1)]
    if op == "vcc":
        return [("s", 106), ("s", 107)]
    if op == "vcc_lo":
        return [("s", 106)]
    if op == "vcc_hi":
        return [("s", 107)]
    if op == "exec":
        return [("s", 126), ("s", 127)]
    if op == "m0":
        return [("s", 124)]
    return []


def split_ops(s):
    out, depth, cur = [], 0, ""
    for ch in s:
        if ch in "[(":
            depth += 1
        if ch in "])":
            depth -= 1
        if ch == "," and depth == 0:
            out.append(cur.strip())
            cur = ""
        else:
            cur += ch
    if cur.strip():
        out.append(cur.strip())
    return out


class Ins:
    __slots__ = ("text", "mn", "ops", "mods", "rd", "wr", "kind", "label", "target", "srcc", "srcab", "passes",
                 "dpp", "states", "store_data", "sdwa_dst")

    def __init__(self, text):
        self.text = text
        self.label = None
        self.target = None
        self.rd, self.wr = [], []
        self.srcc, self.srcab = [], []
        self.passes = 0
        self.dpp = False
        self.states = 1
        self.store_data = []
        self.sdwa_dst = False
        t = text.split(";")[0].strip()
        if t.endswith(":"):
            self.label = t[:-1]
            self.kind = "label"
            self.mn = ""
            self.states = 0
            return
        if t.startswith(".") or not t:
            self.kind = "dir"
            self.mn = ""
            self.states = 0
            return
        parts = t.split(None, 1)
        mn = parts[0]
        self.mn = mn
        rest = parts[1] if len(parts) > 1 else ""
        ops = split_ops(rest)
        mods = ""
        if ops:
            last = ops[-1]
            sp = last.split(None, 1)
            if len(sp) > 1 and not last.startswith("hwreg") and not mn.startswith("s_waitcnt"):
                ops[-1] = sp[0]
                mods = sp[1]
        self.ops, self.mods = ops, mods
        R = lambda i: parse_regs(ops[i]) if i < len(ops) else []
        allr = lambda a: [r for i in range(a, len(ops)) for r in R(i)]
        if mn.startswith("v_mfma") or mn.startswith("v_smfmac"):
            self.kind = "mfma"
            self.wr = R(0)
            self.srcab = R(1) + R(2)
            self.srcc = R(3)
            self.rd = self.srcab + self.srcc
            if "32x32x16" in mn or "32x32x8" in mn:
                self.passes = 8
            elif "16x16x32" in mn or "16x16x16" in mn:
                self.passes = 4
            elif "16x16x4_f32" in mn:
                self.passes = 8
            elif "32x32x2_f32" in mn:
                self.passes = 16
            else:
                raise ValueError("unknown mfma " + mn)
        elif mn.startswith("v_"):
            self.kind = "valu"
            base = mn
            for suf in ("_e32", "_e64", "_dpp", "_sdwa"):
                if base.endswith(suf):
                    base = base[: -len(suf)]
            if "_dpp" in mn or "row_" in mods or "quad_perm" in mods or "wave_" in mods:
                self.dpp = True
            if "dst_sel:WORD" in mods or "dst_sel:BYTE" in mods:
                self.sdwa_dst = True
            if base.startswith("v_cmpx"):
                self.wr = R(0) + parse_regs("exec")
                self.rd = allr(1)
            elif base.startswith("v_cmp"):
                self.wr = R(0)
                self.rd = allr(1)
            elif base in ("v_add_co_u32", "v_sub_co_u32", "v_subrev_co_u32", "v_addc_co_u32", "v_subb_co_u32",
                          "v_mad_u64_u32", "v_div_scale_f32"):
                self.wr = R(0) + R(1)
                self.rd = allr(2)
            elif base.startswith("v_permlane"):
                self.wr = R(0) + R(1)
                self.rd = R(0) + R(1)
            elif base in ("v_fmac_f32", "v_dot2c_f32_bf16", "v_dot2c_f32_f16", "v_pk_fmac_f16", "v_writelane_b32"):
                self.wr = R(0)
                self.rd = allr(0)
            elif base == "v_nop":
                pass
            else:
                self.wr = R(0)
                self.rd = allr(1)
                if self.dpp or self.sdwa_dst:
                    self.rd = self.rd + R(0)
                if base == "v_cndmask_b32" and len(ops) == 3:
                    self.rd += parse_regs("vcc")
            self.mn = base
        elif mn.startswith("buffer_") or mn.startswith("global_") or mn.startswith("flat_"):
            self.kind = "vmem"
            islds = " lds" in (" " + mods) or "_lds_" in mn
            if mn in ("buffer_wbl2", "buffer_inv"):
                pass
            elif islds:
                self.rd = allr(0) + parse_regs("m0")
            elif "store" in mn:
                self.rd = allr(0)
                data = R(0) if mn.startswith("buffer_") else R(1)
                if len(data) >= 3:
                    self.store_data = data
            elif "atomic" in mn:
                self.rd = allr(0)
                if "sc0" in mods:
                    self.wr = R(0)
            else:
                self.wr = R(0)
                self.rd = allr(1)
                if "d16" in mn:
                    self.rd += R(0)
        elif mn.startswith("ds_"):
            self.kind = "ds"
            if mn.startswith("ds_write") or mn.startswith("ds_add") or mn.startswith("ds_max") or mn.startswith("ds_min"):
                if "_rtn" in mn:
                    self.wr = R(0)
                    self.rd = allr(1)
                else:
                    self.rd = allr(0)
            else:
                self.wr = R(0)
                self.rd = allr(1)
                if "d16" in mn:
                    self.rd += R(0)
        elif mn.startswith("s_"):
            self.kind = "salu"
            if mn == "s_nop":
                self.states = int(ops[0], 0) + 1
            elif mn.startswith("s_cbranch") or mn == "s_branch":
                self.kind = "branch"
                self.target = ops[0]
                if "vcc" in mn:
                    self.rd = parse_regs("vcc")
                if "exec" in mn:
                    self.rd = parse_regs("exec")
            elif mn == "s_endpgm":
                self.kind = "end"
            elif mn.startswith("s_cmp") or mn.startswith("s_bitcmp") or mn in ("s_waitcnt", "s_barrier", "s_setprio", "s_sleep"):
                self.rd = allr(0)
            elif mn.startswith("s_load") or mn.startswith("s_buffer_load") or mn in ("s_memtime", "s_memrealtime"):
                self.kind = "smem"
                self.wr = R(0)
                self.rd = allr(1)
            elif "saveexec" in mn:
                self.wr = R(0) + parse_regs("exec")
                self.rd = allr(1) + parse_regs("exec")
            else:
                self.wr = R(0)
                self.rd = allr(1)
                if mn in ("s_addk_i32", "s_mulk_i32"):
                    self.rd += R(0)
        else:
            raise ValueError("cannot parse: " + text)


XDL_RAW = {2: 5, 4: 8, 8: 12, 16: 20}
XDL_OVL = {2: 4, 4: 6, 8: 10, 16: 18}
XDL_WAR = {2: 1, 4: 3, 8: 7, 16: 15}


def va(regs):
    return set(r for r in regs if r[0] in "va")


def sg(regs):
    return set(r for r in regs if r[0] == "s")


def required(p, c):
    need = 0
    pw_v, pw_s = va(p.wr), sg(p.wr)
    if p.kind == "valu":
        if c.kind == "mfma" and pw_v & va(c.rd):
            need = max(need, 2)
        if c.kind == "valu":
            if c.dpp and pw_v & va(c.rd):
                need = max(need, 2)
            if c.mn.startswith("v_permlane") and pw_v & va(c.rd):
                need = max(need, 2)
            if c.mn in ("v_readlane_b32", "v_readfirstlane_b32") and pw_v & va(c.rd):
                need = max(need, 1)
            if p.mn in TRANS and c.mn not in TRANS and pw_v & va(c.rd):
                need = max(need, 1)
            if p.mn in TRANS and pw_v & va(c.rd):
                need = max(need, 1)
            if p.sdwa_dst and pw_v & (va(c.rd) | va(c.wr)):
                need = max(need, 1)
            if pw_s & sg(c.rd):
                need = max(need, 4 if c.mn in ("v_readlane_b32", "v_writelane_b32", "v_div_fmas_f32") else 2)
            if (("s", 126) in pw_s):
                if c.dpp:
                    need = max(need, 5)
                if c.mn.startswith("v_permlane") or c.mn in ("v_readlane_b32", "v_readfirstlane_b32", "v_writelane_b32"):
                    need = max(need, 4)
            if p.mn.startswith("v_dot") and pw_v & (va(c.rd) | va(c.wr)):
                same = (c.mn == p.mn)
                if same and not (pw_v & va(parse_regs(c.ops[1]) + parse_regs(c.ops[2]))):
                    pass
                else:
                    need = max(need, 3)
        if p.mn.startswith("v_dot") and c.kind in ("mfma", "vmem", "ds") and pw_v & (va(c.rd) | va(c.wr)):
            need = max(need, 3)
        if p.mn in TRANS and c.kind in ("vmem", "ds", "mfma") and pw_v & va(c.rd):
            need = max(need, 2 if c.kind == "mfma" else 1)
        if c.kind == "vmem" and pw_s & sg(c.rd):
            need = max(need, 5)
        if c.kind in ("salu", "smem", "branch") and pw_s & sg(c.rd):
            need = max(need, 5 if c.kind == "branch" else 2)
        if c.kind == "mfma" and (("s", 126) in pw_s):
            need = max(need, 4)
    if p.kind == "salu":
        if ("s", 124) in pw_s and c.kind in ("vmem", "ds") and ("s", 124) in sg(c.rd):
            need = max(need, 1)
    if p.kind == "mfma":
        d = va(p.wr)
        if c.kind == "mfma":
            if d & va(c.srcab):
                need = max(need, XDL_RAW[p.passes])
            cc = va(c.srcc)
            if d & cc:
                if c.srcc == p.wr and c.passes == p.passes:
                    need = max(need, 2 if p.passes == 2 else 0)
                else:
                    need = max(need, XDL_OVL[p.passes])
            elif d & va(c.wr):
                need = max(need, XDL_OVL[p.passes])
        elif c.kind in ("valu", "vmem", "ds"):
            if d & (va(c.rd) | va(c.wr)):
                need = max(need, XDL_RAW[p.passes])
            if c.kind == "valu" and va(p.srcc) & va(c.wr):
                need = max(need, XDL_WAR[p.passes])
    if p.kind == "vmem" and p.store_data:
        if set(p.store_data) & va(c.wr):
            need = max(need, 2 if c.kind == "valu" else 1)
    if p.kind == "ds" and p.mn in ("ds_write_b128", "ds_write_b96", "ds_write2_b64"):
        if c.kind == "valu" and va(p.rd) & va(c.wr):
            need = max(need, 1)
    return need


MAXD = 20


class Kernel:
    def __init__(self, name):
        self.name = name
        self.ins = []
        self.nlab = 0

    def __call__(self, s):
        for l in s.strip("\n").split("\n"):
            l = l.strip()
            if l and not l.startswith(";"):
                self.ins.append(Ins(l))

    def label(self, name):
        self.ins.append(Ins(name + ":"))

    def newlabel(self, base="L"):
        self.nlab += 1
        return f"{self.name}_{base}{self.nlab}"

    def srd(self, d, base, nbytes, off=0):
        if off:
            self(f"s_add_u32 s{d}, s{base}, {off}")
            self(f"s_addc_u32 s{d+1}, s{base+1}, 0")
            self(f"s_and_b32 s{d+1}, s{d+1}, 0xffff")
        else:
            self(f"s_mov_b32 s{d}, s{base}")
            self(f"s_and_b32 s{d+1}, s{base+1}, 0xffff")
        self(f"s_mov_b32 s{d+2}, {nbytes}")
        self(f"s_mov_b32 s{d+3}, 0x00020000")

    def fix_hazards(self):
        total = 0
        while True:
            ins = self.ins
            labpos = {x.label: i for i, x in enumerate(ins) if x.label}
            srcs = {}
            for i, x in enumerate(ins):
                if x.kind == "branch":
                    srcs.setdefault(labpos[x.target], []).append(i)
            inserted = False
            for i, c in enumerate(ins):
                if c.kind in ("label", "dir"):
                    continue
                worst = 0
                stack = [(i - 1, 0)]
                seen = set()
                while stack:
                    j, dist = stack.pop()
                    while j >= 0 and dist < MAXD:
                        if (j, dist) in seen:
                            break
                        seen.add((j, dist))
                        p = ins[j]
                        if p.kind == "label":
                            for sidx in srcs.get(j, []):
                                stack.append((sidx, dist))
                            j -= 1
                            continue
                        if p.kind == "dir":
                            j -= 1
                            continue
                        if p.kind == "end" or (p.kind == "branch" and p.mn == "s_branch" and False):
                            break
                        need = required(p, c)
                        if need > dist:
                            worst = max(worst, need - dist)
                        dist += p.states
                        if j - 1 >= 0 and ins[j].kind == "label":
                            pass
                        j -= 1
                if worst:
                    n = worst
                    pads = []
                    while n > 0:
                        k = min(n, 16)
                        pads.append(Ins(f"s_nop {k-1}"))
                        n -= k
                    self.ins[i:i] = pads
                    total += worst
                    inserted = True
                    break
            if not inserted:
                break
        return total

    def fix_hazards_fast(self):
        total = 0
        i = 0
        while i < len(self.ins):
            ins = self.ins
            c = ins[i]
            if c.kind in ("label", "dir"):
                i += 1
                continue
            worst = self._worst(i)
            if worst:
                n = worst
                pads = []
                while n > 0:
                    k = min(n, 16)
                    pads.append(Ins(f"s_nop {k-1}"))
                    n -= k
                self.ins[i:i] = pads
                self._lab = None
                total += worst
                i += len(pads)
            i += 1
        return total

    _lab = None

    def _worst(self, i):
        ins = self.ins
        if self._lab is None:
            labpos = {x.label: k for k, x in enumerate(ins) if x.label}
            srcs = {}
            for k, x in enumerate(ins):
                if x.kind == "branch":
                    srcs.setdefault(labpos[x.target], []).append(k)
            self._lab = srcs
        srcs = self._lab
        c = ins[i]
        worst = 0
        stack = [(i - 1, 0, True)]
        seen = set()
        while stack:
            j, dist, fall = stack.pop()
            while j >= 0 and dist < MAXD:
                if (j, dist) in seen:
                    break
                seen.add((j, dist))
                p = ins[j]
                if p.kind == "label":
                    for sidx in srcs.get(j, []):
                        stack.append((sidx, dist, False))
                    j -= 1
                    fall = True
                    continue
                if p.kind == "dir":
                    j -= 1
                    continue
                if p.kind == "end":
                    break
                if p.kind == "branch" and p.mn == "s_branch" and fall:
                    break
                need = required(p, c)
                if need > dist:
                    worst = max(worst, need - dist)
                dist += p.states
                j -= 1
                fall = True
        return worst

    def maxregs(self):
        mv = ma = ms = -1
        for x in self.ins:
            for (k, i) in x.rd + x.wr:
                if k == "v":
                    mv = max(mv, i)
                elif k == "a":
                    ma = max(ma, i)
                elif k == "s" and i < 102:
                    ms = max(ms, i)
        return mv + 1, ma + 1, ms + 1


class Module:
    def __init__(self):
        self.kernels = []
        self.launches = []

    def add(self, k, grid, block, lds, min_vgpr=0):
        self.kernels.append((k, min_vgpr))
        self.launches.append(
            f"; @launch kernel={k.name} grid=({grid},1,1) block=({block},1,1) lds={lds}")

    def relaunch(self, k, grid, block, lds):
        self.launches.append(
            f"; @launch kernel={k.name} grid=({grid},1,1) block=({block},1,1) lds={lds}")

    def text(self, header=""):
        out = []
        if header:
            out.append(header.rstrip("\n"))
        out += self.launches
        out.append('.amdgcn_target "amdgcn-amd-amdhsa--gfx950"')
        out.append(".text")
        info = []
        for (k, minv) in self.kernels:
            n = k.fix_hazards_fast()
            n += k.fix_hazards_fast()
            out += [f".globl {k.name}", ".p2align 8", f".type {k.name},@function", f"{k.name}:"]
            for x in k.ins:
                out.append(x.text if x.kind == "label" else "    " + x.text)
            nv, na, ns = k.maxregs()
            nv = max(nv, minv, 4)
            acc = (nv + 3) // 4 * 4
            tot = acc + na if na > 0 else nv
            info.append((k.name, tot, max(ns, 8), min(acc, 256)))
            print(f"{k.name}: {len(k.ins)} instrs, vgpr {nv} agpr {na} sgpr {ns}, nop states inserted {n}")
        out.append('.section .rodata,"a"')
        for (name, tot, ns, acc) in info:
            out += [".p2align 6", f".amdhsa_kernel {name}",
                    f"  .amdhsa_next_free_vgpr {tot}",
                    f"  .amdhsa_next_free_sgpr {ns}",
                    f"  .amdhsa_accum_offset {acc}",
                    "  .amdhsa_group_segment_fixed_size 0",
                    "  .amdhsa_kernarg_size 136",
                    "  .amdhsa_user_sgpr_count 2",
                    "  .amdhsa_user_sgpr_kernarg_segment_ptr 1",
                    "  .amdhsa_system_sgpr_workgroup_id_x 1",
                    "  .amdhsa_float_denorm_mode_32 3",
                    ".end_amdhsa_kernel"]
        return "\n".join(out) + "\n"
```

```python
from gfx import Kernel
from layout import *
import struct, math


def f32(x):
    return "0x%08x" % struct.unpack("<I", struct.pack("<f", x))[0]


LOG2E = math.log2(math.e)
_l = struct.unpack("<I", struct.pack("<f", LOG2E))[0] & 0xFFFFFF00
LOG2E_HI = struct.unpack("<f", struct.pack("<I", _l))[0]
LOG2E_LO = LOG2E - LOG2E_HI

N_MOD, N_KG, N_LN = 48, 512, 256
A_GRID = N_MOD + N_KG + N_LN
A_LDS = 16384


def exp_precise(k, dst, x, t0, t1, sHi, sLo):
    k(f"v_mul_f32 {t0}, {sHi}, {x}")
    k(f"v_mul_f32 {t1}, {sLo}, {x}")
    k(f"v_exp_f32 {t0}, {t0}")
    k(f"v_exp_f32 {t1}, {t1}")
    k(f"v_mul_f32 {dst}, {t0}, {t1}")


def round_bf16(k, dst, x):
    k(f"v_cvt_pk_bf16_f32 {dst}, {x}, {x}")
    k(f"v_and_b32 {dst}, 0xffff0000, {dst}")


def kernel_A():
    k = Kernel("ka_kernel")
    L_kg, L_ln, L_end = "ka_kg", "ka_ln", "ka_end"
    k(f"s_cmp_ge_u32 s2, {A_GRID}")
    k(f"s_cbranch_scc1 {L_end}")
    k("s_load_dwordx2 s[36:37], s[0:1], 128")
    k(f"s_cmp_ge_u32 s2, {N_MOD + N_KG}")
    k(f"s_cbranch_scc1 {L_ln}")
    k(f"s_cmp_ge_u32 s2, {N_MOD}")
    k(f"s_cbranch_scc1 {L_kg}")

    k("s_load_dwordx4 s[4:7], s[0:1], 96")
    k("v_lshrrev_b32 v1, 3, v0")
    k("v_and_b32 v2, 7, v0")
    k("s_mov_b32 s20, 98304")
    k("v_mul_lo_u32 v3, v1, s20")
    k("v_lshl_add_u32 v3, v2, 4, v3")
    k("v_lshlrev_b32 v4, 2, v0")
    k("s_lshl_b32 s21, s2, 7")
    k("s_waitcnt lgkmcnt(0)")
    k.srd(8, 4, 1024)
    k.srd(12, 6, 512 * 6144)
    k("buffer_load_dword v5, v4, s[8:11], 0 offen")
    for it in range(16):
        k(f"buffer_load_dwordx4 v[{32+it*4}:{35+it*4}], v3, s[12:15], s21 offen")
        if it < 15:
            k("s_add_u32 s21, s21, 6144")
    k.srd(16, 36, 12288, WS_MOD)
    k(f"s_mov_b32 s22, {f32(-LOG2E)}")
    k("s_waitcnt vmcnt(16)")
    k("v_lshlrev_b32 v6, 16, v5")
    k("v_and_b32 v7, 0xffff0000, v5")
    for r in (6, 7):
        k(f"v_mul_f32 v{r+2}, s22, v{r}")
        k(f"v_exp_f32 v{r+2}, v{r+2}")
        k(f"v_add_f32 v{r+2}, 1.0, v{r+2}")
        k(f"v_rcp_f32 v{r+2}, v{r+2}")
        k(f"v_mul_f32 v{r+2}, v{r}, v{r+2}")
    k("v_cvt_pk_bf16_f32 v5, v8, v9")
    k("v_lshlrev_b32 v6, 16, v5")
    k("v_and_b32 v7, 0xffff0000, v5")
    k("v_lshlrev_b32 v4, 3, v0")
    k("ds_write_b64 v4, v[6:7]")
    k("v_lshlrev_b32 v4, 6, v1")
    k("s_waitcnt lgkmcnt(0)")
    k("s_barrier")
    for q in range(4):
        k(f"ds_read_b128 v[{16+q*4}:{19+q*4}], v4 offset:{q*16}")
    for r in range(8, 16):
        k(f"v_mov_b32 v{r}, 0")
    k("s_waitcnt lgkmcnt(0)")
    for it in range(16):
        k(f"s_waitcnt vmcnt({15-it})")
        sp = 16 + (it & ~1)
        sel = "op_sel:[0,0,0] op_sel_hi:[1,0,1]" if it % 2 == 0 else "op_sel:[0,1,0] op_sel_hi:[1,1,1]"
        for j in range(4):
            w = 32 + it * 4 + j
            t = 96 + (j % 2) * 2
            k(f"v_lshlrev_b32 v{t}, 16, v{w}")
            k(f"v_and_b32 v{t+1}, 0xffff0000, v{w}")
            k(f"v_pk_fma_f32 v[{8+2*j}:{9+2*j}], v[{t}:{t+1}], v[{sp}:{sp+1}], v[{8+2*j}:{9+2*j}] {sel}")
    for r in range(4):
        k(f"v_add_f32_dpp v{16+r}, v{8+r}, v{8+r} row_ror:8 row_mask:0xf bank_mask:0x3")
        k(f"v_add_f32_dpp v{16+r}, v{12+r}, v{12+r} row_ror:8 row_mask:0xf bank_mask:0xc")
    k("v_lshlrev_b32 v4, 4, v0")
    k("ds_write_b128 v4, v[16:19] offset:4096")
    k("v_lshrrev_b32 v5, 3, v0")
    k("v_bfe_u32 v6, v0, 2, 1")
    k("v_and_b32 v7, 3, v0")
    k("v_lshl_add_u32 v5, v6, 3, v5")
    k("v_lshl_add_u32 v5, v5, 2, v7")
    k("v_lshlrev_b32 v5, 2, v5")
    k("s_waitcnt lgkmcnt(0)")
    k("s_barrier")
    k("v_cmp_gt_u32 vcc, 64, v0")
    k("s_and_saveexec_b64 s[24:25], vcc")
    k(f"s_cbranch_execz {L_end}")
    for p in range(16):
        k(f"ds_read_b32 v{16+p}, v5 offset:{4096+p*256}")
    k("s_waitcnt lgkmcnt(0)")
    for s in (8, 4, 2, 1):
        for p in range(s):
            k(f"v_add_f32 v{16+p}, v{16+p}, v{16+p+s}")
    round_bf16(k, "v16", "v16")
    k("s_lshl_b32 s21, s2, 8")
    k("v_lshlrev_b32 v4, 2, v0")
    k("buffer_store_dword v16, v4, s[16:19], s21 offen")
    k("s_endpgm")

    k.label(L_kg)
    k("s_load_dwordx8 s[4:11], s[0:1], 8")
    k("s_load_dwordx2 s[12:13], s[0:1], 40")
    k(f"s_sub_u32 s3, s2, {N_MOD}")
    k("v_and_b32 v1, 63, v0")
    k("v_lshrrev_b32 v2, 6, v0")
    k("v_and_b32 v3, 31, v0")
    k("v_lshl_add_u32 v4, v2, 5, v3")
    k("v_lshlrev_b32 v4, 1, v4")
    k("s_lshl_b32 s14, s3, 8")
    k("s_lshl_b32 s15, s3, 1")
    k("v_mov_b32 v5, s15")
    k("s_waitcnt lgkmcnt(0)")
    k.srd(16, 4, 131072)
    k.srd(20, 6, 131072)
    k.srd(24, 8, 131072)
    k.srd(28, 10, 131072)
    k.srd(32, 12, 1024)
    k("buffer_load_ushort v10, v5, s[32:35], 0 offen")
    k("buffer_load_ushort v11, v4, s[16:19], s14 offen")
    k("buffer_load_ushort v12, v4, s[20:23], s14 offen")
    k("buffer_load_ushort v13, v4, s[24:27], s14 offen")
    k("buffer_load_ushort v14, v4, s[28:31], s14 offen")
    k.srd(40, 36, 512 * KR_CH, WS_KR)
    k("v_and_b32 v6, 15, v1")
    k("v_lshrrev_b32 v7, 4, v1")
    k("v_lshrrev_b32 v8, 3, v6")
    k("v_and_b32 v9, 7, v6")
    k("v_lshl_add_u32 v8, v8, 7, v9")
    k("v_cvt_f32_u32 v20, v8")
    k("v_lshrrev_b32 v8, 2, v6")
    k("v_and_b32 v15, 3, v6")
    k("v_lshlrev_b32 v15, 1, v15")
    k("v_lshl_add_u32 v8, v8, 7, v15")
    k("v_add_u32 v8, 256, v8")
    k("v_lshrrev_b32 v15, 1, v9")
    k("v_and_b32 v16, 1, v6")
    k("v_lshlrev_b32 v16, 2, v16")
    k("v_lshl_add_u32 v15, v15, 7, v16")
    k("v_add_u32 v15, 512, v15")
    k("v_cmp_gt_u32 vcc, 8, v6")
    k("v_cndmask_b32 v8, v15, v8, vcc")
    k("v_cvt_f32_u32 v21, v8")
    k("v_min_u32 v8, 8, v6")
    k("v_lshlrev_b32 v8, 7, v8")
    k("v_add_u32 v8, 1024, v8")
    k("v_cvt_f32_u32 v22, v8")
    k("v_lshlrev_b32 v8, 3, v6")
    k("v_cvt_f32_u32 v23, v8")
    k("v_mul_u32_u24 v24, 3072, v2")
    k("v_add_u32 v24, 2048, v24")
    k("v_lshrrev_b32 v8, 1, v7")
    k("v_and_b32 v9, 1, v7")
    k("v_lshlrev_b32 v8, 7, v8")
    k("v_lshl_add_u32 v8, v9, 2, v8")
    k("v_lshl_add_u32 v8, v6, 3, v8")
    k("v_lshl_add_u32 v25, v8, 2, v24")
    k("v_lshlrev_b32 v8, 6, v7")
    k("v_add_u32 v8, 256, v8")
    k("v_lshl_add_u32 v9, v6, 2, v8")
    k("v_lshl_add_u32 v15, v6, 1, v8")
    k("v_cmp_gt_u32 vcc, 2, v7")
    k("v_cndmask_b32 v8, v15, v9, vcc")
    k("v_lshl_add_u32 v26, v8, 2, v24")
    k("v_mov_b32 v9, 128")
    k("v_cndmask_b32 v9, v9, 8, vcc")
    k("v_add_u32 v27, v26, v9")
    k("v_lshl_add_u32 v8, v7, 6, v6")
    k("v_add_u32 v8, 512, v8")
    k("v_lshl_add_u32 v28, v8, 2, v24")
    k("v_lshlrev_b32 v8, 3, v0")
    k("v_sub_u32 v8, 2047, v8")
    k("s_movk_i32 s44, 0x80")
    k(f"s_mov_b32 s45, {17024}")
    for e in range(9):
        g = 30 + e
        if e:
            k("v_subrev_u32 v8, 1, v8")
        if e == 8:
            k("v_max_i32 v8, 0, v8")
        k("v_cvt_f32_u32 v9, v8")
        k("v_cvt_pk_bf16_f32 v9, v9, v9")
        k("v_lshrrev_b32 v9, 16, v9")
        k("v_subrev_u32 v9, s45, v9")
        k("v_med3_i32 v9, v9, v8, s44")
        k(f"v_lshlrev_b32 v{g}, 1, v9")
    k(f"s_mov_b32 s46, {f32(LOG2E_HI)}")
    k(f"s_mov_b32 s47, {f32(LOG2E_LO)}")
    k(f"s_mov_b32 s48, {f32(-LOG2E)}")
    k(f"s_mov_b32 s49, {f32(1.0/(2*math.pi))}")
    k("v_lshlrev_b32 v8, 9, v2")
    k("v_lshl_add_u32 v40, v3, 4, v8")
    k("v_lshl_add_u32 v41, v7, 7, v8")
    k("s_waitcnt vmcnt(4)")
    k("v_lshlrev_b32 v10, 16, v10")
    exp_precise(k, "v10", "v10", "v15", "v16", "s46", "s47")
    round_bf16(k, "v10", "v10")
    k("s_waitcnt vmcnt(3)")
    k("v_lshlrev_b32 v11, 16, v11")
    exp_precise(k, "v11", "v11", "v15", "v16", "s46", "s47")
    round_bf16(k, "v11", "v11")
    k("v_mul_f32 v11, v11, v10")
    k("v_mul_f32 v44, s48, v11")
    k("s_waitcnt vmcnt(2)")
    k("v_lshlrev_b32 v12, 16, v12")
    k("v_mul_f32 v12, v12, v10")
    k("v_mul_f32 v45, s49, v12")
    k("s_waitcnt vmcnt(0)")
    k("v_lshlrev_b32 v13, 16, v13")
    k("v_lshlrev_b32 v14, 16, v14")
    k("v_max_f32 v15, abs(v13), abs(v14)")
    for rot in (8, 4, 2, 1):
        k(f"v_max_f32_dpp v15, v15, v15 row_ror:{rot} row_mask:0xf bank_mask:0xf")
    k("v_readlane_b32 s50, v15, 0")
    k("v_readlane_b32 s51, v15, 16")
    k("s_max_u32 s50, s50, s51")
    k("s_and_b32 s50, s50, 0x7f800000")
    k("s_max_u32 s50, s50, 0x00800000")
    k("s_min_u32 s50, s50, 0x7e800000")
    k("s_sub_u32 s51, 0x7f000000, s50")
    k("v_mul_f32 v46, s51, v13")
    k("v_mul_f32 v47, s51, v14")
    k("ds_write_b128 v40, v[44:47]")
    k("v_mul_f32 v42, s50, v10")
    k("v_add_f32 v42, v42, v42")
    for r in range(48, 60):
        k(f"v_mov_b32 v{r}, 0")
    k("s_mov_b32 s52, 0")
    k("s_waitcnt lgkmcnt(0)")
    Lp = "ka_kg_loop"
    k.label(Lp)
    for c in range(4):
        k(f"ds_read_b128 v[{60+c*4}:{63+c*4}], v41 offset:{c*16}")
    k("v_add_u32 v41, 64, v41")
    for c in range(4):
        k(f"s_waitcnt lgkmcnt({3-c})")
        p = 60 + c * 4
        for T in range(4):
            t = 92 + T * 4
            up = 20 + (T & ~1)
            sel = "op_sel:[0,0] op_sel_hi:[1,0]" if T % 2 == 0 else "op_sel:[0,1] op_sel_hi:[1,1]"
            k(f"v_pk_mul_f32 v[{t}:{t+1}], v[{p}:{p+1}], v[{up}:{up+1}] {sel}")
        for T in range(4):
            t = 92 + T * 4
            k(f"v_fract_f32 v{t+1}, v{t+1}")
            k(f"v_exp_f32 v{t}, v{t}")
        for T in range(4):
            t = 92 + T * 4
            k(f"v_cos_f32 v{t+2}, v{t+1}")
            k(f"v_sin_f32 v{t+3}, v{t+1}")
        for T in range(4):
            t = 92 + T * 4
            k(f"v_pk_mul_f32 v[{t+2}:{t+3}], v[{t+2}:{t+3}], v[{t}:{t+1}] op_sel:[0,0] op_sel_hi:[1,0]")
        for T in range(3):
            t = 92 + T * 4
            k(f"v_cvt_pk_f16_f32 v{76+T*4+c}, v{t+2}, v{t+3}")
        t = 92 + 12
        k(f"v_pk_mul_f32 v[{t}:{t+1}], v[{t+2}:{t+3}], v[{p+2}:{p+3}] op_sel:[0,0] op_sel_hi:[1,0] neg_hi:[1,0]")
        k(f"v_pk_fma_f32 v[{t}:{t+1}], v[{t+2}:{t+3}], v[{p+2}:{p+3}], v[{t}:{t+1}] op_sel:[1,1,0] op_sel_hi:[0,1,1] neg_lo:[1,0,0] neg_hi:[1,0,0]")
        k(f"v_cvt_pk_f16_f32 v{88+c}, v{t}, v{t+1}")
    for T in range(3):
        k(f"v_mfma_f32_16x16x32_f16 v[{48+T*4}:{51+T*4}], v[{76+T*4}:{79+T*4}], v[88:91], v[{48+T*4}:{51+T*4}]")
    k("s_add_u32 s52, s52, 1")
    k("s_cmp_lt_u32 s52, 2")
    k(f"s_cbranch_scc1 {Lp}")
    for r in range(48, 60, 2):
        k(f"v_pk_mul_f32 v[{r}:{r+1}], v[{r}:{r+1}], v[42:43] op_sel:[0,0] op_sel_hi:[1,0]")
    k("ds_write_b128 v25, v[48:51]")
    k("ds_write_b64 v26, v[52:53]")
    k("ds_write_b64 v27, v[54:55]")
    for r in range(4):
        k(f"ds_write_b32 v28, v{56+r} offset:{r*64}")
    k("v_lshlrev_b32 v8, 2, v0")
    k("v_lshlrev_b32 v9, 1, v0")
    k("s_waitcnt lgkmcnt(0)")
    k("s_barrier")
    for e in range(3):
        for w in range(4):
            k(f"ds_read_b32 v{48+e*4+w}, v8 offset:{2048+w*3072+e*1024}")
    for e in range(3):
        k(f"s_waitcnt lgkmcnt({8-4*e})")
        b = 48 + e * 4
        k(f"v_add_f32 v{b}, v{b}, v{b+1}")
        k(f"v_add_f32 v{b+2}, v{b+2}, v{b+3}")
        k(f"v_add_f32 v{b}, v{b}, v{b+2}")
        k(f"v_cvt_pk_bf16_f32 v{b}, v{b}, v{b}")
    for e in range(3):
        k(f"ds_write_b16 v9, v{48+e*4} offset:{14336+e*512}")
    k("s_waitcnt lgkmcnt(0)")
    k("s_barrier")
    for e in range(9):
        k(f"ds_read_u16 v{48+e}, v{30+e} offset:14336")
    k(f"s_mul_i32 s14, s3, {KR_CH}")
    k("v_lshlrev_b32 v8, 4, v0")
    k("v_mov_b32 v72, 0")
    k("v_mov_b32 v73, 0")
    k("v_mov_b32 v74, 0")
    k("v_mov_b32 v75, 0")
    k("v_cmp_eq_u32 vcc, 255, v0")
    k("s_waitcnt lgkmcnt(0)")
    k("v_cndmask_b32 v56, v56, v72, vcc")
    for j in range(4):
        k(f"v_lshl_or_b32 v{60+j}, v{49+2*j}, 16, v{48+2*j}")
    k("buffer_store_dwordx4 v[60:63], v8, s[40:43], s14 offen")
    for j in range(4):
        k(f"v_lshl_or_b32 v{68+j}, v{50+2*j}, 16, v{49+2*j}")
    k(f"s_add_u32 s15, s14, {KR_CP}")
    k("buffer_store_dwordx4 v[68:71], v8, s[40:43], s15 offen")
    k("v_cmp_gt_u32 vcc, 4, v0")
    k("s_and_saveexec_b64 s[24:25], vcc")
    k(f"s_cbranch_execz {L_end}")
    k("s_add_u32 s14, s14, 4096")
    k("s_add_u32 s15, s15, 4096")
    k("buffer_store_dwordx4 v[72:75], v8, s[40:43], s14 offen")
    k("buffer_store_dwordx4 v[72:75], v8, s[40:43], s15 offen")
    k("s_endpgm")

    k.label(L_ln)
    k("s_load_dwordx2 s[4:5], s[0:1], 0")
    k(f"s_sub_u32 s3, s2, {N_MOD + N_KG}")
    k("s_lshl_b32 s14, s3, 13")
    k("v_lshlrev_b32 v1, 2, v0")
    k("v_and_b32 v2, 3, v0")
    k("v_lshlrev_b32 v3, 11, v2")
    k("s_waitcnt lgkmcnt(0)")
    k.srd(8, 4, 2048 * 1024)
    k("s_add_u32 s6, s4, s14")
    k("s_addc_u32 s7, s5, 0")
    k("s_add_u32 s15, s14, 4096")
    for r in range(8):
        k(f"buffer_load_dword v{8+r}, v1, s[8:11], s{14 + r//4} offen offset:{(r%4)*1024}")
    k("buffer_load_ushort v4, v3, s[8:11], s14 offen")
    k("buffer_load_ushort v5, v3, s[8:11], s14 offen offset:1024")
    for r in range(8):
        k(f"s_load_dword s{16+r}, s[6:7], {r*1024}")
    k.srd(40, 36, 256 * 16384, WS_NX)
    k("s_mov_b32 s44, 0x05040100")
    k("s_mov_b32 s45, 0x07060302")
    k("v_lshrrev_b32 v6, 2, v0")
    k("v_lshlrev_b32 v6, 4, v6")
    k("v_bfe_u32 v7, v0, 2, 2")
    k("v_lshlrev_b32 v7, 8, v7")
    k("v_lshl_add_u32 v7, v2, 4, v7")
    k("s_waitcnt lgkmcnt(0)")
    for r in range(8):
        k(f"s_lshl_b32 s{16+r}, s{16+r}, 16")
    for r in range(8):
        k(f"s_waitcnt vmcnt({9-r})")
        k(f"v_lshlrev_b32 v{16+r}, 16, v{8+r}")
        k(f"v_and_b32 v{24+r}, 0xffff0000, v{8+r}")
    for q in range(4):
        k(f"v_pk_add_f32 v[48:49], v[{16+2*q}:{17+2*q}], s[{16+2*q}:{17+2*q}] neg_lo:[0,1] neg_hi:[0,1]")
        k(f"v_pk_add_f32 v[50:51], v[{24+2*q}:{25+2*q}], s[{16+2*q}:{17+2*q}] neg_lo:[0,1] neg_hi:[0,1]")
        k(f"v_pk_add_f32 v[{32+2*q}:{33+2*q}], v[48:49], v[50:51]")
        k(f"v_pk_mul_f32 v[{40+2*q}:{41+2*q}], v[48:49], v[48:49]")
        k(f"v_pk_fma_f32 v[{40+2*q}:{41+2*q}], v[50:51], v[50:51], v[{40+2*q}:{41+2*q}]")
    def val(q, m):
        return (32 + 2 * q + m) if m < 2 else (40 + 2 * q + m - 2)
    for ql in range(2):
        for m in range(4):
            d = 48 + ql * 4 + m
            k(f"v_add_f32_dpp v{d}, v{val(ql,m)}, v{val(ql,m)} row_ror:8 row_mask:0xf bank_mask:0x3")
            k(f"v_add_f32_dpp v{d}, v{val(ql+2,m)}, v{val(ql+2,m)} row_ror:8 row_mask:0xf bank_mask:0xc")
    for m in range(4):
        k(f"v_add_f32_dpp v{56+m}, v{48+m}, v{48+m} row_half_mirror row_mask:0xf bank_mask:0x5")
        k(f"v_add_f32_dpp v{56+m}, v{52+m}, v{52+m} row_half_mirror row_mask:0xf bank_mask:0xa")
    for m in range(4):
        k(f"v_add_f32_dpp v{56+m}, v{56+m}, v{56+m} quad_perm:[2,3,0,1] row_mask:0xf bank_mask:0xf")
    for m in range(4):
        k(f"v_add_f32_dpp v{56+m}, v{56+m}, v{56+m} quad_perm:[1,0,3,2] row_mask:0xf bank_mask:0xf")
    k("ds_write_b128 v6, v[56:59]")
    for q in range(4):
        k(f"v_perm_b32 v{68+q}, v{9+2*q}, v{8+2*q}, s44")
        k(f"v_perm_b32 v{76+q}, v{9+2*q}, v{8+2*q}, s45")
    k("s_waitcnt lgkmcnt(0)")
    k("s_barrier")
    for p in range(4):
        k(f"ds_read_b128 v[{32+p*4}:{35+p*4}], v7 offset:{p*64}")
    k("s_waitcnt vmcnt(0)")
    k("v_lshlrev_b32 v4, 16, v4")
    k("v_lshlrev_b32 v5, 16, v5")
    k(f"s_mov_b32 s46, {f32(1.0/512)}")
    k(f"s_mov_b32 s47, {f32(1e-5)}")
    k("s_waitcnt lgkmcnt(0)")
    k("v_pk_add_f32 v[32:33], v[32:33], v[36:37]")
    k("v_pk_add_f32 v[34:35], v[34:35], v[38:39]")
    k("v_pk_add_f32 v[40:41], v[40:41], v[44:45]")
    k("v_pk_add_f32 v[42:43], v[42:43], v[46:47]")
    k("v_pk_add_f32 v[32:33], v[32:33], v[40:41]")
    k("v_pk_add_f32 v[34:35], v[34:35], v[42:43]")
    for rot in (4, 8):
        for m in range(4):
            k(f"v_add_f32_dpp v{32+m}, v{32+m}, v{32+m} row_ror:{rot} row_mask:0xf bank_mask:0xf")
    k("v_pk_mul_f32 v[32:33], v[32:33], s[46:47] op_sel_hi:[1,0]")
    k("v_pk_mul_f32 v[34:35], v[34:35], s[46:47] op_sel_hi:[1,0]")
    k("v_pk_fma_f32 v[34:35], v[32:33], v[32:33], v[34:35] neg_lo:[1,0,0] neg_hi:[1,0,0]")
    k("v_pk_add_f32 v[32:33], v[32:33], v[4:5]")
    k("v_max_f32 v34, 0, v34")
    k("v_max_f32 v35, 0, v35")
    k("v_cvt_pk_bf16_f32 v36, v32, v33")
    k("v_cvt_pk_bf16_f32 v37, v34, v35")
    k("v_lshlrev_b32 v32, 16, v36")
    k("v_and_b32 v33, 0xffff0000, v36")
    k("v_lshlrev_b32 v34, 16, v37")
    k("v_and_b32 v35, 0xffff0000, v37")
    k("v_add_f32 v34, s47, v34")
    k("v_add_f32 v35, s47, v35")
    k("v_cvt_pk_bf16_f32 v37, v34, v35")
    k("v_lshlrev_b32 v34, 16, v37")
    k("v_and_b32 v35, 0xffff0000, v37")
    k("v_sqrt_f32 v34, v34")
    k("v_sqrt_f32 v35, v35")
    k("v_cvt_pk_bf16_f32 v37, v34, v35")
    k("v_lshlrev_b32 v34, 16, v37")
    k("v_and_b32 v35, 0xffff0000, v37")
    k("v_rcp_f32 v34, v34")
    k("v_rcp_f32 v35, v35")
    for q in range(4):
        k(f"v_readlane_b32 s{16+2*q}, v32, {q}")
        k(f"v_readlane_b32 s{17+2*q}, v33, {q}")
    for q in range(4):
        k(f"v_readlane_b32 s{24+2*q}, v34, {q}")
        k(f"v_readlane_b32 s{25+2*q}, v35, {q}")
    k("v_lshlrev_b32 v1, 6, v0")
    k("s_lshl_b32 s14, s3, 14")
    for c in range(2):
        for q in range(4):
            x = 16 + c * 8 + 2 * q
            t = 48 + q * 2
            k(f"v_pk_add_f32 v[{t}:{t+1}], v[{x}:{x+1}], s[{16+2*q}:{17+2*q}] neg_lo:[0,1] neg_hi:[0,1]")
        for q in range(4):
            t = 48 + q * 2
            k(f"v_cvt_pk_bf16_f32 v{56+q}, v{t}, v{t+1}")
        for q in range(4):
            t = 48 + q * 2
            k(f"v_lshlrev_b32 v{t}, 16, v{56+q}")
            k(f"v_and_b32 v{t+1}, 0xffff0000, v{56+q}")
        for q in range(4):
            t = 48 + q * 2
            k(f"v_pk_mul_f32 v[{t}:{t+1}], v[{t}:{t+1}], s[{24+2*q}:{25+2*q}]")
        for q in range(4):
            t = 48 + q * 2
            k(f"v_cvt_pk_bf16_f32 v{64+c*8+q}, v{t}, v{t+1}")
        k(f"buffer_store_dwordx4 v[{64+c*8}:{67+c*8}], v1, s[40:43], s14 offen offset:{c*32}")
        k(f"buffer_store_dwordx4 v[{68+c*8}:{71+c*8}], v1, s[40:43], s14 offen offset:{c*32+16}")
    k.label(L_end)
    k("s_endpgm")
    return k
```

```python
from gfx import Kernel
from layout import *
from ka import f32, round_bf16

N_CV, N_WP, N_WO = 256, 43, 22
B_GRID = N_CV + N_WP + N_WO
KB = 128
HB = KB + 17408
XB = HB + 9216
RB = XB + 8192
B_LDS = RB + 16384


def kernel_B():
    k = Kernel("kb_kernel")
    L_wp, L_wo, L_end = "kb_wp", "kb_wo", "kb_end"
    k(f"s_cmp_ge_u32 s2, {B_GRID}")
    k(f"s_cbranch_scc1 {L_end}")
    k("s_load_dwordx2 s[36:37], s[0:1], 128")
    k(f"s_cmp_ge_u32 s2, {N_CV + N_WP}")
    k(f"s_cbranch_scc1 {L_wo}")
    k(f"s_cmp_ge_u32 s2, {N_CV}")
    k(f"s_cbranch_scc1 {L_wp}")

    k("s_load_dwordx2 s[4:5], s[0:1], 48")
    k("v_and_b32 v1, 63, v0")
    k("v_lshrrev_b32 v2, 6, v0")
    k("v_readfirstlane_b32 s3, v2")
    k("v_lshlrev_b32 v3, 4, v1")
    k("v_lshrrev_b32 v4, 2, v1")
    k("v_lshl_add_u32 v4, v2, 6, v4")
    k("v_and_b32 v5, 3, v1")
    k("v_lshlrev_b32 v6, 14, v4")
    k("v_lshl_add_u32 v6, v5, 4, v6")
    k("s_lshl_b32 s20, s2, 6")
    k("s_lshl_b32 s21, s2, 3")
    k("s_lshl_b32 s22, s2, 2")
    k("s_waitcnt lgkmcnt(0)")
    k.srd(8, 36, 256 * 16384, WS_NX)
    k.srd(12, 36, 512 * KR_CH, WS_KR)
    for i in range(4):
        k(f"buffer_load_dwordx4 v[{16+i*4}:{19+i*4}], v6, s[8:11], s20 offen")
        if i < 3:
            k(f"s_add_u32 s20, s20, {16*16384}")
    k("s_add_u32 s24, s36, s21")
    k("s_addc_u32 s25, s37, 0")
    k(f"s_load_dwordx2 s[26:27], s[24:25], {WS_MOD}")
    k(f"s_load_dwordx2 s[28:29], s[24:25], {WS_MOD+2048}")
    k(f"s_load_dwordx2 s[30:31], s[24:25], {WS_MOD+4096}")
    k("s_add_u32 s4, s4, s22")
    k("s_addc_u32 s5, s5, 0")
    k("s_load_dword s32, s[4:5], 0")
    k(f"s_mul_i32 s23, s2, {2*KR_CH}")
    k("s_lshl_b32 s33, s3, 10")
    k("s_add_u32 s23, s23, s33")
    k(f"s_add_u32 s33, s33, {KB}")
    for i in range(4):
        k(f"s_add_u32 m0, s33, {i*4096}")
        k(f"s_add_u32 s34, s23, {i*4096}")
        k("buffer_load_dwordx4 v3, s[12:15], s34 offen lds")
    Lk = k.newlabel()
    k("s_cmp_lg_u32 s3, 0")
    k(f"s_cbranch_scc1 {Lk}")
    k(f"s_add_u32 m0, s33, {16384}")
    k(f"s_add_u32 s34, s23, {16384}")
    k("buffer_load_dwordx4 v3, s[12:15], s34 offen lds")
    k("v_lshrrev_b32 v7, 5, v1")
    k("v_mul_u32_u24 v7, 4608, v7")
    k("v_and_b32 v8, 31, v1")
    k("v_lshl_add_u32 v7, v8, 4, v7")
    for r in range(4):
        k(f"v_mov_b32 v{8+r}, 0")
    k(f"ds_write_b128 v7, v[8:11] offset:{HB}")
    k.label(Lk)
    k.srd(16, 36, 512 * 4096, WS_X1T)
    k("v_bfe_u32 v7, v1, 1, 1")
    k("v_and_b32 v8, 1, v1")
    k("v_mul_u32_u24 v9, 4608, v7")
    k(f"v_add_u32 v9, {HB+512}, v9")
    k("v_lshlrev_b32 v10, 12, v7")
    k(f"v_add_u32 v10, {XB}, v10")
    k("v_cmp_eq_u32 vcc, 1, v8")
    k("v_cndmask_b32 v9, v9, v10, vcc")
    k("v_lshl_add_u32 v9, v4, 4, v9")
    k("v_and_b32 v10, 15, v1")
    k("v_lshrrev_b32 v11, 4, v1")
    k("s_lshr_b32 s40, s3, 1")
    k("s_and_b32 s41, s3, 1")
    k("v_and_b32 v12, 14, v10")
    k("v_lshlrev_b32 v12, 1, v12")
    k("v_lshlrev_b32 v13, 4, v11")
    k("v_sub_u32 v12, v13, v12")
    k("v_and_b32 v13, 1, v10")
    k(f"v_mul_u32_u24 v13, {KR_CP}, v13")
    k("v_sub_u32 v12, v12, v13")
    k(f"s_mul_i32 s42, s40, {KR_CH}")
    k("s_lshl_b32 s43, s41, 8")
    k("s_sub_u32 s42, s42, s43")
    k(f"s_add_u32 s42, s42, {KB + KR_CP + 4060 - 512}")
    k("v_add_u32 v32, s42, v12")
    for a_ in range(1, 4):
        k(f"v_subrev_u32 v{32+a_}, {1024*a_}, v32")
    k("v_lshlrev_b32 v12, 5, v10")
    k("v_lshl_add_u32 v12, v11, 4, v12")
    k("s_mul_i32 s42, s40, 4608")
    k("s_sub_u32 s42, s42, s43")
    k(f"s_add_u32 s42, s42, {HB + 512 - 32}")
    k("v_add_u32 v36, s42, v12")
    k("v_lshlrev_b32 v12, 5, v10")
    k("v_lshl_add_u32 v12, v11, 3, v12")
    k("s_lshl_b32 s43, s41, 11")
    k("s_mul_i32 s42, s40, 4608")
    k("s_add_u32 s42, s42, s43")
    k(f"s_add_u32 s42, s42, {HB + 512}")
    k("v_add_u32 v37, s42, v12")
    k("s_lshl_b32 s42, s40, 12")
    k("s_add_u32 s42, s42, s43")
    k(f"s_add_u32 s42, s42, {XB}")
    k("v_add_u32 v38, s42, v12")
    k("v_lshrrev_b32 v12, 1, v10")
    k("v_lshlrev_b32 v12, 3, v12")
    k("v_and_b32 v13, 1, v11")
    k("v_lshl_add_u32 v12, v13, 2, v12")
    k("v_and_b32 v13, 1, v10")
    k("v_lshl_add_u32 v12, v13, 1, v12")
    k("v_lshrrev_b32 v13, 1, v11")
    k("v_add_u32 v12, v12, v13")
    k("v_lshlrev_b32 v39, 3, v12")
    k("s_lshl_b32 s44, s2, 1")
    k("s_add_u32 s44, s44, s40")
    k("s_lshl_b32 s44, s44, 12")
    k("s_add_u32 s44, s44, s43")
    k("s_lshl_b32 s42, s3, 12")
    k(f"s_add_u32 s42, s42, {RB}")
    k("v_add_u32 v40, s42, v3")
    k("v_xor_b32 v41, 0x1000, v40") if (RB % 8192 == 0) else None
    if RB % 8192:
        k("s_xor_b32 s42, s3, 1")
        k("s_lshl_b32 s42, s42, 12")
        k(f"s_add_u32 s42, s42, {RB}")
        k("v_add_u32 v41, s42, v3")
    for r in range(44, 76):
        k(f"v_mov_b32 v{r}, 0")
    k("s_waitcnt lgkmcnt(0)")
    k("v_cmp_eq_u32 vcc, 1, v7")
    k("v_mov_b32 v12, s28")
    k("v_mov_b32 v13, s29")
    k("v_cndmask_b32 v12, v12, v13, vcc")
    k("v_add_f32 v12, 1.0, v12")
    round_bf16(k, "v12", "v12")
    k("v_mov_b32 v13, s26")
    k("v_mov_b32 v14, s27")
    k("v_cndmask_b32 v13, v13, v14, vcc")
    k("s_cmp_eq_u32 s40, 0")
    k("s_cselect_b32 s46, s30, s31")
    k("s_lshl_b32 s47, s32, 16")
    k("s_and_b32 s48, s32, 0xffff0000")
    k("s_cmp_eq_u32 s40, 0")
    k("s_cselect_b32 s47, s47, s48")
    k("s_mov_b32 exec_lo, 0x55555555")
    k("s_mov_b32 exec_hi, 0x55555555")
    for i in range(4):
        k(f"s_waitcnt vmcnt({3-i+4})")
        for j in range(4):
            w = 16 + i * 4 + j
            t = 76 + j * 2
            k(f"v_lshlrev_b32 v{t}, 16, v{w}")
            k(f"v_and_b32 v{t+1}, 0xffff0000, v{w}")
        for j in range(4):
            t = 76 + j * 2
            k(f"v_pk_mul_f32 v[{t}:{t+1}], v[{t}:{t+1}], v[12:13] op_sel:[0,0] op_sel_hi:[1,0]")
        for j in range(4):
            t = 76 + j * 2
            k(f"v_cvt_pk_bf16_f32 v{84+j}, v{t}, v{t+1}")
        for j in range(4):
            t = 76 + j * 2
            k(f"v_lshlrev_b32 v{t}, 16, v{84+j}")
            k(f"v_and_b32 v{t+1}, 0xffff0000, v{84+j}")
        for j in range(4):
            t = 76 + j * 2
            k(f"v_pk_add_f32 v[{t}:{t+1}], v[{t}:{t+1}], v[12:13] op_sel:[0,1] op_sel_hi:[1,1]")
        for j in range(4):
            t = 76 + j * 2
            k(f"v_cvt_pk_bf16_f32 v{16+i*4+j}, v{t}, v{t+1}")
    k("s_mov_b64 exec, -1")
    for i in range(4):
        k(f"ds_write_b128 v9, v[{16+i*4}:{19+i*4}] offset:{i*256}")
    k("s_waitcnt vmcnt(0) lgkmcnt(0)")
    k("s_barrier")

    FA = (76, 140)
    FB = (108, 172)

    def reads(s):
        out = []
        for m in range(8):
            a_ = m >> 1
            o = 0 if (m & 1) else 128
            x = FA[s] + 4 * m
            out.append(f"ds_read2_b32 v[{x}:{x+1}], v{32+a_} offset0:{o} offset1:{o+1}")
            out.append(f"ds_read2_b32 v[{x+2}:{x+3}], v{32+a_} offset0:{o+2} offset1:{o+3}")
            y = FB[s] + 4 * m
            out.append(f"ds_read_b128 v[{y}:{y+3}], v36 offset:{512*m}")
        return out

    def adv():
        return [f"v_subrev_u32 v{r}, 64, v{r}" for r in range(32, 37)]

    def mfmas(s):
        pairs = sorted([(m, t) for m in range(8) for t in range(8) if m + t <= 7], key=lambda p: (max(p), p[0] + p[1]))
        return [f"v_mfma_f32_16x16x32_bf16 v[{44+4*(m+t)}:{47+4*(m+t)}], v[{FA[s]+4*m}:{FA[s]+4*m+3}], v[{FB[s]+4*t}:{FB[s]+4*t+3}], v[{44+4*(m+t)}:{47+4*(m+t)}]"
                for (m, t) in pairs]

    for r_ in reads(0):
        k(r_)
    for x in adv():
        k(x)
    k("s_mov_b32 s50, 0")
    Lp = "kb_loop"
    k.label(Lp)
    for s in range(2):
        k("s_waitcnt lgkmcnt(0)")
        rd = reads(1 - s)
        mf = mfmas(s)
        ad = adv()
        for idx, x in enumerate(mf):
            k(x)
            if idx < len(rd):
                k(rd[idx])
            elif idx - len(rd) < len(ad):
                k(ad[idx - len(rd)])
    k("s_add_u32 s50, s50, 1")
    k("s_cmp_lt_u32 s50, 2")
    k(f"s_cbranch_scc1 {Lp}")
    k("s_waitcnt lgkmcnt(0)")
    for kk in range(4):
        k(f"ds_read_b64 v[{76+2*kk}:{77+2*kk}], v37 offset:{512*kk}")
        k(f"ds_read_b64 v[{84+2*kk}:{85+2*kk}], v38 offset:{512*kk}")
    L1, L2, L3, L4 = [k.newlabel() for _ in range(4)]
    k("s_cmp_eq_u32 s41, 0")
    k(f"s_cbranch_scc0 {L1}")
    for kk in range(4):
        k(f"ds_write_b128 v40, v[{60+4*kk}:{63+4*kk}] offset:{1024*kk}")
    k(f"s_branch {L2}")
    k.label(L1)
    for kk in range(4):
        k(f"ds_write_b128 v40, v[{44+4*kk}:{47+4*kk}] offset:{1024*kk}")
    for r in range(16):
        k(f"v_mov_b32 v{44+r}, v{60+r}")
    k.label(L2)
    k("s_waitcnt lgkmcnt(0)")
    k("s_barrier")
    for kk in range(4):
        k(f"ds_read_b128 v[{60+4*kk}:{63+4*kk}], v41 offset:{1024*kk}")
    for p in range(8):
        t = 92 + 2 * p
        k(f"v_lshlrev_b32 v{t}, 16, v{76+p}")
        k(f"v_and_b32 v{t+1}, 0xffff0000, v{76+p}")
        k(f"v_pk_mul_f32 v[{t}:{t+1}], v[{t}:{t+1}], s[46:47] op_sel:[0,1] op_sel_hi:[1,1]")
        k(f"v_cvt_pk_bf16_f32 v{76+p}, v{t}, v{t+1}")
        k(f"v_lshlrev_b32 v{t}, 16, v{76+p}")
        k(f"v_and_b32 v{t+1}, 0xffff0000, v{76+p}")
        u = 108 + 2 * p
        k(f"v_lshlrev_b32 v{u}, 16, v{84+p}")
        k(f"v_and_b32 v{u+1}, 0xffff0000, v{84+p}")
    k("s_waitcnt lgkmcnt(0)")
    for kk in range(4):
        for h in range(2):
            p = kk * 2 + h
            f = 44 + 2 * p
            k(f"v_pk_add_f32 v[{f}:{f+1}], v[{f}:{f+1}], v[{60+2*p}:{61+2*p}]")
            k(f"v_cvt_pk_bf16_f32 v{76+p}, v{f}, v{f+1}")
            k(f"v_lshlrev_b32 v{f}, 16, v{76+p}")
            k(f"v_and_b32 v{f+1}, 0xffff0000, v{76+p}")
            k(f"v_pk_add_f32 v[{f}:{f+1}], v[{f}:{f+1}], v[{92+2*p}:{93+2*p}]")
            k(f"v_cvt_pk_bf16_f32 v{76+p}, v{f}, v{f+1}")
            k(f"v_lshlrev_b32 v{f}, 16, v{76+p}")
            k(f"v_and_b32 v{f+1}, 0xffff0000, v{76+p}")
            k(f"v_pk_mul_f32 v[{f}:{f+1}], v[{f}:{f+1}], s[46:47] op_sel:[0,0] op_sel_hi:[1,0]")
            k(f"v_cvt_pk_bf16_f32 v{76+p}, v{f}, v{f+1}")
            k(f"v_lshlrev_b32 v{f}, 16, v{76+p}")
            k(f"v_and_b32 v{f+1}, 0xffff0000, v{76+p}")
            k(f"v_pk_add_f32 v[{f}:{f+1}], v[{f}:{f+1}], v[{108+2*p}:{109+2*p}]")
            k(f"v_cvt_pk_bf16_f32 v{76+p}, v{f}, v{f+1}")
        k(f"buffer_store_dwordx2 v[{76+2*kk}:{77+2*kk}], v39, s[16:19], s44 offen offset:{512*kk}")
    k("s_endpgm")

    k.label(L_wp)
    k("s_load_dwordx2 s[4:5], s[0:1], 64")
    k(f"s_sub_u32 s3, s2, {N_CV}")
    k("v_lshrrev_b32 v1, 2, v0")
    k("v_and_b32 v2, 3, v0")
    k(f"v_mul_u32_u24 v3, {8*2752}, v1")
    k("v_lshl_add_u32 v3, v2, 4, v3")
    k("v_lshlrev_b32 v4, 5, v1")
    k("s_lshl_b32 s20, s3, 6")
    k("s_waitcnt lgkmcnt(0)")
    k.srd(8, 4, 512 * 2752)
    k.srd(12, 36, 12288, WS_MOD)
    for e in range(8):
        k(f"buffer_load_dwordx4 v[{32+e*4}:{35+e*4}], v3, s[8:11], s20 offen")
        if e < 7:
            k("s_add_u32 s20, s20, 2752")
    k(f"s_movk_i32 s21, {4*2048}")
    k(f"s_movk_i32 s22, {3*2048}")
    k("buffer_load_dwordx4 v[8:11], v4, s[12:15], s21 offen")
    k("buffer_load_dwordx4 v[12:15], v4, s[12:15], s21 offen offset:16")
    k("buffer_load_dwordx4 v[16:19], v4, s[12:15], s22 offen")
    k("buffer_load_dwordx4 v[20:23], v4, s[12:15], s22 offen offset:16")
    k.srd(16, 36, 86 * 16384, WS_WPF)
    k.srd(24, 36, 2 * CSB_B, WS_CSB)
    k("v_lshrrev_b32 v5, 1, v2")
    k("v_lshlrev_b32 v5, 14, v5")
    k("v_lshl_add_u32 v5, v1, 8, v5")
    k("v_and_b32 v6, 1, v2")
    k("v_lshl_add_u32 v5, v6, 7, v5")
    k("s_lshl_b32 s23, s3, 15")
    k("s_mov_b32 s28, 0x3f803f80")
    for r in range(64, 80):
        k(f"v_mov_b32 v{r}, 0")
    k("s_waitcnt vmcnt(0)")
    for e in range(8):
        k(f"v_add_f32 v{8+e}, 1.0, v{8+e}")
    for e in range(0, 8, 2):
        k(f"v_cvt_pk_bf16_f32 v7, v{8+e}, v{9+e}")
        k(f"v_lshlrev_b32 v{8+e}, 16, v7")
        k(f"v_and_b32 v{9+e}, 0xffff0000, v7")
    for q in range(4):
        for h in range(2):
            e = 2 * q + h
            sel3 = "op_sel:[0,0,0] op_sel_hi:[1,0,1]" if h == 0 else "op_sel:[0,1,0] op_sel_hi:[1,1,1]"
            sel2 = "op_sel:[0,0] op_sel_hi:[1,0]" if h == 0 else "op_sel:[0,1] op_sel_hi:[1,1]"
            for j in range(4):
                t = 80 + h * 8 + 2 * j
                w = 32 + e * 4 + j
                k(f"v_lshlrev_b32 v{t}, 16, v{w}")
                k(f"v_and_b32 v{t+1}, 0xffff0000, v{w}")
                k(f"v_pk_fma_f32 v[{64+2*j}:{65+2*j}], v[{t}:{t+1}], v[{16+2*q}:{17+2*q}], v[{64+2*j}:{65+2*j}] {sel3}")
                k(f"v_pk_mul_f32 v[{t}:{t+1}], v[{t}:{t+1}], v[{8+2*q}:{9+2*q}] {sel2}")
        for cc in range(8):
            k(f"v_cvt_pk_bf16_f32 v{96+4*cc+q}, v{80+cc}, v{88+cc}")
        for cc in range(8):
            k(f"v_dot2_f32_bf16 v{72+cc}, v{96+4*cc+q}, s28, v{72+cc}")
    for cc in range(8):
        k(f"buffer_store_dwordx4 v[{96+4*cc}:{99+4*cc}], v5, s[16:19], s23 offen offset:{16*cc}")
    for cc in range(4):
        for b_, base in enumerate((72, 64)):
            d = 80 + cc * 2 + b_
            k(f"v_add_f32_dpp v{d}, v{base+cc}, v{base+cc} row_ror:8 row_mask:0xf bank_mask:0x3")
            k(f"v_add_f32_dpp v{d}, v{base+cc+4}, v{base+cc+4} row_ror:8 row_mask:0xf bank_mask:0xc")
    for r in range(4):
        k(f"v_add_f32_dpp v{88+r}, v{80+r}, v{80+r} row_shl:4 row_mask:0xf bank_mask:0x5")
        k(f"v_add_f32_dpp v{88+r}, v{84+r}, v{84+r} row_shr:4 row_mask:0xf bank_mask:0xa")
    k("v_lshlrev_b32 v6, 4, v0")
    k("ds_write_b128 v6, v[88:91]")
    k("v_lshrrev_b32 v6, 4, v0")
    k("v_bfe_u32 v7, v0, 2, 2")
    k("v_lshl_add_u32 v6, v7, 2, v6")
    k("v_and_b32 v7, 3, v0")
    k("v_lshl_add_u32 v6, v6, 2, v7")
    k("v_lshlrev_b32 v6, 2, v6")
    k("s_waitcnt lgkmcnt(0)")
    k("s_barrier")
    k("v_cmp_gt_u32 vcc, 64, v0")
    k("s_and_saveexec_b64 s[30:31], vcc")
    k(f"s_cbranch_execz {L_end}")
    for p in range(16):
        k(f"ds_read_b32 v{16+p}, v6 offset:{p*256}")
    k("s_waitcnt lgkmcnt(0)")
    for s in (8, 4, 2, 1):
        for p in range(s):
            k(f"v_add_f32 v{16+p}, v{16+p}, v{16+p+s}")
    k("s_lshl_b32 s21, s3, 7")
    k("v_lshrrev_b32 v4, 1, v0")
    k("v_lshlrev_b32 v4, 2, v4")
    k("v_and_b32 v5, 1, v0")
    k(f"v_mul_u32_u24 v5, {CSB_B}, v5")
    k("v_add_u32 v4, v4, v5")
    k("buffer_store_dword v16, v4, s[24:27], s21 offen")
    k("s_endpgm")

    k.label(L_wo)
    k("s_load_dwordx2 s[4:5], s[0:1], 88")
    k(f"s_sub_u32 s3, s2, {N_CV + N_WP}")
    k("v_and_b32 v1, 63, v0")
    k("v_lshrrev_b32 v2, 6, v0")
    k("v_lshlrev_b32 v3, 12, v2")
    k("v_lshl_add_u32 v3, v1, 4, v3")
    k("s_lshl_b32 s20, s3, 15")
    k("s_add_u32 s21, s20, 16384")
    k("s_waitcnt lgkmcnt(0)")
    k.srd(8, 4, 688 * 1024)
    for e in range(8):
        k(f"buffer_load_dwordx4 v[{8+e*4}:{11+e*4}], v3, s[8:11], s{20 + e//4} offen offset:{(e%4)*1024}")
    k.srd(16, 36, 32 * 22 * 1024, WS_WOF)
    k("v_lshrrev_b32 v5, 1, v1")
    k(f"v_mul_u32_u24 v5, {22*1024}, v5")
    k("v_lshl_add_u32 v5, v2, 8, v5")
    k("v_and_b32 v6, 1, v1")
    k("v_lshl_add_u32 v5, v6, 7, v5")
    k("s_lshl_b32 s23, s3, 10")
    k("s_mov_b32 s44, 0x05040100")
    k("s_mov_b32 s45, 0x07060302")
    k("s_waitcnt vmcnt(0)")
    for cc in range(8):
        for q in range(4):
            j = cc >> 1
            k(f"v_perm_b32 v{40+4*cc+q}, v{8+(2*q+1)*4+j}, v{8+2*q*4+j}, s{44 + (cc & 1)}")
        k(f"buffer_store_dwordx4 v[{40+4*cc}:{43+4*cc}], v5, s[16:19], s23 offen offset:{16*cc}")
    k.label(L_end)
    k("s_endpgm")
    return k
```

```python
from gfx import Kernel
from layout import *
from ka import f32, LOG2E
import math

C_GRID = 256
SB = 0
ZB = SB + 512
AB = 4096
C_LDS = AB + 65536

GC0 = -LOG2E * 2 * math.sqrt(2 / math.pi)
GC1 = GC0 * 0.044715


def gelu_pair(k, x, t, e):
    k(f"v_cvt_pk_bf16_f32 v{t}, v{x}, v{x+1}")
    k(f"v_lshlrev_b32 v{x}, 16, v{t}")
    k(f"v_and_b32 v{x+1}, 0xffff0000, v{t}")
    k(f"v_pk_mul_f32 v[{t}:{t+1}], v[{x}:{x+1}], v[{x}:{x+1}]")
    k(f"v_pk_fma_f32 v[{t}:{t+1}], v[{t}:{t+1}], s[60:61], s[60:61] op_sel:[0,1,0] op_sel_hi:[1,1,0]")
    k(f"v_pk_mul_f32 v[{t}:{t+1}], v[{t}:{t+1}], v[{x}:{x+1}]")
    k(f"v_exp_f32 v{t}, v{t}")
    k(f"v_exp_f32 v{t+1}, v{t+1}")
    k(f"v_pk_add_f32 v[{t}:{t+1}], v[{t}:{t+1}], 1.0 op_sel_hi:[1,0]")
    k(f"v_rcp_f32 v{t}, v{t}")
    k(f"v_rcp_f32 v{t+1}, v{t+1}")
    k(f"v_pk_mul_f32 v[{x}:{x+1}], v[{x}:{x+1}], v[{t}:{t+1}]")


def kernel_C():
    k = Kernel("kc_kernel")
    L_end = "kc_end"
    k(f"s_cmp_ge_u32 s2, {C_GRID}")
    k(f"s_cbranch_scc1 {L_end}")
    k("s_load_dwordx2 s[36:37], s[0:1], 128")
    k("v_and_b32 v1, 63, v0")
    k("v_lshrrev_b32 v2, 6, v0")
    k("v_readfirstlane_b32 s3, v2")
    k("s_and_b32 s4, s2, 7")
    k("s_lshr_b32 s5, s2, 3")
    k("s_lshr_b32 s6, s5, 3")
    k("s_lshl_b32 s4, s4, 2")
    k("s_add_u32 s4, s4, s6")
    k("s_and_b32 s5, s5, 7")
    k("s_lshr_b32 s6, s5, 2")
    k("s_and_b32 s7, s5, 3")
    k("v_lshlrev_b32 v4, 4, v1")
    for q in range(1, 4):
        k(f"v_add_u32 v{4+q}, {4096*q}, v4")
    k("v_lshrrev_b32 v3, 3, v1")
    k("v_and_b32 v8, 2, v3")
    k("v_and_b32 v9, 1, v2")
    k("v_lshl_or_b32 v8, v9, 2, v8")
    k("v_and_b32 v9, 7, v1")
    k("v_xor_b32 v8, v8, v9")
    k("v_lshlrev_b32 v8, 4, v8")
    k("v_lshl_add_u32 v3, v2, 3, v3")
    k("v_lshl_add_u32 v8, v3, 12, v8")
    k("s_mul_i32 s8, s7, 11")
    k("s_mul_i32 s9, s3, 3")
    k("s_add_u32 s8, s8, s9")
    k("s_mul_i32 s10, s6, 43")
    k("s_add_u32 s10, s10, s8")
    k("s_waitcnt lgkmcnt(0)")
    k.srd(12, 36, 512 * 4096, WS_X1T)
    for tt in range(3):
        d = 64 + 4 * tt
        k(f"s_add_u32 s11, s10, {tt}")
        k("s_lshl_b32 s16, s11, 14")
        k(f"s_add_u32 s16, s16, {WS_WPF}")
        k(f"s_add_u32 s{d}, s36, s16")
        k(f"s_addc_u32 s{d+1}, s37, 0")
        k(f"s_and_b32 s{d+1}, s{d+1}, 0xffff")
        k(f"s_mov_b32 s{d+3}, 0x00020000")
        k(f"s_add_u32 s17, s9, {tt}")
        k("s_cmp_lt_u32 s17, 11")
        k("s_cselect_b32 s17, -1, 0")
        k(f"s_add_u32 s18, s8, {tt}")
        k("s_cmp_lt_u32 s18, 43")
        k("s_cselect_b32 s17, s17, 0")
        k(f"s_and_b32 s{d+2}, s17, 16384")
        c = 76 + 4 * tt
        k("s_lshl_b32 s16, s11, 6")
        k(f"s_add_u32 s16, s16, {WS_CSB}")
        k(f"s_add_u32 s{c}, s36, s16")
        k(f"s_addc_u32 s{c+1}, s37, 0")
        k(f"s_and_b32 s{c+1}, s{c+1}, 0xffff")
        k(f"s_and_b32 s{c+2}, s17, {CSB_B + 64}")
        k(f"s_mov_b32 s{c+3}, 0x00020000")
        o = 88 + 4 * tt
        k(f"s_mul_i32 s16, s4, {4*43}")
        k("s_add_u32 s16, s16, s18")
        k("s_lshl_b32 s16, s16, 9")
        k(f"s_add_u32 s16, s16, {WS_Z1F}")
        k("s_lshl_b32 s19, s18, 16")
        k("s_lshl_b32 s20, s4, 11")
        k("s_add_u32 s19, s19, s20")
        k(f"s_add_u32 s19, s19, {WS_Z2F}")
        k("s_cmp_eq_u32 s6, 0")
        k("s_cselect_b32 s16, s16, s19")
        k(f"s_add_u32 s{o}, s36, s16")
        k(f"s_addc_u32 s{o+1}, s37, 0")
        k(f"s_and_b32 s{o+1}, s{o+1}, 0xffff")
        k(f"s_and_b32 s{o+2}, s17, {3*43*512 + 512}")
        k(f"s_mov_b32 s{o+3}, 0x00020000")
    k("s_lshl_b32 s21, s4, 7")
    k("s_lshl_b32 s22, s3, 10")
    k(f"s_add_u32 s22, s22, {AB}")

    def issue(kap):
        k(f"s_add_u32 m0, s22, {kap*4096}")
        k(f"s_add_u32 s23, s21, {kap*32*4096}")
        k("buffer_load_dwordx4 v8, s[12:15], s23 offen lds")
        for tt in range(3):
            a = (kap * 3 + tt) * 4
            k(f"buffer_load_dwordx4 a[{a}:{a+3}], v{4 + kap//4}, s[{64+4*tt}:{67+4*tt}], 0 offen offset:{(kap%4)*1024}")

    for kap in range(12):
        issue(kap)
    k("v_and_b32 v3, 15, v1")
    k("v_lshrrev_b32 v9, 4, v1")
    k("v_bfe_u32 v15, v1, 2, 2")
    k("v_lshl_add_u32 v106, v9, 3, v15")
    k("v_lshlrev_b32 v106, 7, v106")
    k("v_and_b32 v107, 3, v1")
    k("v_lshl_add_u32 v106, v107, 3, v106")
    k(f"v_add_u32 v106, {AB}, v106")
    k("v_lshrrev_b32 v15, 1, v15")
    k("v_and_b32 v107, 1, v9")
    k("v_lshl_or_b32 v15, v107, 1, v15")
    for rho in range(4):
        k(f"v_xor_b32 v107, {rho}, v15")
        k(f"v_lshl_add_u32 v{10+rho}, v107, 5, v106")
    k("v_xor_b32 v107, v2, v15")
    k("v_lshl_add_u32 v14, v107, 5, v106")
    for r in range(16, 64):
        k(f"v_mov_b32 v{r}, 0")
    k("v_mov_b32 v104, 0")
    k("v_mov_b32 v105, 0")
    k("s_mov_b32 s24, 0x3f803f80")
    k(f"s_mov_b32 s60, {f32(GC0)}")
    k(f"s_mov_b32 s61, {f32(GC1)}")
    Lz2 = "kc_z2"
    Lz2b = "kc_z2b"
    Lcommon = "kc_common"
    k("s_cmp_lg_u32 s6, 0")
    k(f"s_cbranch_scc1 {Lz2}")

    def reads(kap):
        s = kap & 1
        out = []
        for rho in range(4):
            for h in range(2):
                x = 64 + s * 16 + rho * 4 + h * 2
                out.append(f"ds_read_b64_tr_b16 v[{x}:{x+1}], v{10+rho} offset:{kap*4096 + h*512}")
        for h in range(2):
            x = 96 + s * 4 + h * 2
            out.append(f"ds_read_b64_tr_b16 v[{x}:{x+1}], v14 offset:{kap*4096 + h*512}")
        return out

    def mainloop(z2):
        for G in range(4):
            k(f"s_waitcnt vmcnt({(32, 32, 16, 0)[G]})")
            k("s_barrier")
            for x in reads(4 * G):
                k(x)
            if G == 0:
                for kap in range(12, 16):
                    issue(kap)
            for kk in range(4):
                kap = 4 * G + kk
                s = kap & 1
                k("s_waitcnt lgkmcnt(0)")
                fill = reads(kap + 1) if kk < 3 else []
                st = []
                for j in range(4):
                    x = 96 + s * 4 + j
                    st.append(f"v_dot2_f32_bf16 v104, v{x}, s24, v104")
                    st.append(f"v_dot2_f32_bf16 v105, v{x}, v{x}, v105")
                fill = fill + st
                n = 0
                for tt in range(3):
                    for rho in range(4):
                        acc = 16 + tt * 16 + rho * 4
                        af = 64 + s * 16 + rho * 4
                        b = (kap * 3 + tt) * 4
                        if z2:
                            k(f"v_mfma_f32_16x16x32_bf16 v[{acc}:{acc+3}], v[{af}:{af+3}], a[{b}:{b+3}], v[{acc}:{acc+3}]")
                        else:
                            k(f"v_mfma_f32_16x16x32_bf16 v[{acc}:{acc+3}], a[{b}:{b+3}], v[{af}:{af+3}], v[{acc}:{acc+3}]")
                        for _ in range(2):
                            if n < len(fill):
                                k(fill[n]); n += 1
                while n < len(fill):
                    k(fill[n]); n += 1

    mainloop(False)
    k("v_lshlrev_b32 v106, 4, v9")
    for tt in range(3):
        k(f"buffer_load_dwordx4 v[{108+8*tt}:{111+8*tt}], v106, s[{76+4*tt}:{79+4*tt}], 0 offen")
        k(f"s_movk_i32 s25, {CSB_B}")
        k(f"buffer_load_dwordx4 v[{112+8*tt}:{115+8*tt}], v106, s[{76+4*tt}:{79+4*tt}], s25 offen")
    k(f"s_branch {Lcommon}")
    k.label(Lz2)
    mainloop(True)
    k("v_lshlrev_b32 v106, 2, v3")
    for tt in range(3):
        k(f"buffer_load_dword v{108+8*tt}, v106, s[{76+4*tt}:{79+4*tt}], 0 offen")
        k(f"s_movk_i32 s25, {CSB_B}")
        k(f"buffer_load_dword v{109+8*tt}, v106, s[{76+4*tt}:{79+4*tt}], s25 offen")
    k.label(Lcommon)
    k("s_lshl_b32 s25, s5, 13")
    k("v_add_u32 v106, s25, v14")
    for q in range(2):
        for h in range(2):
            x = 64 + q * 4 + h * 2
            k(f"ds_read_b64_tr_b16 v[{x}:{x+1}], v106 offset:{q*4096 + h*512}")
    for r in (104, 105):
        k(f"v_mov_b32 v107, v{r}")
        k(f"v_permlane16_swap_b32 v107, v{r}")
        k(f"v_add_f32 v{r}, v{r}, v107")
        k(f"v_mov_b32 v107, v{r}")
        k(f"v_permlane32_swap_b32 v107, v{r}")
        k(f"v_add_f32 v{r}, v{r}, v107")
    k(f"s_mov_b32 s26, {f32(1.0/512)}")
    k(f"s_mov_b32 s27, {f32(1e-5)}")
    k("v_mul_f32 v104, s26, v104")
    k("v_mul_f32 v105, s26, v105")
    k("v_fma_f32 v105, -v104, v104, v105")
    k("v_max_f32 v105, 0, v105")
    k("v_cvt_pk_bf16_f32 v107, v104, v105")
    k("v_lshlrev_b32 v104, 16, v107")
    k("v_and_b32 v105, 0xffff0000, v107")
    k("v_add_f32 v105, s27, v105")
    k("v_cvt_pk_bf16_f32 v105, v105, v105")
    k("v_and_b32 v105, 0xffff0000, v105")
    k("v_sqrt_f32 v105, v105")
    k("v_cvt_pk_bf16_f32 v105, v105, v105")
    k("v_and_b32 v105, 0xffff0000, v105")
    k("v_rcp_f32 v105, v105")
    k("v_mul_f32 v104, v104, v105")
    k("v_lshl_add_u32 v107, v2, 4, v3")
    k("v_lshlrev_b32 v107, 2, v107")
    k(f"ds_write_b32 v107, v105 offset:{SB}")
    k(f"ds_write_b32 v107, v104 offset:{SB+256}")
    k.srd(28, 36, 2048 * 1024, WS_X1N)
    k("v_lshrrev_b32 v106, 2, v3")
    k("v_lshlrev_b32 v106, 3, v106")
    k("v_and_b32 v107, 3, v3")
    k("v_add_u32 v106, v106, v107")
    k("v_lshlrev_b32 v106, 10, v106")
    k("v_lshl_add_u32 v106, v9, 4, v106")
    k("s_lshr_b32 s25, s3, 1")
    k("s_lshl_b32 s25, s25, 5")
    k("s_and_b32 s26, s3, 1")
    k("s_lshl_b32 s26, s26, 2")
    k("s_add_u32 s25, s25, s26")
    k("s_lshl_b32 s26, s4, 6")
    k("s_add_u32 s25, s25, s26")
    k("s_lshl_b32 s25, s25, 10")
    k("s_lshl_b32 s26, s5, 7")
    k("s_add_u32 s25, s25, s26")
    k("s_waitcnt lgkmcnt(0)")
    k("buffer_store_dwordx4 v[64:67], v106, s[28:31], s25 offen")
    k("buffer_store_dwordx4 v[68:71], v106, s[28:31], s25 offen offset:64")
    k("s_barrier")
    k("s_mov_b32 s32, 0")
    k("s_cmp_lg_u32 s6, 0")
    k(f"s_cbranch_scc1 {Lz2b}")

    def rotate():
        for r in range(32):
            k(f"v_mov_b32 v{16+r}, v{32+r}")
        for r in range(16):
            k(f"v_mov_b32 v{108+r}, v{116+r}")
        k("s_mov_b64 s[88:89], s[92:93]")
        k("s_mov_b64 s[90:91], s[94:95]")
        k("s_mov_b64 s[92:93], s[96:97]")
        k("s_mov_b64 s[94:95], s[98:99]")

    k("v_lshlrev_b32 v106, 2, v3")
    for rho in range(4):
        k(f"ds_read_b32 v{132+2*rho}, v106 offset:{SB + rho*64}")
        k(f"ds_read_b32 v{133+2*rho}, v106 offset:{SB + 256 + rho*64}")
    k("v_lshlrev_b32 v107, 3, v1")
    k("s_waitcnt vmcnt(2) lgkmcnt(0)")
    Lp = "kc_e1"
    k.label(Lp)
    for rho in range(4):
        for h in range(2):
            x = 16 + rho * 4 + h * 2
            t = 140 + h * 2
            rr = 132 + 2 * rho
            k(f"v_pk_fma_f32 v[{t}:{t+1}], v[{108+2*h}:{109+2*h}], v[{rr}:{rr+1}], v[{112+2*h}:{113+2*h}] op_sel:[0,1,0] op_sel_hi:[1,1,1] neg_lo:[1,0,0] neg_hi:[1,0,0]")
            k(f"v_pk_fma_f32 v[{x}:{x+1}], v[{x}:{x+1}], v[{rr}:{rr+1}], v[{t}:{t+1}] op_sel:[0,0,0] op_sel_hi:[1,0,1]")
            gelu_pair(k, x, t, None)
            k(f"v_cvt_pk_bf16_f32 v{144+2*rho+h}, v{x}, v{x+1}")
        k(f"s_mov_b32 s33, {rho*43*512}")
        k(f"buffer_store_dwordx2 v[{144+2*rho}:{145+2*rho}], v107, s[88:91], s33 offen")
    rotate()
    k("s_add_u32 s32, s32, 1")
    k("s_cmp_lt_u32 s32, 3")
    k(f"s_cbranch_scc1 {Lp}")
    k("s_endpgm")

    k.label(Lz2b)
    k("v_lshlrev_b32 v106, 4, v9")
    for rho in range(4):
        k(f"ds_read_b128 v[{132+8*rho}:{135+8*rho}], v106 offset:{SB + rho*64}")
        k(f"ds_read_b128 v[{136+8*rho}:{139+8*rho}], v106 offset:{SB + 256 + rho*64}")
    for r in range(64, 96):
        k(f"v_mov_b32 v{r}, 0")
    k("s_waitcnt vmcnt(2) lgkmcnt(0)")
    Lp = "kc_e2"
    k.label(Lp)
    for rho in range(4):
        for h in range(2):
            x = 16 + rho * 4 + h * 2
            t = 164 + h * 2
            R_ = 132 + 8 * rho + 2 * h
            RM = R_ + 4
            k(f"v_pk_fma_f32 v[{t}:{t+1}], v[{RM}:{RM+1}], v[108:109], v[108:109] op_sel:[0,0,1] op_sel_hi:[1,0,1] neg_lo:[1,0,0] neg_hi:[1,0,0]")
            k(f"v_pk_fma_f32 v[{x}:{x+1}], v[{x}:{x+1}], v[{R_}:{R_+1}], v[{t}:{t+1}]")
            gelu_pair(k, x, t, None)
            o = 168 + 2 * rho + h
            k(f"v_cvt_pk_bf16_f32 v{o}, v{x}, v{x+1}")
            k(f"v_lshlrev_b32 v{x}, 16, v{o}")
            k(f"v_and_b32 v{x+1}, 0xffff0000, v{o}")
            ss = 64 + 4 * rho + 2 * h
            k(f"v_pk_add_f32 v[{ss}:{ss+1}], v[{ss}:{ss+1}], v[{x}:{x+1}]")
            k(f"v_pk_fma_f32 v[{ss+16}:{ss+17}], v[{x}:{x+1}], v[{x}:{x+1}], v[{ss+16}:{ss+17}]")
        if rho & 1:
            k(f"buffer_store_dwordx4 v[{168+2*(rho-1)}:{171+2*(rho-1)}], v4, s[88:91], 0 offen offset:{(rho>>1)*1024}")
    rotate()
    k("s_add_u32 s32, s32, 1")
    k("s_cmp_lt_u32 s32, 3")
    k(f"s_cbranch_scc1 {Lp}")
    src = lambda rho, r, b: 64 + 16 * b + 4 * rho + r
    for rl in range(2):
        for r in range(4):
            for b in range(2):
                d = 16 + rl * 8 + r * 2 + b
                k(f"v_add_f32_dpp v{d}, v{src(rl,r,b)}, v{src(rl,r,b)} row_ror:8 row_mask:0xf bank_mask:0x3")
                k(f"v_add_f32_dpp v{d}, v{src(rl+2,r,b)}, v{src(rl+2,r,b)} row_ror:8 row_mask:0xf bank_mask:0xc")
    for m in range(8):
        k(f"v_add_f32_dpp v{32+m}, v{16+m}, v{16+m} row_half_mirror row_mask:0xf bank_mask:0x5")
        k(f"v_add_f32_dpp v{32+m}, v{24+m}, v{24+m} row_half_mirror row_mask:0xf bank_mask:0xa")
    for m in range(8):
        k(f"v_add_f32_dpp v{32+m}, v{32+m}, v{32+m} quad_perm:[2,3,0,1] row_mask:0xf bank_mask:0xf")
    for m in range(8):
        k(f"v_add_f32_dpp v{32+m}, v{32+m}, v{32+m} quad_perm:[1,0,3,2] row_mask:0xf bank_mask:0xf")
    k("v_bfe_u32 v106, v1, 3, 1")
    k("v_lshlrev_b32 v106, 5, v106")
    k("v_lshl_add_u32 v106, v9, 3, v106")
    k("v_bfe_u32 v107, v1, 2, 1")
    k("v_lshl_add_u32 v106, v107, 2, v106")
    k("v_lshlrev_b32 v106, 3, v106")
    k("v_lshl_add_u32 v106, v2, 9, v106")
    k(f"ds_write_b128 v106, v[32:35] offset:{ZB}")
    k(f"ds_write_b128 v106, v[36:39] offset:{ZB+16}")
    k.srd(28, 36, 65536, WS_ST2)
    k("v_lshlrev_b32 v106, 2, v0")
    k("s_lshl_b32 s25, s7, 14")
    k("s_lshl_b32 s26, s4, 9")
    k("s_add_u32 s25, s25, s26")
    k("s_waitcnt lgkmcnt(0)")
    k("s_barrier")
    k("s_cmp_ge_u32 s3, 2")
    k(f"s_cbranch_scc1 {L_end}")
    for p in range(4):
        k(f"ds_read_b32 v{16+p}, v106 offset:{ZB + p*512}")
    k("s_waitcnt lgkmcnt(0)")
    k("v_add_f32 v16, v16, v17")
    k("v_add_f32 v18, v18, v19")
    k("v_add_f32 v16, v16, v18")
    k("buffer_store_dword v16, v106, s[28:31], s25 offen")
    k.label(L_end)
    k("s_endpgm")
    return k
```

```python
from gfx import Kernel
from layout import *
from ka import f32

D_GRID = 256
WREG = 24576
RS_O = 21504
MU_O = RS_O + 2048
D_LDS = 4 * WREG

ZF = 32
WF = 128
RSR = 160
MUR = 176
TMP = 184
STR = 192


def kernel_D():
    k = Kernel("kd_kernel")
    L_end = "kd_end"
    k(f"s_cmp_ge_u32 s2, {D_GRID}")
    k(f"s_cbranch_scc1 {L_end}")
    k("s_load_dwordx2 s[36:37], s[0:1], 128")
    k("s_load_dwordx4 s[40:43], s[0:1], 72")
    k("v_and_b32 v1, 63, v0")
    k("v_lshrrev_b32 v2, 6, v0")
    k("v_readfirstlane_b32 s3, v2")
    k("s_and_b32 s4, s2, 7")
    k("s_lshr_b32 s5, s2, 3")
    k("s_lshr_b32 s6, s5, 3")
    k("s_lshl_b32 s4, s4, 2")
    k("s_add_u32 s4, s4, s6")
    k("s_and_b32 s5, s5, 7")
    k("v_lshlrev_b32 v4, 4, v1")
    for tt in range(1, 6):
        k(f"v_add_u32 v{4+tt}, {65536*tt}, v4")
    k("v_lshrrev_b32 v3, 3, v1")
    k("v_lshrrev_b32 v12, 2, v3")
    k("v_lshlrev_b32 v12, 3, v12")
    k("v_and_b32 v13, 3, v3")
    k("v_add_u32 v12, v12, v13")
    k("v_lshlrev_b32 v12, 12, v12")
    k("v_lshrrev_b32 v13, 1, v3")
    k("v_and_b32 v14, 7, v1")
    k("v_xor_b32 v13, v13, v14")
    k("v_lshl_add_u32 v10, v13, 4, v12")
    k("v_xor_b32 v13, 4, v13")
    k("v_lshl_add_u32 v11, v13, 4, v12")
    k("s_lshl_b32 s7, s4, 18")
    k("s_lshl_b32 s8, s3, 10")
    k("s_add_u32 s7, s7, s8")
    for lam in range(4):
        k(f"s_xor_b32 s9, s3, {lam}")
        k("s_lshr_b32 s10, s9, 1")
        k("s_lshl_b32 s10, s10, 17")
        k("s_and_b32 s9, s9, 1")
        k("s_lshl_b32 s9, s9, 14")
        k("s_add_u32 s9, s9, s10")
        k(f"s_add_u32 s{64+2*lam}, s9, s7")
        k(f"s_add_u32 s{65+2*lam}, s{64+2*lam}, {16*4096}")
    k(f"s_mul_i32 s11, s3, {WREG}")
    k("s_lshl_b32 s72, s3, 14")
    k("s_mul_i32 s9, s5, 6")
    k("s_sub_u32 s10, 43, s9")
    k("s_min_u32 s10, s10, 6")
    k("s_waitcnt lgkmcnt(0)")
    k.srd(12, 40, 2048 * 4096)
    k.srd(16, 36, 65536, WS_ST2)
    k("s_lshl_b32 s24, s9, 16")
    k(f"s_add_u32 s24, s24, {WS_Z2F}")
    k("s_add_u32 s20, s36, s24")
    k("s_addc_u32 s21, s37, 0")
    k("s_and_b32 s21, s21, 0xffff")
    k("s_lshl_b32 s22, s10, 16")
    k("s_mov_b32 s23, 0x00020000")
    k("s_lshl_b32 s24, s3, 12")
    for g in range(4):
        for i in range(4):
            r = STR + (g * 4 + i) * 4
            k(f"buffer_load_dwordx4 v[{r}:{r+3}], v4, s[16:19], s24 offen offset:{i*1024}")
        if g < 3:
            k("s_add_u32 s24, s24, 16384")

    def dma(buf):
        out = []
        for I in range(8):
            out.append([f"s_add_u32 m0, s11, {buf*8192 + I*1024}", "s_nop 0",
                        f"buffer_load_dwordx4 v{10 + (I&1)}, s[12:15], s{64+I} offen lds",
                        f"s_add_u32 s{64+I}, s{64+I}, 128"])
        return out

    def zload(buf, kk, tt):
        r = ZF + buf * 48 + (kk * 6 + tt) * 4
        return f"buffer_load_dwordx4 v[{r}:{r+3}], v{4+tt}, s[20:23], s72 offen offset:{kk*1024}"

    for buf in range(2):
        for g in dma(buf):
            for x in g:
                k(x)
        for kk in range(2):
            for tt in range(6):
                k(zload(buf, kk, tt))
        k("s_add_u32 s72, s72, 2048")
    k("v_and_b32 v3, 15, v1")
    k("v_lshrrev_b32 v12, 4, v1")
    k("v_lshrrev_b32 v13, 1, v3")
    k("v_xor_b32 v13, v13, v12")
    k("v_lshlrev_b32 v14, 7, v3")
    k("v_add_u32 v14, s11, v14")
    k("v_lshl_add_u32 v15, v13, 4, v14")
    k("v_xor_b32 v13, 4, v13")
    k("v_lshl_add_u32 v16, v13, 4, v14")
    k("v_lshlrev_b32 v17, 5, v12")
    k("v_add_u32 v17, s11, v17")
    k("v_lshlrev_b32 v18, 4, v12")
    k("v_add_u32 v18, s11, v18")
    k("v_lshlrev_b32 v19, 3, v1")
    k("v_add_u32 v19, s11, v19")
    k("v_lshlrev_b32 v20, 2, v1")
    k("v_add_u32 v20, s11, v20")
    for r in range(112):
        k(f"v_accvgpr_write_b32 a{r}, 0")
    k(f"s_mov_b32 s26, {f32(1.0/688)}")
    k(f"s_mov_b32 s27, {f32(1e-5)}")
    k("s_waitcnt vmcnt(40)")
    for i in range(4):
        b = STR + i * 4
        for h in range(2):
            x = b + 2 * h
            k(f"v_pk_add_f32 v[{x}:{x+1}], v[{x}:{x+1}], v[{x+16}:{x+17}]")
            k(f"v_pk_add_f32 v[{x+32}:{x+33}], v[{x+32}:{x+33}], v[{x+48}:{x+49}]")
            k(f"v_pk_add_f32 v[{x}:{x+1}], v[{x}:{x+1}], v[{x+32}:{x+33}]")
            k(f"v_pk_mul_f32 v[{x}:{x+1}], v[{x}:{x+1}], s[26:27] op_sel_hi:[1,0]")
            k(f"v_fma_f32 v{x+1}, -v{x}, v{x}, v{x+1}")
            k(f"v_max_f32 v{x+1}, 0, v{x+1}")
        t = TMP
        k(f"v_cvt_pk_bf16_f32 v{t}, v{b}, v{b+2}")
        k(f"ds_write_b32 v20, v{t} offset:{MU_O + i*256}")
        k(f"v_cvt_pk_bf16_f32 v{t+1}, v{b+1}, v{b+3}")
        k(f"v_lshlrev_b32 v{t+2}, 16, v{t+1}")
        k(f"v_and_b32 v{t+3}, 0xffff0000, v{t+1}")
        k(f"v_pk_add_f32 v[{t+2}:{t+3}], v[{t+2}:{t+3}], s[26:27] op_sel:[0,1] op_sel_hi:[1,1]")
        k(f"v_cvt_pk_bf16_f32 v{t+1}, v{t+2}, v{t+3}")
        k(f"v_lshlrev_b32 v{t+2}, 16, v{t+1}")
        k(f"v_and_b32 v{t+3}, 0xffff0000, v{t+1}")
        k(f"v_sqrt_f32 v{t+2}, v{t+2}")
        k(f"v_sqrt_f32 v{t+3}, v{t+3}")
        k(f"v_cvt_pk_bf16_f32 v{t+1}, v{t+2}, v{t+3}")
        k(f"v_lshlrev_b32 v{t+2}, 16, v{t+1}")
        k(f"v_and_b32 v{t+3}, 0xffff0000, v{t+1}")
        k(f"v_rcp_f32 v{b}, v{t+2}")
        k(f"v_rcp_f32 v{b+1}, v{t+3}")
        k(f"ds_write_b64 v19, v[{b}:{b+1}] offset:{RS_O + i*512}")
    k("s_mov_b32 s28, 0")
    Lp = "kd_loop"
    k.label(Lp)
    Lnz = k.newlabel()
    k("s_cmp_lt_u32 s28, 3")
    k(f"s_cbranch_scc1 {Lnz}")
    k("s_mov_b32 s14, 0")
    k("s_mov_b32 s22, 0")
    k.label(Lnz)
    for buf in range(2):
        k("s_waitcnt vmcnt(20) lgkmcnt(0)")
        for kk in range(2):
            for lam in range(4):
                r = WF + (kk * 4 + lam) * 4
                k(f"ds_read_b128 v[{r}:{r+3}], v{15+kk} offset:{buf*8192 + lam*2048}")
            k(f"ds_read_b128 v[{RSR+kk*8}:{RSR+kk*8+3}], v17 offset:{RS_O + buf*256 + kk*128}")
            k(f"ds_read_b128 v[{RSR+kk*8+4}:{RSR+kk*8+7}], v17 offset:{RS_O + buf*256 + kk*128 + 16}")
            k(f"ds_read_b128 v[{MUR+kk*4}:{MUR+kk*4+3}], v18 offset:{MU_O + buf*128 + kk*64}")

        def scale(kk, lam):
            out = []
            r = WF + (kk * 4 + lam) * 4
            for j in range(4):
                t = TMP + 2 * j
                out.append(f"v_lshlrev_b32 v{t}, 16, v{r+j}")
                out.append(f"v_and_b32 v{t+1}, 0xffff0000, v{r+j}")
            for j in range(4):
                t = TMP + 2 * j
                out.append(f"v_pk_mul_f32 v[{t}:{t+1}], v[{t}:{t+1}], v[{RSR+kk*8+2*j}:{RSR+kk*8+2*j+1}]")
            for j in range(4):
                t = TMP + 2 * j
                out.append(f"v_cvt_pk_bf16_f32 v{r+j}, v{t}, v{t+1}")
            return out

        def mf(kk, lam):
            out = []
            r = WF + (kk * 4 + lam) * 4
            for tt in range(6):
                z = ZF + buf * 48 + (kk * 6 + tt) * 4
                a = (lam * 7 + tt) * 4
                out.append(f"v_mfma_f32_16x16x32_bf16 a[{a}:{a+3}], v[{z}:{z+3}], v[{r}:{r+3}], a[{a}:{a+3}]")
            a = (lam * 7 + 6) * 4
            out.append(f"v_mfma_f32_16x16x32_bf16 a[{a}:{a+3}], v[{MUR+kk*4}:{MUR+kk*4+3}], v[{r}:{r+3}], a[{a}:{a+3}]")
            return out

        k("s_waitcnt lgkmcnt(7)")
        for x in scale(0, 0):
            k(x)
        k("s_waitcnt lgkmcnt(0)")
        dm = dma(buf)
        seq = [(kk, lam) for kk in range(2) for lam in range(4)]
        for idx, (kk, lam) in enumerate(seq):
            fill = scale(*seq[idx + 1]) if idx + 1 < len(seq) else []
            m = mf(kk, lam)
            n = 0
            for q, x in enumerate(m):
                k(x)
                take = 3 if q < 2 else 2
                for _ in range(take):
                    if n < len(fill):
                        k(fill[n]); n += 1
                if lam == 3 and q < 6:
                    k(zload(buf, kk, q))
            while n < len(fill):
                k(fill[n]); n += 1
            if idx < 4:
                for g in dm[2*idx:2*idx+2]:
                    for x in g:
                        k(x)
        k("s_add_u32 s72, s72, 2048")
    k("v_add_u32 v17, 512, v17")
    k("v_add_u32 v18, 256, v18")
    k("s_add_u32 s28, s28, 1")
    k("s_cmp_lt_u32 s28, 4")
    k(f"s_cbranch_scc1 {Lp}")
    k("s_lshl_b32 s29, s4, 2")
    k("s_add_u32 s29, s29, s3")
    k("s_mul_i32 s24, s29, 43")
    k("s_add_u32 s24, s24, s9")
    k("s_lshl_b32 s24, s24, 9")
    k(f"s_add_u32 s24, s24, {WS_Z1F}")
    k("s_add_u32 s44, s36, s24")
    k("s_addc_u32 s45, s37, 0")
    k("s_and_b32 s45, s45, 0xffff")
    k("s_lshl_b32 s46, s10, 9")
    k("s_mov_b32 s47, 0x00020000")
    k("s_mul_i32 s24, s29, 22")
    k("s_mul_i32 s25, s5, 3")
    k("s_add_u32 s24, s24, s25")
    k("s_lshl_b32 s24, s24, 10")
    k(f"s_add_u32 s24, s24, {WS_UF}")
    k("s_add_u32 s48, s36, s24")
    k("s_addc_u32 s49, s37, 0")
    k("s_and_b32 s49, s49, 0xffff")
    k("s_sub_u32 s50, 22, s25")
    k("s_min_u32 s50, s50, 3")
    k("s_lshl_b32 s50, s50, 10")
    k("s_mov_b32 s51, 0x00020000")
    k.srd(52, 42, 4096)
    k("v_lshlrev_b32 v19, 3, v1")
    k("v_lshrrev_b32 v20, 2, v3")
    k("v_lshlrev_b32 v20, 3, v20")
    k("v_and_b32 v21, 3, v3")
    k("v_add_u32 v20, v20, v21")
    k("v_lshlrev_b32 v20, 1, v20")
    k("s_lshr_b32 s24, s3, 1")
    k("s_lshl_b32 s24, s24, 6")
    k("s_and_b32 s25, s3, 1")
    k("s_lshl_b32 s25, s25, 3")
    k("s_add_u32 s24, s24, s25")
    k("s_lshl_b32 s25, s4, 7")
    k("s_add_u32 s24, s24, s25")
    k("s_waitcnt vmcnt(0)")
    for tt in range(6):
        k(f"buffer_load_dwordx2 v[{32+2*tt}:{33+2*tt}], v19, s[44:47], 0 offen offset:{tt*512}")
    k("buffer_load_ushort v44, v20, s[52:55], s24 offen")
    k("v_add_u32 v21, s11, v4")
    for lam in range(1, 4):
        for tt in range(7):
            a = (lam * 7 + tt) * 4
            k(f"ds_write_b128 v21, a[{a}:{a+3}] offset:{((lam-1)*7 + tt)*1024}")
    for lam in range(1, 4):
        k(f"s_xor_b32 s24, s3, {lam}")
        k(f"s_mul_i32 s24, s24, {WREG}")
        k(f"v_add_u32 v{21+lam}, s24, v4")
    for r in range(28):
        k(f"v_accvgpr_read_b32 v{48+r}, a{r}")
    k("s_waitcnt lgkmcnt(0)")
    k("s_barrier")
    for lam in range(1, 4):
        for tt in range(7):
            r = 80 + ((lam - 1) * 7 + tt) * 4
            k(f"ds_read_b128 v[{r}:{r+3}], v{21+lam} offset:{((lam-1)*7 + tt)*1024}")
        if lam == 2:
            k("s_waitcnt lgkmcnt(7)")
            for r in range(0, 28, 2):
                k(f"v_pk_add_f32 v[{48+r}:{49+r}], v[{48+r}:{49+r}], v[{80+r}:{81+r}]")
    k("s_waitcnt lgkmcnt(0)")
    for r in range(0, 28, 2):
        k(f"v_pk_add_f32 v[{108+r}:{109+r}], v[{108+r}:{109+r}], v[{136+r}:{137+r}]")
    for r in range(0, 28, 2):
        k(f"v_pk_add_f32 v[{48+r}:{49+r}], v[{48+r}:{49+r}], v[{108+r}:{109+r}]")
    k("s_waitcnt vmcnt(0)")
    k("v_lshlrev_b32 v44, 16, v44")
    for tt in range(6):
        for h in range(2):
            x = 48 + tt * 4 + 2 * h
            t = 80 + 2 * h
            k(f"v_pk_add_f32 v[{x}:{x+1}], v[{x}:{x+1}], v[72:73] neg_lo:[0,1] neg_hi:[0,1]")
            k(f"v_cvt_pk_bf16_f32 v{t}, v{x}, v{x+1}")
            k(f"v_lshlrev_b32 v{x}, 16, v{t}")
            k(f"v_and_b32 v{x+1}, 0xffff0000, v{t}")
            k(f"v_pk_add_f32 v[{x}:{x+1}], v[{x}:{x+1}], v[44:45] op_sel_hi:[1,0]")
            k(f"v_cvt_pk_bf16_f32 v{t}, v{x}, v{x+1}")
            k(f"v_lshlrev_b32 v{x}, 16, v{t}")
            k(f"v_and_b32 v{x+1}, 0xffff0000, v{t}")
            z = 32 + 2 * tt + h
            k(f"v_lshlrev_b32 v{t}, 16, v{z}")
            k(f"v_and_b32 v{t+1}, 0xffff0000, v{z}")
            k(f"v_pk_mul_f32 v[{x}:{x+1}], v[{x}:{x+1}], v[{t}:{t+1}]")
            k(f"v_cvt_pk_bf16_f32 v{88 + 2*tt + h}, v{x}, v{x+1}")
        if tt & 1:
            o = 88 + 2 * (tt - 1)
            k(f"buffer_store_dwordx4 v[{o}:{o+3}], v4, s[48:51], 0 offen offset:{(tt>>1)*1024}")
    k.label(L_end)
    k("s_endpgm")
    return k
```

```python
from gfx import Kernel
from layout import *

E_GRID = 256
PITCH = 272
EREG = 64 * PITCH
E_LDS = 4 * EREG


def kernel_E():
    k = Kernel("ke_kernel")
    L_end = "ke_end"
    k(f"s_cmp_ge_u32 s2, {E_GRID}")
    k(f"s_cbranch_scc1 {L_end}")
    k("s_load_dwordx2 s[36:37], s[0:1], 128")
    k("s_load_dwordx2 s[38:39], s[0:1], 112")
    k("v_and_b32 v1, 63, v0")
    k("v_lshrrev_b32 v2, 6, v0")
    k("v_readfirstlane_b32 s3, v2")
    k("s_and_b32 s4, s2, 7")
    k("s_lshr_b32 s5, s2, 3")
    k("s_lshr_b32 s6, s5, 3")
    k("s_lshl_b32 s4, s4, 2")
    k("s_add_u32 s4, s4, s6")
    k("s_and_b32 s5, s5, 7")
    k("v_lshlrev_b32 v4, 4, v1")
    for r in range(1, 4):
        k(f"v_add_u32 v{4+r}, {22528*r}, v4")
    k(f"s_mul_i32 s7, s4, {4*22528}")
    k(f"s_add_u32 s7, s7, {WS_UF}")
    k(f"s_mul_i32 s8, s5, {4*22528}")
    k(f"s_add_u32 s8, s8, {WS_WOF}")
    k("s_lshl_b32 s9, s3, 10")
    k("s_waitcnt lgkmcnt(0)")
    for d, o in ((12, 7), (16, 8)):
        k(f"s_add_u32 s{d}, s36, s{o}")
        k(f"s_addc_u32 s{d+1}, s37, 0")
        k(f"s_and_b32 s{d+1}, s{d+1}, 0xffff")
        k(f"s_mov_b32 s{d+2}, {4*22528}")
        k(f"s_mov_b32 s{d+3}, 0x00020000")

    FR = 32

    def loads(st):
        k(f"s_add_u32 s10, s9, {st*4096}")
        for r in range(4):
            x = FR + st * 32 + 4 * r
            k(f"buffer_load_dwordx4 v[{x}:{x+3}], v{4+r}, s[12:15], s10 offen")
            k(f"buffer_load_dwordx4 v[{x+16}:{x+19}], v{4+r}, s[16:19], s10 offen")

    def mfmas(st):
        for de in range(4):
            for rho in range(4):
                a = (de * 4 + rho) * 4
                u = FR + st * 32 + 4 * rho
                w = FR + st * 32 + 16 + 4 * de
                k(f"v_mfma_f32_16x16x32_bf16 a[{a}:{a+3}], v[{w}:{w+3}], v[{u}:{u+3}], a[{a}:{a+3}]")

    L1, L2 = k.newlabel(), k.newlabel()
    k("s_cmp_ge_u32 s3, 2")
    k(f"s_cbranch_scc1 {L1}")
    loads(5)
    k.label(L1)
    for st in range(5):
        loads(st)
    k.srd(20, 36, 2048 * 1024, WS_X1N)
    k.srd(24, 36, 12288, WS_MOD)
    k.srd(28, 38, 2048 * 1024)
    k("v_lshrrev_b32 v8, 3, v0")
    k("v_and_b32 v9, 7, v0")
    k("v_bfe_u32 v10, v8, 2, 2")
    k("v_lshlrev_b32 v10, 3, v10")
    k("v_lshrrev_b32 v11, 4, v8")
    k("v_lshl_add_u32 v10, v11, 2, v10")
    k("v_and_b32 v11, 3, v8")
    k("v_add_u32 v10, v10, v11")
    k("v_lshlrev_b32 v10, 10, v10")
    k("v_lshl_add_u32 v10, v9, 4, v10")
    k("s_lshl_b32 s32, s4, 16")
    k("s_lshl_b32 s33, s5, 7")
    k("s_add_u32 s32, s32, s33")
    k("s_add_u32 s33, s32, 32768")
    k("buffer_load_dwordx4 v[16:19], v10, s[20:23], s32 offen")
    k("buffer_load_dwordx4 v[20:23], v10, s[20:23], s33 offen")
    k("v_lshlrev_b32 v11, 5, v9")
    k("s_lshl_b32 s34, s5, 8")
    k(f"s_add_u32 s34, s34, {5*2048}")
    k("buffer_load_dwordx4 v[24:27], v11, s[24:27], s34 offen")
    k("buffer_load_dwordx4 v[28:31], v11, s[24:27], s34 offen offset:16")
    for r in range(64):
        k(f"v_accvgpr_write_b32 a{r}, 0")
    k("v_and_b32 v12, 15, v1")
    k("v_lshrrev_b32 v13, 4, v1")
    k(f"v_mul_u32_u24 v12, {PITCH}, v12")
    k("v_lshl_add_u32 v12, v13, 4, v12")
    k(f"s_mul_i32 s35, s3, {EREG}")
    k("v_add_u32 v12, s35, v12")
    k(f"v_mul_u32_u24 v13, {PITCH}, v8")
    k("v_lshl_add_u32 v13, v9, 5, v13")
    k(f"v_add_u32 v14, {2*EREG}, v13")
    for st in range(5):
        k(f"s_waitcnt vmcnt({8*(4-st)+4})")
        mfmas(st)
    k("s_cmp_ge_u32 s3, 2")
    k(f"s_cbranch_scc1 {L2}")
    mfmas(5)
    k.label(L2)
    for de in range(4):
        for rho in range(4):
            a = (de * 4 + rho) * 4
            k(f"ds_write_b128 v12, a[{a}:{a+3}] offset:{rho*16*PITCH + de*64}")
    k("s_waitcnt lgkmcnt(0)")
    k("s_barrier")
    for ps in range(2):
        for p in range(4):
            for h in range(2):
                r = 32 + ps * 32 + p * 8 + h * 4
                k(f"ds_read_b128 v[{r}:{r+3}], v{13 + (p>>1)} offset:{(p&1)*EREG + ps*32*PITCH + h*16}")
    k("s_waitcnt vmcnt(0)")
    for ps in range(2):
        k(f"s_waitcnt lgkmcnt({8*(1-ps)})")
        b = 32 + ps * 32
        for q in range(4):
            x = b + 2 * q
            k(f"v_pk_add_f32 v[{x}:{x+1}], v[{x}:{x+1}], v[{x+8}:{x+9}]")
            k(f"v_pk_add_f32 v[{x+16}:{x+17}], v[{x+16}:{x+17}], v[{x+24}:{x+25}]")
            k(f"v_pk_add_f32 v[{x}:{x+1}], v[{x}:{x+1}], v[{x+16}:{x+17}]")
            t = x + 8
            k(f"v_cvt_pk_bf16_f32 v{t}, v{x}, v{x+1}")
            k(f"v_lshlrev_b32 v{x}, 16, v{t}")
            k(f"v_and_b32 v{x+1}, 0xffff0000, v{t}")
            k(f"v_pk_mul_f32 v[{x}:{x+1}], v[{x}:{x+1}], v[{24+2*q}:{25+2*q}]")
            k(f"v_cvt_pk_bf16_f32 v{t}, v{x}, v{x+1}")
            k(f"v_lshlrev_b32 v{x}, 16, v{t}")
            k(f"v_and_b32 v{x+1}, 0xffff0000, v{t}")
            xr = 16 + ps * 4 + q
            k(f"v_lshlrev_b32 v{t}, 16, v{xr}")
            k(f"v_and_b32 v{t+1}, 0xffff0000, v{xr}")
            k(f"v_pk_add_f32 v[{x}:{x+1}], v[{x}:{x+1}], v[{t}:{t+1}]")
            k(f"v_cvt_pk_bf16_f32 v{96+ps*4+q}, v{x}, v{x+1}")
        k(f"buffer_store_dwordx4 v[{96+ps*4}:{99+ps*4}], v10, s[28:31], s{32+ps} offen")
    k.label(L_end)
    k("s_endpgm")
    return k
```

```python
WS_MOD = 0x0000000
WS_CSB = 0x0004000
CSB_B  = 5632
WS_ST2 = 0x0008000
WS_NX  = 0x0100000
KR_CP  = 4160
KR_CH  = 2 * KR_CP
WS_KR  = 0x0500000
WS_X1T = 0x0A00000
WS_X1N = 0x0C00000
WS_WPF = 0x0E00000
WS_WOF = 0x1000000
WS_Z1F = 0x1100000
WS_Z2F = 0x1400000
WS_UF  = 0x1700000
WS_END = 0x1A00000
```

```python
import sys
from gfx import Module
import ka
HEADER = open("adaLN_cond__ssm_conv_s4d__mixer_gmlp__prompt.s.ref").read().split("; Override launch")[0]
def build(path, upto=99):
    m = Module()
    m.add(ka.kernel_A(), ka.A_GRID, 256, ka.A_LDS)
    if upto >= 2:
        import kb
        m.add(kb.kernel_B(), kb.B_GRID, 256, kb.B_LDS)
    if upto >= 3:
        import kc
        m.add(kc.kernel_C(), kc.C_GRID, 256, kc.C_LDS)
    if upto >= 4:
        import kd
        m.add(kd.kernel_D(), kd.D_GRID, 256, kd.D_LDS)
    if upto >= 5:
        import ke
        m.add(ke.kernel_E(), ke.E_GRID, 256, ke.E_LDS)
    open(path, "w").write(m.text(HEADER))
if __name__ == "__main__":
    upto = int(sys.argv[1]) if len(sys.argv) > 1 else 99
    build(sys.argv[2] if len(sys.argv) > 2 else "k.s", upto)
```

```python
import struct, math

def f32(x):
    return "0x%08x" % struct.unpack("<I", struct.pack("<f", x))[0]

LOG2E = math.log2(math.e)
_l = struct.unpack("<I", struct.pack("<f", LOG2E))[0] & 0xFFFFFF00
LOG2E_HI = struct.unpack("<f", struct.pack("<I", _l))[0]
LOG2E_LO = LOG2E - LOG2E_HI

def exp_precise(k, dst, x, t0, t1, sHi, sLo):
    k(f"v_mul_f32 {t0}, {sHi}, {x}")
    k(f"v_mul_f32 {t1}, {sLo}, {x}")
    k(f"v_exp_f32 {t0}, {t0}")
    k(f"v_exp_f32 {t1}, {t1}")
    k(f"v_mul_f32 {dst}, {t0}, {t1}")

def round_bf16(k, dst, x):
    k(f"v_cvt_pk_bf16_f32 {dst}, {x}, {x}")
    k(f"v_and_b32 {dst}, 0xffff0000, {dst}")
```

```python
import re

REG_RE = re.compile(r"^(-|abs\()?\s*([vas])(\d+)\)?$")
RNG_RE = re.compile(r"^(-|abs\()?\s*([vas])\[(\d+):(\d+)\]\)?$")

TRANS = ("v_exp_f32", "v_log_f32", "v_rcp_f32", "v_rsq_f32", "v_sqrt_f32", "v_sin_f32", "v_cos_f32",
         "v_rcp_iflag_f32", "v_exp_f16", "v_rcp_f16")


def parse_regs(op):
    op = op.strip()
    if op.startswith("|") and op.endswith("|"):
        op = op[1:-1]
    if op.startswith("-|") and op.endswith("|"):
        op = op[2:-1]
    m = REG_RE.match(op)
    if m:
        return [(m.group(2), int(m.group(3)))]
    m = RNG_RE.match(op)
    if m:
        return [(m.group(2), i) for i in range(int(m.group(3)), int(m.group(4)) + 1)]
    if op == "vcc":
        return [("s", 106), ("s", 107)]
    if op == "vcc_lo":
        return [("s", 106)]
    if op == "vcc_hi":
        return [("s", 107)]
    if op == "exec":
        return [("s", 126), ("s", 127)]
    if op == "m0":
        return [("s", 124)]
    return []


def split_ops(s):
    out, depth, cur = [], 0, ""
    for ch in s:
        if ch in "[(":
            depth += 1
        if ch in "])":
            depth -= 1
        if ch == "," and depth == 0:
            out.append(cur.strip())
            cur = ""
        else:
            cur += ch
    if cur.strip():
        out.append(cur.strip())
    return out


class Ins:
    __slots__ = ("text", "mn", "ops", "mods", "rd", "wr", "kind", "label", "target", "srcc", "srcab", "passes",
                 "dpp", "states", "store_data", "sdwa_dst")

    def __init__(self, text):
        self.text = text
        self.label = None
        self.target = None
        self.rd, self.wr = [], []
        self.srcc, self.srcab = [], []
        self.passes = 0
        self.dpp = False
        self.states = 1
        self.store_data = []
        self.sdwa_dst = False
        t = text.split(";")[0].strip()
        if t.endswith(":"):
            self.label = t[:-1]
            self.kind = "label"
            self.mn = ""
            self.states = 0
            return
        if t.startswith(".") or not t:
            self.kind = "dir"
            self.mn = ""
            self.states = 0
            return
        parts = t.split(None, 1)
        mn = parts[0]
        self.mn = mn
        rest = parts[1] if len(parts) > 1 else ""
        ops = split_ops(rest)
        mods = ""
        if ops:
            last = ops[-1]
            sp = last.split(None, 1)
            if len(sp) > 1 and not last.startswith("hwreg") and not mn.startswith("s_waitcnt"):
                ops[-1] = sp[0]
                mods = sp[1]
        self.ops, self.mods = ops, mods
        R = lambda i: parse_regs(ops[i]) if i < len(ops) else []
        allr = lambda a: [r for i in range(a, len(ops)) for r in R(i)]
        if mn.startswith("v_mfma") or mn.startswith("v_smfmac"):
            self.kind = "mfma"
            self.wr = R(0)
            self.srcab = R(1) + R(2)
            self.srcc = R(3)
            self.rd = self.srcab + self.srcc
            if "32x32x16" in mn or "32x32x8" in mn:
                self.passes = 8
            elif "16x16x32" in mn or "16x16x16" in mn:
                self.passes = 4
            elif "16x16x4_f32" in mn:
                self.passes = 8
            elif "32x32x2_f32" in mn:
                self.passes = 16
            else:
                raise ValueError("unknown mfma " + mn)
        elif mn.startswith("v_"):
            self.kind = "valu"
            base = mn
            for suf in ("_e32", "_e64", "_dpp", "_sdwa"):
                if base.endswith(suf):
                    base = base[: -len(suf)]
            if "_dpp" in mn or "row_" in mods or "quad_perm" in mods or "wave_" in mods:
                self.dpp = True
            if "dst_sel:WORD" in mods or "dst_sel:BYTE" in mods:
                self.sdwa_dst = True
            if base.startswith("v_cmpx"):
                self.wr = R(0) + parse_regs("exec")
                self.rd = allr(1)
            elif base.startswith("v_cmp"):
                self.wr = R(0)
                self.rd = allr(1)
            elif base in ("v_add_co_u32", "v_sub_co_u32", "v_subrev_co_u32", "v_addc_co_u32", "v_subb_co_u32",
                          "v_mad_u64_u32", "v_div_scale_f32"):
                self.wr = R(0) + R(1)
                self.rd = allr(2)
            elif base.startswith("v_permlane"):
                self.wr = R(0) + R(1)
                self.rd = R(0) + R(1)
            elif base in ("v_fmac_f32", "v_dot2c_f32_bf16", "v_dot2c_f32_f16", "v_pk_fmac_f16", "v_writelane_b32"):
                self.wr = R(0)
                self.rd = allr(0)
            elif base == "v_nop":
                pass
            else:
                self.wr = R(0)
                self.rd = allr(1)
                if self.dpp or self.sdwa_dst:
                    self.rd = self.rd + R(0)
                if base == "v_cndmask_b32" and len(ops) == 3:
                    self.rd += parse_regs("vcc")
            self.mn = base
        elif mn.startswith("buffer_") or mn.startswith("global_") or mn.startswith("flat_"):
            self.kind = "vmem"
            islds = " lds" in (" " + mods) or "_lds_" in mn
            if mn in ("buffer_wbl2", "buffer_inv"):
                pass
            elif islds:
                self.rd = allr(0) + parse_regs("m0")
            elif "store" in mn:
                self.rd = allr(0)
                data = R(0) if mn.startswith("buffer_") else R(1)
                if len(data) >= 3:
                    self.store_data = data
            elif "atomic" in mn:
                self.rd = allr(0)
                if "sc0" in mods:
                    self.wr = R(0)
            else:
                self.wr = R(0)
                self.rd = allr(1)
                if "d16" in mn:
                    self.rd += R(0)
        elif mn.startswith("ds_"):
            self.kind = "ds"
            if mn.startswith("ds_write") or mn.startswith("ds_add") or mn.startswith("ds_max") or mn.startswith("ds_min"):
                if "_rtn" in mn:
                    self.wr = R(0)
                    self.rd = allr(1)
                else:
                    self.rd = allr(0)
            else:
                self.wr = R(0)
                self.rd = allr(1)
                if "d16" in mn:
                    self.rd += R(0)
        elif mn.startswith("s_"):
            self.kind = "salu"
            if mn == "s_nop":
                self.states = int(ops[0], 0) + 1
            elif mn.startswith("s_cbranch") or mn == "s_branch":
                self.kind = "branch"
                self.target = ops[0]
                if "vcc" in mn:
                    self.rd = parse_regs("vcc")
                if "exec" in mn:
                    self.rd = parse_regs("exec")
            elif mn == "s_endpgm":
                self.kind = "end"
            elif mn.startswith("s_cmp") or mn.startswith("s_bitcmp") or mn in ("s_waitcnt", "s_barrier", "s_setprio", "s_sleep"):
                self.rd = allr(0)
            elif mn.startswith("s_load") or mn.startswith("s_buffer_load") or mn in ("s_memtime", "s_memrealtime"):
                self.kind = "smem"
                self.wr = R(0)
                self.rd = allr(1)
            elif "saveexec" in mn:
                self.wr = R(0) + parse_regs("exec")
                self.rd = allr(1) + parse_regs("exec")
            else:
                self.wr = R(0)
                self.rd = allr(1)
                if mn in ("s_addk_i32", "s_mulk_i32"):
                    self.rd += R(0)
        else:
            raise ValueError("cannot parse: " + text)


XDL_RAW = {2: 5, 4: 8, 8: 12, 16: 20}
XDL_OVL = {2: 4, 4: 6, 8: 10, 16: 18}
XDL_WAR = {2: 1, 4: 3, 8: 7, 16: 15}


def va(regs):
    return set(r for r in regs if r[0] in "va")


def sg(regs):
    return set(r for r in regs if r[0] == "s")


def required(p, c):
    need = 0
    pw_v, pw_s = va(p.wr), sg(p.wr)
    if p.kind == "valu":
        if c.kind == "mfma" and pw_v & va(c.rd):
            need = max(need, 2)
        if c.kind == "valu":
            if c.dpp and pw_v & va(c.rd):
                need = max(need, 2)
            if c.mn.startswith("v_permlane") and pw_v & va(c.rd):
                need = max(need, 2)
            if c.mn in ("v_readlane_b32", "v_readfirstlane_b32") and pw_v & va(c.rd):
                need = max(need, 1)
            if p.mn in TRANS and c.mn not in TRANS and pw_v & va(c.rd):
                need = max(need, 1)
            if p.mn in TRANS and pw_v & va(c.rd):
                need = max(need, 1)
            if p.sdwa_dst and pw_v & (va(c.rd) | va(c.wr)):
                need = max(need, 1)
            if pw_s & sg(c.rd):
                need = max(need, 4 if c.mn in ("v_readlane_b32", "v_writelane_b32", "v_div_fmas_f32") else 2)
            if (("s", 126) in pw_s):
                if c.dpp:
                    need = max(need, 5)
                if c.mn.startswith("v_permlane") or c.mn in ("v_readlane_b32", "v_readfirstlane_b32", "v_writelane_b32"):
                    need = max(need, 4)
            if p.mn.startswith("v_dot") and pw_v & (va(c.rd) | va(c.wr)):
                same = (c.mn == p.mn)
                if same and not (pw_v & va(parse_regs(c.ops[1]) + parse_regs(c.ops[2]))):
                    pass
                else:
                    need = max(need, 3)
        if p.mn.startswith("v_dot") and c.kind in ("mfma", "vmem", "ds") and pw_v & (va(c.rd) | va(c.wr)):
            need = max(need, 3)
        if p.mn in TRANS and c.kind in ("vmem", "ds", "mfma") and pw_v & va(c.rd):
            need = max(need, 2 if c.kind == "mfma" else 1)
        if c.kind == "vmem" and pw_s & sg(c.rd):
            need = max(need, 5)
        if c.kind in ("salu", "smem", "branch") and pw_s & sg(c.rd):
            need = max(need, 5 if c.kind == "branch" else 2)
        if c.kind == "mfma" and (("s", 126) in pw_s):
            need = max(need, 4)
    if p.kind == "salu":
        if ("s", 124) in pw_s and c.kind in ("vmem", "ds") and ("s", 124) in sg(c.rd):
            need = max(need, 1)
    if p.kind == "mfma":
        d = va(p.wr)
        if c.kind == "mfma":
            if d & va(c.srcab):
                need = max(need, XDL_RAW[p.passes])
            cc = va(c.srcc)
            if d & cc:
                if c.srcc == p.wr and c.passes == p.passes:
                    need = max(need, 2 if p.passes == 2 else 0)
                else:
                    need = max(need, XDL_OVL[p.passes])
            elif d & va(c.wr):
                need = max(need, XDL_OVL[p.passes])
        elif c.kind in ("valu", "vmem", "ds"):
            if d & (va(c.rd) | va(c.wr)):
                need = max(need, XDL_RAW[p.passes])
            if c.kind == "valu" and va(p.srcc) & va(c.wr):
                need = max(need, XDL_WAR[p.passes])
    if p.kind == "vmem" and p.store_data:
        if set(p.store_data) & va(c.wr):
            need = max(need, 2 if c.kind == "valu" else 1)
    if p.kind == "ds" and p.mn in ("ds_write_b128", "ds_write_b96", "ds_write2_b64"):
        if c.kind == "valu" and va(p.rd) & va(c.wr):
            need = max(need, 1)
    return need


MAXD = 20


PROF = False
WS_PROF = 0x2000000


class Kernel:
    def __init__(self, name, kid=0, pv=None):
        self.name = name
        self.ins = []
        self.nlab = 0
        self.kid = kid
        self.pv = pv

    def stamp(self, idx, real=False):
        if not PROF:
            return
        self("s_memrealtime s[100:101]" if real else "s_memtime s[100:101]")
        self("s_waitcnt lgkmcnt(0)")
        self(f"v_writelane_b32 v{self.pv}, s100, {idx}")

    def start(self):
        if PROF:
            self(f"v_mov_b32 v{self.pv}, 0")
        self.stamp(0, True)
        self.stamp(1)
        if PROF:
            self(f"v_readfirstlane_b32 s101, v0")
            self(f"v_writelane_b32 v{self.pv}, s101, 13")

    def code_prefetch(self, vt, st, nwaves):
        self(f"s_getpc_b64 s[{st}:{st+1}]")
        self.label(f"{self.name}_pc")
        self(f"s_lshr_b32 s{st+2}, s2, 3")
        self(f"s_mul_i32 s{st+2}, s{st+2}, {nwaves*1024}")
        self(f"v_lshl_add_u32 v{vt}, v0, 4, s{st+2}")
        self(f"s_mov_b32 s{st+3}, all_code_end-{self.name}_pc-16")
        self(f"v_cmp_gt_u32 vcc, s{st+3}, v{vt}")
        self(f"v_min_u32 v{vt}, s{st+3}, v{vt}")
        self(f"s_cbranch_vccz {self.name}_npf")
        self(f"v_and_b32 v{vt}, -4, v{vt}")
        self(f"v_mov_b32 v{vt+1}, s{st+1}")
        self(f"v_add_co_u32 v{vt}, vcc, s{st}, v{vt}")
        self(f"v_addc_co_u32 v{vt+1}, vcc, 0, v{vt+1}, vcc")
        self(f"global_load_dwordx4 v[{vt+2}:{vt+5}], v[{vt}:{vt+1}], off")
        self.label(f"{self.name}_npf")

    def endpgm(self):
        if PROF:
            self("s_mov_b64 exec, -1")
            self("s_waitcnt vmcnt(0)")
            self.stamp(14)
            self.stamp(15, True)
            self.srd(96, 36, 0x1000000, WS_PROF)
            self(f"v_readlane_b32 s100, v{self.pv}, 13")
            self("s_lshr_b32 s100, s100, 6")
            self(f"s_lshl_b32 s101, s2, 3")
            self("s_add_u32 s100, s100, s101")
            self(f"s_add_u32 s100, s100, {self.kid*8192}")
            self("s_lshl_b32 s100, s100, 6")
            self("v_mbcnt_lo_u32_b32 v0, -1, 0")
            self("v_mbcnt_hi_u32_b32 v0, -1, v0")
            self("v_lshlrev_b32 v0, 2, v0")
            self("s_mov_b64 exec, 0xffff")
            self(f"buffer_store_dword v{self.pv}, v0, s[96:99], s100 offen")
        self("s_endpgm")

    def __call__(self, s):
        for l in s.strip("\n").split("\n"):
            l = l.strip()
            if l and not l.startswith(";"):
                self.ins.append(Ins(l))

    def label(self, name):
        self.ins.append(Ins(name + ":"))

    def newlabel(self, base="L"):
        self.nlab += 1
        return f"{self.name}_{base}{self.nlab}"

    def srd(self, d, base, nbytes, off=0):
        if off:
            self(f"s_add_u32 s{d}, s{base}, {off}")
            self(f"s_addc_u32 s{d+1}, s{base+1}, 0")
            self(f"s_and_b32 s{d+1}, s{d+1}, 0xffff")
        else:
            self(f"s_mov_b32 s{d}, s{base}")
            self(f"s_and_b32 s{d+1}, s{base+1}, 0xffff")
        self(f"s_mov_b32 s{d+2}, {nbytes}")
        self(f"s_mov_b32 s{d+3}, 0x00020000")

    def fix_hazards(self):
        total = 0
        while True:
            ins = self.ins
            labpos = {x.label: i for i, x in enumerate(ins) if x.label}
            srcs = {}
            for i, x in enumerate(ins):
                if x.kind == "branch":
                    srcs.setdefault(labpos[x.target], []).append(i)
            inserted = False
            for i, c in enumerate(ins):
                if c.kind in ("label", "dir"):
                    continue
                worst = 0
                stack = [(i - 1, 0)]
                seen = set()
                while stack:
                    j, dist = stack.pop()
                    while j >= 0 and dist < MAXD:
                        if (j, dist) in seen:
                            break
                        seen.add((j, dist))
                        p = ins[j]
                        if p.kind == "label":
                            for sidx in srcs.get(j, []):
                                stack.append((sidx, dist))
                            j -= 1
                            continue
                        if p.kind == "dir":
                            j -= 1
                            continue
                        if p.kind == "end" or (p.kind == "branch" and p.mn == "s_branch" and False):
                            break
                        need = required(p, c)
                        if need > dist:
                            worst = max(worst, need - dist)
                        dist += p.states
                        if j - 1 >= 0 and ins[j].kind == "label":
                            pass
                        j -= 1
                if worst:
                    n = worst
                    pads = []
                    while n > 0:
                        k = min(n, 16)
                        pads.append(Ins(f"s_nop {k-1}"))
                        n -= k
                    self.ins[i:i] = pads
                    total += worst
                    inserted = True
                    break
            if not inserted:
                break
        return total

    def fix_hazards_fast(self):
        total = 0
        i = 0
        while i < len(self.ins):
            ins = self.ins
            c = ins[i]
            if c.kind in ("label", "dir"):
                i += 1
                continue
            worst = self._worst(i)
            if worst:
                n = worst
                pads = []
                while n > 0:
                    k = min(n, 16)
                    pads.append(Ins(f"s_nop {k-1}"))
                    n -= k
                self.ins[i:i] = pads
                self._lab = None
                total += worst
                i += len(pads)
            i += 1
        return total

    _lab = None

    def _worst(self, i):
        ins = self.ins
        if self._lab is None:
            labpos = {x.label: k for k, x in enumerate(ins) if x.label}
            srcs = {}
            for k, x in enumerate(ins):
                if x.kind == "branch":
                    srcs.setdefault(labpos[x.target], []).append(k)
            self._lab = srcs
        srcs = self._lab
        c = ins[i]
        worst = 0
        stack = [(i - 1, 0, True)]
        seen = set()
        while stack:
            j, dist, fall = stack.pop()
            while j >= 0 and dist < MAXD:
                if (j, dist) in seen:
                    break
                seen.add((j, dist))
                p = ins[j]
                if p.kind == "label":
                    for sidx in srcs.get(j, []):
                        stack.append((sidx, dist, False))
                    j -= 1
                    fall = True
                    continue
                if p.kind == "dir":
                    j -= 1
                    continue
                if p.kind == "end":
                    break
                if p.kind == "branch" and p.mn == "s_branch" and fall:
                    break
                need = required(p, c)
                if need > dist:
                    worst = max(worst, need - dist)
                dist += p.states
                j -= 1
                fall = True
        return worst

    def maxregs(self):
        mv = ma = ms = -1
        for x in self.ins:
            for (k, i) in x.rd + x.wr:
                if k == "v":
                    mv = max(mv, i)
                elif k == "a":
                    ma = max(ma, i)
                elif k == "s" and i < 102:
                    ms = max(ms, i)
        return mv + 1, ma + 1, ms + 1


class Module:
    def __init__(self):
        self.kernels = []
        self.launches = []

    def add(self, k, grid, block, lds, min_vgpr=0):
        self.kernels.append((k, min_vgpr))
        self.launches.append(
            f"; @launch kernel={k.name} grid=({grid},1,1) block=({block},1,1) lds={lds}")

    def relaunch(self, k, grid, block, lds):
        self.launches.append(
            f"; @launch kernel={k.name} grid=({grid},1,1) block=({block},1,1) lds={lds}")

    def text(self, header=""):
        out = []
        if header:
            out.append(header.rstrip("\n"))
        out += self.launches
        out.append('.amdgcn_target "amdgcn-amd-amdhsa--gfx950"')
        out.append(".text")
        info = []
        for (k, minv) in self.kernels:
            n = k.fix_hazards_fast()
            n += k.fix_hazards_fast()
            out += [f".globl {k.name}", ".p2align 8", f".type {k.name},@function", f"{k.name}:"]
            for x in k.ins:
                out.append(x.text if x.kind == "label" else "    " + x.text)
            nv, na, ns = k.maxregs()
            nv = max(nv, minv, 4)
            acc = (nv + 3) // 4 * 4
            tot = acc + na if na > 0 else nv
            info.append((k.name, tot, max(ns, 8), min(acc, 256)))
            nsel = 0
            for x in k.ins:
                if x.kind == "valu" and x.mn.startswith("v_pk_") and x.mn.endswith("_f32"):
                    m_ = re.search(r"op_sel:\[([01,]+)\]", x.mods)
                    if m_:
                        for i_, b_ in enumerate(m_.group(1).split(",")):
                            if b_ == "1" and x.ops[1 + i_].startswith("v"):
                                nsel += 1
            if nsel:
                print(f"   WARNING {k.name}: {nsel} pk ops with op_sel=1 on a VGPR source")
            print(f"{k.name}: {len(k.ins)} instrs, vgpr {nv} agpr {na} sgpr {ns}, nop states inserted {n}")
        out.append("all_code_end:")
        out.append('.section .rodata,"a"')
        for (name, tot, ns, acc) in info:
            out += [".p2align 6", f".amdhsa_kernel {name}",
                    f"  .amdhsa_next_free_vgpr {tot}",
                    f"  .amdhsa_next_free_sgpr {ns}",
                    f"  .amdhsa_accum_offset {acc}",
                    "  .amdhsa_group_segment_fixed_size 0",
                    "  .amdhsa_kernarg_size 136",
                    "  .amdhsa_user_sgpr_count 2",
                    "  .amdhsa_user_sgpr_kernarg_segment_ptr 1",
                    "  .amdhsa_system_sgpr_workgroup_id_x 1",
                    "  .amdhsa_float_denorm_mode_32 3",
                    ".end_amdhsa_kernel"]
        return "\n".join(out) + "\n"
```

```python
from gfx import Kernel
from layout import *
from common import *
import os

AB_GRID = 256
AB_BLOCK = 512
CNT = 0
PAR = 64
KB = 128
HB = KB + 2 * KR_CH
XB = HB + 9216
RB = XB + 8192
REC = RB
T16 = RB + 12288
PT = RB + 16384
PTS = 3136
SJ = PT + 8 * PTS
AB_LDS = SJ
PF1 = int(os.environ.get('PF1', 32))
C_K1, C_K2, C_A, C_R, C_W, C_L, C_G, C_P, C_W2, C_X = 0, 4, 8, 12, 20, 24, 28, 32, 36, 40
LNP = SJ
SPIN = 0x100000
NBAR = 1
RAW = 96
OUTR = 192
SBR, CBR = 176, 184
XCOL_FLAGS = os.environ.get("XCOL_FLAGS", "")


def lds_signal(k, addr_v, one_v):
    k("s_waitcnt lgkmcnt(0)")
    k("s_mov_b64 exec, 1")
    k(f"ds_add_u32 v{addr_v}, v{one_v}")
    k("s_mov_b64 exec, -1")


def lds_wait(k, addr_v, tmp_v, target, st="s90"):
    L = k.newlabel("w")
    k.label(L)
    k(f"ds_read_b32 v{tmp_v}, v{addr_v}")
    k("s_waitcnt lgkmcnt(0)")
    k(f"v_readfirstlane_b32 {st}, v{tmp_v}")
    k(f"s_cmp_lt_u32 {st}, {target}")
    k(f"s_cbranch_scc1 {L}")


def gpoll(k, name, b, sleep=2):
    k("s_mov_b32 s56, 0")
    k(f"s_mov_b32 s91, {b*16384}")
    k.label(name)
    k(f"s_sleep {sleep}")
    k("buffer_load_dword v87, v89, s[40:43], s91 offen sc1")
    k("s_add_u32 s56, s56, 1")
    k("s_waitcnt vmcnt(0)")
    k("v_cmp_gt_u32 vcc, 16, v87")
    k(f"s_cbranch_vccz {name}_ok")
    k(f"s_cmp_lt_u32 s56, {SPIN}")
    k(f"s_cbranch_scc1 {name}")
    k.label(name + "_ok")


def kernel_AB():
    k = Kernel("kab_kernel", 0, 250)
    L_end = "kab_end"
    k(f"s_cmp_ge_u32 s2, {AB_GRID}")
    k("s_cbranch_scc1 kab_oob")
    k.start()
    k("s_load_dwordx16 s[64:79], s[0:1], 0")
    k("s_load_dwordx8 s[80:87], s[0:1], 64")
    k("s_load_dwordx4 s[92:95], s[0:1], 96")
    k("s_load_dwordx4 s[32:35], s[0:1], 120")
    if not os.environ.get("NOCPF"):
        k.code_prefetch(240, 12, 8)
    k("v_and_b32 v1, 63, v0")
    k("v_lshrrev_b32 v2, 6, v0")
    k("v_readfirstlane_b32 s11, v2")
    k("s_and_b32 s4, s2, 7")
    k("s_lshl_b32 s4, s4, 5")
    k("s_lshr_b32 s5, s2, 3")
    k("s_add_u32 s4, s4, s5")
    k("s_and_b32 s3, s11, 3")
    k("s_lshr_b32 s88, s4, 1")
    k("s_lshl_b32 s88, s88, 2")
    k("s_and_b32 s89, s4, 1")
    k("s_add_u32 s88, s88, s89")
    k("v_lshlrev_b32 v3, 4, v1")
    k("v_mov_b32 v248, 1")
    k("s_cmp_ge_u32 s11, 4")
    k("s_cbranch_scc1 kab_h")

    k("v_and_b32 v4, 31, v0")
    k("v_bfe_u32 v5, v0, 5, 1")
    k("v_lshl_add_u32 v4, v2, 5, v4")
    k("v_lshlrev_b32 v4, 1, v4")
    k("v_lshl_add_u32 v4, v5, 9, v4")
    k("s_lshl_b32 s54, s88, 8")
    k("s_lshl_b32 s55, s88, 1")
    k("v_lshlrev_b32 v29, 2, v5")
    k("s_mul_i32 s5, s2, 3")
    k("s_add_u32 s5, s5, s3")
    k(f"s_mul_hi_u32 s6, s5, {(2**32 + 47)//48}")
    k("s_mul_i32 s7, s6, 48")
    k("s_sub_u32 s7, s5, s7")
    k("v_lshrrev_b32 v8, 3, v1")
    k("v_and_b32 v113, 7, v1")
    k(f"v_mul_u32_u24 v112, {4*6144}, v8")
    k("v_lshl_add_u32 v112, v113, 4, v112")
    k("v_lshlrev_b32 v9, 3, v8")
    k(f"s_mul_i32 s8, s6, {32*6144}")
    k("s_lshl_b32 s9, s7, 7")
    k("s_add_u32 s8, s8, s9")
    k("s_lshl_b32 s9, s6, 6")
    k("v_mov_b32 v110, 0")
    k("s_waitcnt lgkmcnt(0)")
    k("s_barrier")
    k.stamp(6)
    k("s_mov_b64 s[36:37], s[34:35]")
    k.srd(60, 32, 256)
    k("s_lshr_b32 s38, s2, 3")
    k("s_lshl_b32 s38, s38, 2")
    k("s_add_u32 s38, s38, s3")
    k("s_cmp_lg_u32 s38, 67")
    k("s_cbranch_scc1 kab_nz")
    k.srd(40, 36, 65536, WS_BAR)
    k("v_lshlrev_b32 v8, 7, v1")
    k("s_and_b32 s39, s2, 7")
    k("s_lshl_b32 s39, s39, 11")
    k("s_mov_b64 exec, 0xffff")
    k("buffer_store_dword v110, v8, s[40:43], s39 offen sc1")
    k("s_mov_b64 exec, -1")
    k.srd(40, 36, 8192, WS_ST1)
    k("s_lshr_b32 s39, s39, 1")
    for r in range(116, 120):
        k(f"v_mov_b32 v{r}, 0")
    k("buffer_store_dwordx4 v[116:119], v3, s[40:43], s39 offen sc1")
    k("s_lshr_b32 s39, s39, 5")
    k("s_waitcnt vmcnt(0)")
    k("s_mov_b64 exec, 1")
    k("buffer_store_dword v248, v110, s[60:63], s39 offen sc1")
    k("s_mov_b64 exec, -1")
    k.label("kab_nz")
    k.srd(20, 92, 1024)
    k.srd(24, 94, 512 * 6144)
    k("s_cmp_eq_u32 s3, 3")
    k("s_cselect_b32 s22, 0, s22")
    k("s_cselect_b32 s26, 0, s26")
    k("buffer_load_dwordx2 v[114:115], v9, s[20:23], s9 offen")
    for i in range(4):
        k(f"buffer_load_dwordx4 v[{128+4*i}:{131+4*i}], v112, s[24:27], s8 offen nt")
        if i < 3:
            k("s_add_u32 s8, s8, 6144")
    k.srd(12, 74, 1024)
    k("buffer_load_ushort v10, v29, s[12:15], s55 offen")
    k.srd(16, 66, 131072)
    k("buffer_load_ushort v11, v4, s[16:19], s54 offen nt")
    k.srd(20, 68, 131072)
    k("buffer_load_ushort v12, v4, s[20:23], s54 offen nt")
    k.srd(24, 70, 131072)
    k("buffer_load_ushort v13, v4, s[24:27], s54 offen nt")
    k.srd(28, 72, 131072)
    k("buffer_load_ushort v14, v4, s[28:31], s54 offen nt")
    k.srd(12, 76, 1024)
    k("buffer_load_ushort v111, v29, s[12:15], s55 offen")
    k("v_and_b32 v6, 15, v1")
    k("v_lshrrev_b32 v7, 4, v1")
    k("v_lshrrev_b32 v8, 3, v6")
    k("v_and_b32 v9, 7, v6")
    k("v_lshl_add_u32 v8, v8, 7, v9")
    k("v_add_u32 v8, 1, v8")
    k("v_cvt_f32_u32 v20, v8")
    k("v_lshrrev_b32 v8, 2, v6")
    k("v_and_b32 v15, 3, v6")
    k("v_lshlrev_b32 v15, 1, v15")
    k("v_lshl_add_u32 v8, v8, 7, v15")
    k("v_add_u32 v8, 258, v8")
    k("v_lshrrev_b32 v15, 1, v9")
    k("v_and_b32 v16, 1, v6")
    k("v_lshlrev_b32 v16, 2, v16")
    k("v_lshl_add_u32 v15, v15, 7, v16")
    k("v_add_u32 v15, 516, v15")
    k("v_cmp_gt_u32 vcc, 8, v6")
    k("v_cndmask_b32 v8, v15, v8, vcc")
    k("v_cvt_f32_u32 v42, v8")
    k("v_lshlrev_b32 v8, 3, v6")
    k("v_cvt_f32_u32 v22, v8")
    k(f"v_mul_u32_u24 v24, {PTS}, v2")
    k(f"v_add_u32 v24, {PT}, v24")
    k("v_lshrrev_b32 v8, 1, v7")
    k("v_and_b32 v9, 1, v7")
    k("v_lshlrev_b32 v15, 7, v8")
    k("v_lshl_add_u32 v15, v9, 2, v15")
    k("v_lshl_add_u32 v15, v6, 3, v15")
    k("v_add_u32 v15, 4, v15")
    k("v_lshl_add_u32 v25, v15, 2, v24")
    k("v_lshl_add_u32 v15, v8, 4, v6")
    k("v_add_u32 v15, 516, v15")
    k("v_add_u32 v16, 660, v6")
    k("v_cmp_eq_u32 vcc, 1, v9")
    k("v_cndmask_b32 v15, v16, v15, vcc")
    k("v_lshl_add_u32 v28, v15, 2, v24")
    k("v_lshlrev_b32 v8, 6, v7")
    k("v_add_u32 v8, 260, v8")
    k("v_lshl_add_u32 v9, v6, 2, v8")
    k("v_lshl_add_u32 v15, v6, 1, v8")
    k("v_cmp_gt_u32 vcc, 2, v7")
    k("v_cndmask_b32 v8, v15, v9, vcc")
    k("v_lshl_add_u32 v26, v8, 2, v24")
    k("v_mov_b32 v9, 128")
    k("v_cndmask_b32 v9, v9, 8, vcc")
    k("v_add_u32 v27, v26, v9")
    k("v_add_u32 v8, 2, v7")
    k("v_lshl_add_u32 v9, v7, 1, 1")
    k("v_cndmask_b32 v8, v9, v8, vcc")
    k("v_lshl_add_u32 v8, v8, 4, v6")
    k("v_add_u32 v8, 516, v8")
    k("v_lshl_add_u32 v17, v8, 2, v24")
    k("v_lshl_add_u32 v8, v7, 5, v6")
    k("v_add_u32 v8, 516, v8")
    k("v_cndmask_b32 v8, v8, v16, vcc")
    k("v_lshl_add_u32 v18, v8, 2, v24")
    k(f"v_mul_u32_u24 v19, {4*PTS}, v5")
    k("v_add3_u32 v19, v19, v24, 12")
    k("v_lshlrev_b32 v8, 3, v0")
    k("v_sub_u32 v8, 2047, v8")
    k("s_movk_i32 s44, 0x80")
    k(f"s_mov_b32 s45, {17024}")
    for e in range(9):
        g = 30 + e
        if e:
            k("v_subrev_u32 v8, 1, v8")
        if e == 8:
            k("v_max_i32 v8, 0, v8")
        k("v_cvt_f32_u32 v9, v8")
        k("v_cvt_pk_bf16_f32 v9, v9, v9")
        k("v_lshrrev_b32 v9, 16, v9")
        k("v_subrev_u32 v9, s45, v9")
        k("v_med3_i32 v9, v9, v8, s44")
        k(f"v_lshlrev_b32 v{g}, 1, v9")
    k(f"s_mov_b32 s46, {f32(LOG2E_HI)}")
    k(f"s_mov_b32 s47, {f32(LOG2E_LO)}")
    k(f"s_mov_b32 s48, {f32(-LOG2E)}")
    k(f"s_mov_b32 s49, {f32(1.0/(2*math.pi))}")
    k(f"s_mov_b32 s58, {f32(1024.0)}")
    k("v_mul_u32_u24 v8, 3072, v2")
    k(f"v_add_u32 v8, {REC}, v8")
    k("v_mad_u32_u24 v40, v1, 48, v8")
    k("v_mul_u32_u24 v41, 384, v7")
    k("v_add_u32 v41, v41, v8")
    k.stamp(7)
    k.srd(40, 36, 16 * 12288, WS_MP)
    k("s_cmp_eq_u32 s3, 3")
    k("s_cbranch_scc1 kab_nomod")
    k("s_waitcnt vmcnt(10)")
    for j in range(2):
        k(f"v_lshlrev_b32 v{44+2*j}, 16, v{114+j}")
        k(f"v_and_b32 v{45+2*j}, 0xffff0000, v{114+j}")
    for j in range(4):
        k(f"v_mul_f32 v{48+j}, s48, v{44+j}")
    for j in range(4):
        k(f"v_exp_f32 v{48+j}, v{48+j}")
    for j in range(4):
        k(f"v_add_f32 v{48+j}, 1.0, v{48+j}")
    for j in range(4):
        k(f"v_rcp_f32 v{48+j}, v{48+j}")
    for j in range(4):
        k(f"v_mul_f32 v{48+j}, v{44+j}, v{48+j}")
    for j in range(2):
        k(f"v_cvt_pk_bf16_f32 v{114+j}, v{48+2*j}, v{49+2*j}")
    for j in range(2):
        k(f"v_lshlrev_b32 v{44+4*j}, 16, v{114+j}")
        k(f"v_and_b32 v{46+4*j}, 0xffff0000, v{114+j}")
    for i in range(4):
        sp = 44 + 2 * i
        k(f"s_waitcnt vmcnt({9-i})")
        for j in range(4):
            w = 128 + 4 * i + j
            k(f"v_lshlrev_b32 v{60+2*j}, 16, v{w}")
            k(f"v_and_b32 v{61+2*j}, 0xffff0000, v{w}")
        for j in range(4):
            a_ = 52 + 2 * j
            if i == 0:
                k(f"v_pk_mul_f32 v[{a_}:{a_+1}], v[{60+2*j}:{61+2*j}], v[{sp}:{sp+1}] op_sel_hi:[1,0]")
            else:
                sel = "op_sel:[0,0,0] op_sel_hi:[1,0,1]"
                k(f"v_pk_fma_f32 v[{a_}:{a_+1}], v[{60+2*j}:{61+2*j}], v[{sp}:{sp+1}], v[{a_}:{a_+1}] {sel}")
    for q in range(4):
        k(f"v_add_f32_dpp v{60+q}, v{52+q}, v{52+q} row_ror:8 row_mask:0xf bank_mask:0x3")
        k(f"v_add_f32_dpp v{60+q}, v{56+q}, v{56+q} row_ror:8 row_mask:0xf bank_mask:0xc")
    k("v_bfe_u32 v64, v1, 3, 1")
    k("v_lshlrev_b32 v65, 5, v113")
    k("v_lshl_add_u32 v65, v64, 4, v65")
    k("v_permlane16_swap_b32 v60, v61")
    k("v_permlane16_swap_b32 v62, v63")
    k("v_bfe_u32 v64, v1, 5, 1")
    k("v_lshl_add_u32 v65, v64, 3, v65")
    k("v_add_f32 v60, v60, v61")
    k("v_add_f32 v62, v62, v63")
    k("v_bfe_u32 v64, v1, 4, 1")
    k("v_lshl_add_u32 v65, v64, 2, v65")
    k("v_permlane32_swap_b32 v60, v62")
    k("s_mul_i32 s56, s6, 12288")
    k("s_lshl_b32 s57, s7, 8")
    k("s_add_u32 s56, s56, s57")
    k("v_add_f32 v60, v60, v62")
    k("s_waitcnt vmcnt(0)")
    k("buffer_store_dword v60, v65, s[40:43], s56 offen sc1")
    k("s_branch kab_mod_done")
    k.label("kab_nomod")
    k("s_waitcnt vmcnt(0)")
    k.label("kab_mod_done")
    k("v_lshlrev_b32 v10, 16, v10")
    exp_precise(k, "v10", "v10", "v15", "v16", "s46", "s47")
    round_bf16(k, "v10", "v10")
    k("v_lshlrev_b32 v11, 16, v11")
    exp_precise(k, "v11", "v11", "v15", "v16", "s46", "s47")
    round_bf16(k, "v11", "v11")
    k("v_mul_f32 v11, v11, v10")
    k("v_mul_f32 v44, s48, v11")
    k("v_lshlrev_b32 v12, 16, v12")
    k("v_mul_f32 v12, v12, v10")
    k("v_mul_f32 v45, s49, v12")
    k("v_pk_mul_f32 v[52:53], v[44:45], s[58:59] op_sel_hi:[1,0]")
    k("v_fract_f32 v53, v53")
    k("v_exp_f32 v52, v52")
    k("v_cos_f32 v54, v53")
    k("v_sin_f32 v55, v53")
    k("v_pk_mul_f32 v[54:55], v[54:55], v[52:53] op_sel_hi:[1,0]")
    k.stamp(2)
    k("v_lshlrev_b32 v13, 16, v13")
    k("v_lshlrev_b32 v14, 16, v14")
    k("v_max_f32 v15, abs(v13), abs(v14)")
    k("v_add_f32_dpp v16, v13, v13 row_ror:8 row_mask:0xf bank_mask:0xf")
    for rot in (8, 4, 2, 1):
        k(f"v_max_f32_dpp v15, v15, v15 row_ror:{rot} row_mask:0xf bank_mask:0xf")
        if rot != 8:
            k(f"v_add_f32_dpp v16, v16, v16 row_ror:{rot} row_mask:0xf bank_mask:0xf")
    k("v_mov_b32 v8, v15")
    k("v_mov_b32 v9, v16")
    k("v_permlane16_swap_b32 v8, v15")
    k("v_permlane16_swap_b32 v9, v16")
    k("v_max_f32 v15, v15, v8")
    k("v_add_f32 v16, v16, v9")
    k("v_and_b32 v15, 0x7f800000, v15")
    k("v_max_u32 v15, 0x00800000, v15")
    k("v_min_u32 v15, 0x7e800000, v15")
    k("v_sub_u32 v8, 0x7f000000, v15")
    k("v_mul_f32 v46, v8, v13")
    k("v_mul_f32 v47, -v8, v14")
    k("v_add_f32 v10, v10, v10")
    k("v_mul_f32 v16, v16, v10")
    k("v_mul_f32 v15, v15, v10")
    k("v_mov_b32 v48, v47")
    k("v_sub_f32 v49, 0, v46")
    k("v_mul_f32 v50, v54, v46")
    k("v_fma_f32 v50, v55, v47, v50")
    k("v_mul_f32 v51, v54, v47")
    k("v_fma_f32 v51, -v55, v46, v51")
    k("v_mov_b32 v52, v51")
    k("v_sub_f32 v53, 0, v50")
    k("ds_write_b128 v40, v[44:47]")
    k("ds_write_b128 v40, v[48:51] offset:16")
    k("ds_write_b64 v40, v[52:53] offset:32")
    k("s_mov_b32 exec_lo, 1")
    k("s_mov_b32 exec_hi, 1")
    k("ds_write_b32 v19, v16")
    k("s_mov_b64 exec, -1")
    k("v_readlane_b32 s50, v15, 0")
    k("v_readlane_b32 s52, v15, 32")
    k("s_cmp_eq_u32 s3, 3")
    k("s_cbranch_scc1 kab_na")
    k("s_waitcnt vmcnt(0)")
    k(f"v_mov_b32 v9, {C_A}")
    lds_signal(k, 9, 248)
    k.label("kab_na")
    k.stamp(8)
    k("s_mov_b32 s53, 0")
    k("s_waitcnt lgkmcnt(0)")
    D0, PR, FR = 48, 128, 88
    TA_ = (104, 106, 108)
    TC_ = (120, 122, 124, 126)
    UP = (20, 42, 22)
    k.label("kab_kloop")
    for c in range(4):
        k(f"ds_read_b128 v[{PR+c*10}:{PR+c*10+3}], v41 offset:{c*48}")
        k(f"ds_read_b128 v[{PR+c*10+4}:{PR+c*10+7}], v41 offset:{c*48+16}")
        k(f"ds_read_b64 v[{PR+c*10+8}:{PR+c*10+9}], v41 offset:{c*48+32}")
    k("s_bitcmp1_b32 s53, 0")
    k("s_cbranch_scc1 kab_knz")
    for r in range(16):
        k(f"v_mov_b32 v{D0+r}, 0")
    k.label("kab_knz")
    for c in range(4):
        k(f"s_waitcnt lgkmcnt({9-3*c})")
        p = PR + c * 10
        for Ti in range(3):
            t = TA_[Ti]
            k(f"v_pk_mul_f32 v[{t}:{t+1}], v[{p}:{p+1}], v[{UP[Ti]}:{UP[Ti]+1}] op_sel_hi:[1,0]")
        for Ti in range(3):
            t = TA_[Ti]
            k(f"v_fract_f32 v{t+1}, v{t+1}")
            k(f"v_exp_f32 v{t}, v{t}")
        for Ti in range(3):
            k(f"v_cos_f32 v{TC_[Ti]}, v{TA_[Ti]+1}")
            k(f"v_sin_f32 v{TC_[Ti]+1 if Ti < 2 else TC_[3]}, v{TA_[Ti]+1}")
        for Ti in range(2):
            t, q = TA_[Ti], TC_[Ti]
            k(f"v_pk_mul_f32 v[{q}:{q+1}], v[{q}:{q+1}], v[{t}:{t+1}] op_sel_hi:[1,0]")
        k(f"v_mul_f32 v{TC_[2]}, v{TC_[2]}, v{TA_[2]}")
        k(f"v_mul_f32 v{TC_[3]}, v{TC_[3]}, v{TA_[2]}")
        for Ti in range(2):
            k(f"v_cvt_pk_f16_f32 v{FR+Ti*4+c}, v{TC_[Ti]}, v{TC_[Ti]+1}")
        for y in range(2):
            t = TA_[y]
            cc = p + 2 + 4 * y
            k(f"v_pk_mul_f32 v[{t}:{t+1}], v[{cc}:{cc+1}], v[{TC_[2]}:{TC_[2]+1}] op_sel_hi:[1,0]")
        for y in range(2):
            t = TA_[y]
            cc = p + 4 + 4 * y
            k(f"v_pk_fma_f32 v[{t}:{t+1}], v[{cc}:{cc+1}], v[{TC_[3]}:{TC_[3]+1}], v[{t}:{t+1}] op_sel_hi:[1,0,1]")
        for y in range(2):
            k(f"v_cvt_pk_f16_f32 v{FR+8+4*y+c}, v{TA_[y]}, v{TA_[y]+1}")
    for y in range(2):
        for x in range(2):
            d = D0 + (y * 2 + x) * 4
            k(f"v_mfma_f32_16x16x32_f16 v[{d}:{d+3}], v[{FR+4*x}:{FR+4*x+3}], v[{FR+8+4*y}:{FR+11+4*y}], v[{d}:{d+3}]")
    k("v_add_u32 v41, 192, v41")
    k("s_bitcmp1_b32 s53, 0")
    k("s_cbranch_scc0 kab_knf")
    for r in range(D0, D0 + 8, 2):
        k(f"v_pk_mul_f32 v[{r}:{r+1}], v[{r}:{r+1}], s[50:51] op_sel_hi:[1,0]")
    for r in (D0 + 11, D0 + 13, D0 + 15):
        k(f"v_mul_f32 v{r}, s50, v{r}")
    k(f"ds_write_b128 v25, v[{D0}:{D0+3}]")
    k(f"ds_write_b64 v26, v[{D0+4}:{D0+5}]")
    k(f"ds_write_b64 v27, v[{D0+6}:{D0+7}]")
    k(f"ds_write_b32 v28, v{D0+11}")
    k(f"ds_write_b32 v18, v{D0+13}")
    k(f"ds_write_b32 v17, v{D0+15}")
    for r in (25, 26, 27, 28, 17, 18):
        k(f"v_add_u32 v{r}, {4*PTS}, v{r}")
    k(f"v_add_u32 v41, {1536-384}, v41")
    k("s_mov_b32 s50, s52")
    k("s_waitcnt lgkmcnt(0)")
    k.label("kab_knf")
    k("s_add_u32 s53, s53, 1")
    k("s_cmp_lt_u32 s53, 4")
    k("s_cbranch_scc1 kab_kloop")
    k.stamp(3)
    k(f"v_mov_b32 v10, {C_K1}")
    lds_signal(k, 10, 248)
    k("v_lshlrev_b32 v8, 2, v0")
    k("v_lshlrev_b32 v9, 1, v0")
    lds_wait(k, 10, 11, 4)
    k.stamp(4)
    for c in range(2):
        for e in range(3):
            for w in range(4):
                k(f"ds_read_b32 v{48+c*12+e*4+w}, v8 offset:{PT+12+(c*4+w)*PTS+e*1024}") if PT + 12 + (c*4+w)*PTS + e*1024 < 65536 else \
                    k(f"ds_read_b32 v{48+c*12+e*4+w}, v12 offset:{PT+12+(c*4+w)*PTS+e*1024-32768}")
        if c == 0:
            k("v_add_u32 v12, 32768, v8")
            k("s_waitcnt lgkmcnt(3)")
    for c in range(2):
        k(f"s_waitcnt lgkmcnt({12 if c == 0 else 3})")
        for e in range(3):
            b = 48 + c * 12 + e * 4
            k(f"v_add_f32 v{b}, v{b}, v{b+1}")
            k(f"v_add_f32 v{b+2}, v{b+2}, v{b+3}")
        for e in range(3):
            b = 48 + c * 12 + e * 4
            k(f"v_add_f32 v{b}, v{b}, v{b+2}")
        for e in range(3):
            b = 48 + c * 12 + e * 4
            k(f"v_cvt_pk_bf16_f32 v{b}, v{b}, v{b}")
        for e in range(3):
            k(f"ds_write_b16 v9, v{48+c*12+e*4} offset:{T16+c*1536+e*512}")
    k(f"v_mov_b32 v10, {C_K2}")
    lds_signal(k, 10, 248)
    k("s_lshr_b32 s40, s3, 1")
    k("s_and_b32 s41, s3, 1")
    k("v_and_b32 v12, 14, v6")
    k("v_lshlrev_b32 v12, 1, v12")
    k("v_lshlrev_b32 v13, 4, v7")
    k("v_sub_u32 v12, v13, v12")
    k("v_and_b32 v13, 1, v6")
    k(f"v_mul_u32_u24 v13, {KR_CP}, v13")
    k("v_sub_u32 v12, v12, v13")
    k(f"s_mul_i32 s42, s40, {KR_CH}")
    k("s_lshl_b32 s43, s41, 8")
    k("s_sub_u32 s42, s42, s43")
    k(f"s_add_u32 s42, s42, {KB + KR_CP + 4060 - 512}")
    k("v_add_u32 v20, s42, v12")
    for a_ in range(1, 4):
        k(f"v_subrev_u32 v{20+a_}, {1024*a_}, v20")
    k("v_lshlrev_b32 v12, 5, v6")
    k("v_lshl_add_u32 v12, v7, 4, v12")
    k("s_mul_i32 s42, s40, 4608")
    k("s_sub_u32 s42, s42, s43")
    k(f"s_add_u32 s42, s42, {HB + 512 - 32}")
    k("v_add_u32 v24, s42, v12")
    k("v_lshlrev_b32 v12, 5, v6")
    k("v_lshl_add_u32 v12, v7, 3, v12")
    k("s_lshl_b32 s43, s41, 11")
    k("s_mul_i32 s42, s40, 4608")
    k("s_add_u32 s42, s42, s43")
    k(f"s_add_u32 s42, s42, {HB + 512}")
    k("v_add_u32 v25, s42, v12")
    k("v_lshlrev_b32 v12, 6, v6")
    k("v_lshrrev_b32 v13, 1, v7")
    k("v_lshl_add_u32 v12, v13, 5, v12")
    k("v_and_b32 v13, 1, v7")
    k("v_lshl_add_u32 v12, v13, 3, v12")
    k("s_lshl_b32 s42, s40, 4")
    k("s_lshl_b32 s45, s41, 12")
    k("s_add_u32 s42, s42, s45")
    k(f"s_add_u32 s42, s42, {XB}")
    k("v_add_u32 v26, s42, v12")
    k("v_lshrrev_b32 v12, 1, v6")
    k("v_lshlrev_b32 v12, 3, v12")
    k("v_and_b32 v13, 1, v7")
    k("v_lshl_add_u32 v12, v13, 2, v12")
    k("v_and_b32 v13, 1, v6")
    k("v_lshl_add_u32 v12, v13, 1, v12")
    k("v_lshrrev_b32 v13, 1, v7")
    k("v_add_u32 v12, v12, v13")
    k("v_lshlrev_b32 v27, 3, v12")
    k("s_lshl_b32 s44, s40, 1")
    k("s_add_u32 s44, s44, s88")
    k("s_lshl_b32 s44, s44, 12")
    k("s_add_u32 s44, s44, s43")
    k("s_lshl_b32 s42, s3, 12")
    k(f"s_add_u32 s42, s42, {RB}")
    k("v_add_u32 v28, s42, v3")
    k("s_xor_b32 s42, s3, 1")
    k("s_lshl_b32 s42, s42, 12")
    k(f"s_add_u32 s42, s42, {RB}")
    k("v_add_u32 v29, s42, v3")
    k.srd(16, 36, 512 * 4096, WS_X1T)
    k("v_lshlrev_b32 v12, 16, v111")
    k("v_readlane_b32 s47, v12, 0")
    k("v_readlane_b32 s48, v12, 32")
    k("s_cmp_eq_u32 s40, 0")
    k("s_cselect_b32 s47, s47, s48")
    lds_wait(k, 10, 11, 4)
    k.stamp(5)
    for c in range(2):
        for e in range(9):
            k(f"ds_read_u16 v{48+c*10+e}, v{30+e} offset:{T16+c*1536}")
        if c == 0:
            k("s_waitcnt lgkmcnt(6)")
    k("v_lshlrev_b32 v8, 4, v0")
    for r in range(72, 76):
        k(f"v_mov_b32 v{r}, 0")
    k("v_cmp_eq_u32 vcc, 255, v0")
    for c in range(2):
        k(f"s_waitcnt lgkmcnt({9 if c == 0 else 2})")
        b = 48 + c * 10
        o = 80 + c * 8
        k(f"v_cndmask_b32 v{b+8}, v{b+8}, v72, vcc")
        for j in range(4):
            k(f"v_lshl_or_b32 v{o+j}, v{b+1+2*j}, 16, v{b+2*j}")
        k(f"ds_write_b128 v8, v[{o}:{o+3}] offset:{KB + c*KR_CH}")
        for j in range(4):
            k(f"v_lshl_or_b32 v{o+4+j}, v{b+2+2*j}, 16, v{b+1+2*j}")
        k(f"ds_write_b128 v8, v[{o+4}:{o+7}] offset:{KB + c*KR_CH + KR_CP}")
    for r in range(44, 76):
        k(f"v_mov_b32 v{r}, 0")
    k("s_waitcnt lgkmcnt(0)")
    k.stamp(9)
    k("s_barrier")
    k.stamp(10)

    FA = (76, 144)
    FB = (176, 208)

    def reads(s):
        out = []
        for m in range(8):
            a_ = m >> 1
            o = 0 if (m & 1) else 128
            x = FA[s] + 4 * m
            out.append(f"ds_read2_b32 v[{x}:{x+1}], v{20+a_} offset0:{o} offset1:{o+1}")
            out.append(f"ds_read2_b32 v[{x+2}:{x+3}], v{20+a_} offset0:{o+2} offset1:{o+3}")
            y = FB[s] + 4 * m
            out.append(f"ds_read_b128 v[{y}:{y+3}], v24 offset:{512*m}")
        return out

    def adv():
        return [f"v_subrev_u32 v{r}, 64, v{r}" for r in range(20, 25)]

    def mfmas(s):
        pairs = sorted([(m, t) for m in range(8) for t in range(8) if m + t <= 7], key=lambda p: (max(p), p[0] + p[1]))
        return [f"v_mfma_f32_16x16x32_bf16 v[{44+4*(m+t)}:{47+4*(m+t)}], v[{FA[s]+4*m}:{FA[s]+4*m+3}], v[{FB[s]+4*t}:{FB[s]+4*t+3}], v[{44+4*(m+t)}:{47+4*(m+t)}]"
                for (m, t) in pairs]

    k("s_lshl_b32 s42, s40, 2")
    k(f"v_mov_b32 v12, s42")
    k(f"ds_read_b32 v12, v12 offset:{PAR+16}")
    for r_ in reads(0):
        k(r_)
    for x in adv():
        k(x)
    k("s_mov_b32 s50, 0")
    k("s_waitcnt lgkmcnt(0)")
    k("v_readfirstlane_b32 s46, v12")
    k.label("kab_cloop")
    for s in range(2):
        k("s_waitcnt lgkmcnt(0)")
        rd = reads(1 - s)
        mf = mfmas(s)
        ad = adv()
        for idx, x in enumerate(mf):
            k(x)
            if idx < len(rd):
                k(rd[idx])
            elif idx - len(rd) < len(ad):
                k(ad[idx - len(rd)])
    k("s_add_u32 s50, s50, 1")
    k("s_cmp_lt_u32 s50, 2")
    k("s_cbranch_scc1 kab_cloop")
    k("s_waitcnt lgkmcnt(0)")
    k.stamp(11)
    L1, L2 = k.newlabel(), k.newlabel()
    k("s_cmp_eq_u32 s41, 0")
    k(f"s_cbranch_scc0 {L1}")
    for kk in range(4):
        k(f"ds_write_b128 v28, v[{60+4*kk}:{63+4*kk}] offset:{1024*kk}")
    k(f"s_branch {L2}")
    k.label(L1)
    for kk in range(4):
        k(f"ds_write_b128 v28, v[{44+4*kk}:{47+4*kk}] offset:{1024*kk}")
    for r in range(0, 16, 2):
        k(f"v_pk_mov_b32 v[{44+r}:{45+r}], v[{60+r}:{61+r}], v[{60+r}:{61+r}] op_sel:[0,1]")
    k.label(L2)
    k("s_lshl_b32 s42, s40, 2")
    k(f"s_add_u32 s42, s42, {C_R}")
    k("v_mov_b32 v10, s42")
    lds_signal(k, 10, 248)
    for kk in range(4):
        k(f"ds_read_b64 v[{76+2*kk}:{77+2*kk}], v25 offset:{512*kk}")
        k(f"ds_read_b64 v[{84+2*kk}:{85+2*kk}], v26 offset:{1024*kk}")
    k("s_waitcnt lgkmcnt(0)")
    HD, XF = 144, 160
    for p in range(8):
        t = HD + 2 * p
        k(f"v_lshlrev_b32 v{t}, 16, v{76+p}")
        k(f"v_and_b32 v{t+1}, 0xffff0000, v{76+p}")
    for p in range(8):
        t = HD + 2 * p
        k(f"v_pk_mul_f32 v[{t}:{t+1}], v[{t}:{t+1}], s[46:47] op_sel:[0,1] op_sel_hi:[1,1]")
    for p in range(8):
        t = HD + 2 * p
        k(f"v_cvt_pk_bf16_f32 v{76+p}, v{t}, v{t+1}")
    lds_wait(k, 10, 11, 2)
    k.stamp(12)
    for kk in range(4):
        k(f"ds_read_b128 v[{60+4*kk}:{63+4*kk}], v29 offset:{1024*kk}")
    for p in range(8):
        t = HD + 2 * p
        k(f"v_lshlrev_b32 v{t}, 16, v{76+p}")
        k(f"v_and_b32 v{t+1}, 0xffff0000, v{76+p}")
        u = XF + 2 * p
        k(f"v_lshlrev_b32 v{u}, 16, v{84+p}")
        k(f"v_and_b32 v{u+1}, 0xffff0000, v{84+p}")
    k("s_waitcnt lgkmcnt(0)")
    P8 = range(8)

    def rnd():
        for p in P8:
            k(f"v_cvt_pk_bf16_f32 v{76+p}, v{44+2*p}, v{45+2*p}")
        for p in P8:
            k(f"v_lshlrev_b32 v{44+2*p}, 16, v{76+p}")
            k(f"v_and_b32 v{45+2*p}, 0xffff0000, v{76+p}")

    for p in P8:
        k(f"v_pk_add_f32 v[{44+2*p}:{45+2*p}], v[{44+2*p}:{45+2*p}], v[{60+2*p}:{61+2*p}]")
    rnd()
    for p in P8:
        k(f"v_pk_add_f32 v[{44+2*p}:{45+2*p}], v[{44+2*p}:{45+2*p}], v[{HD+2*p}:{HD+2*p+1}]")
    rnd()
    for p in P8:
        k(f"v_pk_mul_f32 v[{44+2*p}:{45+2*p}], v[{44+2*p}:{45+2*p}], s[46:47] op_sel:[0,0] op_sel_hi:[1,0]")
    rnd()
    for p in P8:
        k(f"v_pk_add_f32 v[{44+2*p}:{45+2*p}], v[{44+2*p}:{45+2*p}], v[{XF+2*p}:{XF+2*p+1}]")
    for kk in range(4):
        for h in range(2):
            p = 2 * kk + h
            k(f"v_cvt_pk_bf16_f32 v{76+p}, v{44+2*p}, v{45+2*p}")
        k(f"buffer_store_dwordx2 v[{76+2*kk}:{77+2*kk}], v27, s[16:19], s44 offen offset:{512*kk}")
    k.endpgm()

    k.label("kab_h")
    k("s_setprio 2")
    k("v_and_b32 v0, 255, v0")
    for r in range(8, 12):
        k(f"v_mov_b32 v{r}, 0")
    k("s_cmp_lg_u32 s3, 0")
    k("s_cbranch_scc1 kab_h0")
    k("v_lshrrev_b32 v7, 5, v1")
    k("v_mul_u32_u24 v7, 4608, v7")
    k("v_and_b32 v6, 31, v1")
    k("v_lshl_add_u32 v7, v6, 4, v7")
    k(f"ds_write_b128 v7, v[8:11] offset:{HB}")
    k("v_lshrrev_b32 v6, 2, v1")
    k(f"v_mul_u32_u24 v7, {KR_CP}, v6")
    k("v_and_b32 v6, 3, v1")
    k("v_lshl_add_u32 v7, v6, 4, v7")
    k(f"v_add_u32 v7, {KB + 4096}, v7")
    k("v_lshlrev_b32 v6, 4, v6")
    k("v_cmp_gt_u32 vcc, 16, v1")
    k("v_cndmask_b32 v7, v6, v7, vcc")
    k("ds_write_b128 v7, v[8:11]")
    k.label("kab_h0")
    k("s_lshl_b32 s10, s2, 13")
    k("s_add_u32 s38, s10, 4096")
    k("s_lshl_b32 s39, s3, 11")
    k("s_add_u32 s39, s39, s10")
    k("v_lshlrev_b32 v4, 2, v0")
    k("v_and_b32 v2, 3, v0")
    k("s_waitcnt lgkmcnt(0)")
    k("s_barrier")
    k.stamp(6)
    k("s_mov_b64 s[36:37], s[34:35]")
    k.srd(12, 64, 2048 * 1024)
    k("buffer_load_dwordx4 v[16:19], v3, s[12:15], s39 offen nt")
    k("buffer_load_dwordx4 v[20:23], v3, s[12:15], s39 offen offset:1024 nt")
    for r in range(8):
        k(f"buffer_load_dword v{24+r}, v4, s[12:15], s{(10, 38)[r//4]} offen offset:{(r%4)*1024} nt")
    k("s_lshr_b32 s5, s2, 4")
    k("s_and_b32 s6, s2, 15")
    k("s_mul_i32 s6, s6, 11")
    k("s_min_u32 s6, s6, 161")
    k("v_lshrrev_b32 v92, 4, v1")
    k("v_and_b32 v95, 15, v1")
    k(f"v_mul_u32_u24 v93, {8*2752}, v92")
    k("v_lshl_add_u32 v93, v95, 4, v93")
    k("v_cmp_gt_u32 vcc, 11, v95")
    k("v_mov_b32 v94, 0x7fff0000")
    k("v_cndmask_b32 v93, v94, v93, vcc")
    k("s_lshl_b32 s8, s2, 13")
    k("v_add_u32 v94, s8, v3")
    k(f"s_mul_i32 s8, s5, {32*2752}")
    k("s_lshl_b32 s9, s6, 4")
    k("s_add_u32 s8, s8, s9")
    k("s_cmp_eq_u32 s3, 1")
    k("s_cselect_b64 vcc, -1, 0")
    k("s_cselect_b64 s[68:69], s[80:81], s[86:87]")
    k(f"s_mov_b32 s70, {688*1024}")
    k(f"s_cselect_b32 s70, {512*2752}, s70")
    k("s_cselect_b32 s8, s8, 0")
    k("s_movk_i32 s9, 1024")
    k("s_cselect_b32 s9, 2752, s9")
    k("v_cndmask_b32 v93, v94, v93, vcc")
    k("s_sub_u32 s7, s3, 1")
    k("s_cmp_lt_u32 s7, 2")
    k("s_cselect_b32 s70, s70, 0")
    k("s_and_b32 s69, s69, 0xffff")
    k("s_mov_b32 s71, 0x00020000")

    def raw_loads():
        for e in range(8):
            k(f"buffer_load_dwordx4 v[{RAW+e*4}:{RAW+3+e*4}], v93, s[68:71], s8 offen nt")
            if e < 7:
                k("s_add_u32 s8, s8, s9")

    k.srd(60, 32, 256)
    k.srd(40, 36, 65536, WS_BAR)
    k.srd(44, 36, (2 << 20) + 8192, WS_XT)
    k.srd(52, 36, 16 * 12288, WS_MP)
    k("v_and_b32 v84, 7, v1")
    k("v_lshlrev_b32 v84, 5, v84")
    k("s_mov_b32 s48, 0x05040100")
    k("s_mov_b32 s49, 0x07060302")
    k(f"s_mov_b32 s50, {f32(1.0/512)}")
    k(f"s_mov_b32 s51, {f32(1e-5)}")
    k("v_lshrrev_b32 v4, 1, v1")
    k("s_lshl_b32 s15, s3, 6")
    k("v_add_u32 v4, s15, v4")
    k("v_and_b32 v7, 1, v1")
    k("v_lshlrev_b32 v6, 13, v4")
    k("v_lshl_add_u32 v6, v7, 4, v6")
    k("v_mul_u32_u24 v9, 4608, v7")
    k(f"v_add_u32 v9, {HB+512}, v9")
    k("v_lshl_add_u32 v9, v4, 4, v9")
    k("v_lshlrev_b32 v10, 2, v7")
    k("v_lshlrev_b32 v11, 5, v4")
    k("v_lshl_add_u32 v14, v7, 4, v11")
    k(f"v_add_u32 v14, {XB}, v14")
    k(f"s_mov_b32 s19, {WS_ST1 - WS_XT}")
    k("s_lshl_b32 s20, s89, 12")
    k("s_lshr_b32 s21, s4, 1")
    k("s_lshl_b32 s21, s21, 5")
    k("s_add_u32 s20, s20, s21")
    k(f"s_add_u32 s21, s20, {32*8192}")
    k("s_lshr_b32 s15, s2, 3")
    k("s_and_b32 s15, s15, 15")
    k("s_lshl_b32 s15, s15, 7")
    k("v_lshl_add_u32 v88, v1, 11, s15")
    k("s_and_b32 s15, s2, 7")
    k("s_lshl_b32 s15, s15, 11")
    k("v_and_b32 v89, 15, v1")
    k("v_lshl_add_u32 v89, v89, 7, s15")
    k(f"v_mov_b32 v86, {C_A}")
    k(f"v_mov_b32 v90, {C_G}")
    k("v_and_b32 v82, 15, v1")
    k("v_lshrrev_b32 v83, 4, v1")
    k("v_mul_u32_u24 v82, 12288, v82")
    k("v_and_b32 v8, 1, v83")
    k("v_lshl_add_u32 v85, v8, 11, v82")
    k("v_add_u32 v85, 8192, v85")
    k("v_lshl_add_u32 v82, v83, 11, v82")
    k("s_lshl_b32 s58, s88, 2")
    k("v_lshlrev_b32 v5, 4, v0")
    k("v_bfe_u32 v15, v1, 3, 1")
    k("s_lshl_b32 s15, s3, 3")
    k("v_lshl_add_u32 v15, v15, 2, s15")
    k("s_lshl_b32 s14, s2, 5")
    k("s_add_u32 s14, s14, s19")
    k(f"v_mov_b32 v81, {C_L}")
    k("s_waitcnt vmcnt(0)")
    k.stamp(2)
    k("s_cmp_eq_u32 s3, 3")
    k("s_cselect_b32 s62, s62, 0")
    k("buffer_load_dword v91, v84, s[60:63], 0 offen sc1")
    for q in range(4):
        k(f"v_perm_b32 v{68+q}, v{25+2*q}, v{24+2*q}, s48")
        k(f"v_perm_b32 v{76+q}, v{25+2*q}, v{24+2*q}, s49")
    k("buffer_store_dwordx4 v[68:71], v5, s[44:47], s10 offen sc1")
    k("buffer_store_dwordx4 v[76:79], v5, s[44:47], s38 offen sc1")
    for r in range(2):
        for j in range(4):
            k(f"v_lshlrev_b32 v{32+8*r+2*j}, 16, v{16+4*r+j}")
            k(f"v_and_b32 v{33+8*r+2*j}, 0xffff0000, v{16+4*r+j}")

    def wave_reduce2(a, b, d, t):
        k(f"v_add_f32_dpp v{d}, v{a}, v{a} row_ror:8 row_mask:0xf bank_mask:0x3")
        k(f"v_add_f32_dpp v{d}, v{b}, v{b} row_ror:8 row_mask:0xf bank_mask:0xc")
        k(f"v_add_f32_dpp v{d}, v{d}, v{d} row_half_mirror row_mask:0xf bank_mask:0xf")
        k(f"v_add_f32_dpp v{d}, v{d}, v{d} quad_perm:[2,3,0,1] row_mask:0xf bank_mask:0xf")
        k(f"v_add_f32_dpp v{d}, v{d}, v{d} quad_perm:[1,0,3,2] row_mask:0xf bank_mask:0xf")
        k(f"v_mov_b32 v{t}, v{d}")
        k(f"v_permlane16_swap_b32 v{t}, v{d}")
        k(f"v_add_f32 v{d}, v{d}, v{t}")
        k(f"v_mov_b32 v{t}, v{d}")
        k(f"v_permlane32_swap_b32 v{t}, v{d}")
        k(f"v_add_f32 v{d}, v{d}, v{t}")

    for r in range(2):
        x, t = 32 + 8 * r, 48 + 4 * r
        k(f"v_pk_add_f32 v[{t}:{t+1}], v[{x}:{x+1}], v[{x+2}:{x+3}]")
        k(f"v_pk_add_f32 v[{t+2}:{t+3}], v[{x+4}:{x+5}], v[{x+6}:{x+7}]")
    for r in range(2):
        t = 48 + 4 * r
        k(f"v_pk_add_f32 v[{t}:{t+1}], v[{t}:{t+1}], v[{t+2}:{t+3}]")
    for r in range(2):
        t = 48 + 4 * r
        k(f"v_add_f32 v{t}, v{t}, v{t+1}")
    wave_reduce2(48, 52, 56, 57)
    k("v_mul_f32 v56, s50, v56")
    k("v_readlane_b32 s16, v56, 0")
    k("v_readlane_b32 s17, v56, 8")
    for r in range(2):
        sel = "op_sel_hi:[1,0]" if r == 0 else "op_sel:[0,1] op_sel_hi:[1,1]"
        for j in range(4):
            x = 32 + 8 * r + 2 * j
            k(f"v_pk_add_f32 v[{x}:{x+1}], v[{x}:{x+1}], s[16:17] {sel} neg_lo:[0,1] neg_hi:[0,1]")
    for j in range(4):
        for r in range(2):
            x, t = 32 + 8 * r + 2 * j, 48 + 4 * r
            if j == 0:
                k(f"v_pk_mul_f32 v[{t}:{t+1}], v[{x}:{x+1}], v[{x}:{x+1}]")
            else:
                k(f"v_pk_fma_f32 v[{t}:{t+1}], v[{x}:{x+1}], v[{x}:{x+1}], v[{t}:{t+1}]")
    for r in range(2):
        t = 48 + 4 * r
        k(f"v_add_f32 v{t}, v{t}, v{t+1}")
    wave_reduce2(48, 52, 58, 57)
    k("v_mul_f32 v58, s50, v58")
    round_bf16(k, "v58", "v58")
    k("v_add_f32 v58, s51, v58")
    round_bf16(k, "v58", "v58")
    k("v_sqrt_f32 v58, v58")
    k("v_cvt_pk_bf16_f32 v58, v56, v58")
    k(f"ds_write_b32 v15, v58 offset:{PAR+32}")
    lds_signal(k, 81, 248)
    k.stamp(3)
    k("s_cmp_eq_u32 s3, 3")
    k("s_cbranch_scc1 kab_sync")
    k("s_waitcnt vmcnt(0)")
    k.stamp(4)
    lds_signal(k, 86, 248)
    k.label("kab_gs")
    k("s_sleep 1")
    k("ds_read_b32 v87, v90")
    k("s_waitcnt lgkmcnt(0)")
    k("v_readfirstlane_b32 s90, v87")
    k("s_cmp_eq_u32 s90, 0")
    k("s_cbranch_scc1 kab_gs")
    k("s_branch kab_go")
    k.label("kab_sync")
    k("s_mov_b32 s56, 0")
    k("s_waitcnt vmcnt(2)")
    k.label("kab_rp")
    k("v_cmp_eq_u32 vcc, 0, v91")
    k("s_cbranch_vccz kab_rg")
    k("s_sleep 2")
    k("buffer_load_dword v91, v84, s[60:63], 0 offen sc1")
    k("s_add_u32 s56, s56, 1")
    k("s_waitcnt vmcnt(0)")
    k(f"s_cmp_lt_u32 s56, {SPIN}")
    k("s_cbranch_scc1 kab_rp")
    k.label("kab_rg")
    lds_wait(k, 81, 87, 4)
    k("v_and_b32 v15, 1, v1")
    k("v_lshlrev_b32 v15, 4, v15")
    k(f"ds_read_b128 v[60:63], v15 offset:{PAR+32}")
    k("s_waitcnt lgkmcnt(0)")
    k("s_mov_b64 exec, 3")
    k("buffer_store_dwordx4 v[60:63], v15, s[44:47], s14 offen sc1")
    k("s_mov_b64 exec, -1")
    k("s_waitcnt vmcnt(1)")
    k.stamp(8)
    lds_wait(k, 86, 87, 6)
    k("s_mov_b64 exec, 0xff")
    k("buffer_atomic_add v248, v88, s[40:43], 0 offen sc1")
    k("s_mov_b64 exec, -1")
    k.stamp(4)
    gpoll(k, "kab_b1", 0)
    k("s_mov_b64 exec, 1")
    k("ds_write_b32 v90, v248")
    k("s_mov_b64 exec, -1")
    k("buffer_load_dword v56, v82, s[52:55], s58 offen sc1")
    k("buffer_load_dword v57, v82, s[52:55], s58 offen offset:8 sc1")
    k("buffer_load_dword v58, v85, s[52:55], s58 offen sc1")
    k("buffer_load_dword v59, v85, s[52:55], s58 offen offset:8 sc1")
    k.label("kab_go")
    k.stamp(5)
    for i in range(2):
        k(f"buffer_load_dwordx4 v[{16+i*4}:{19+i*4}], v6, s[44:47], s{20+i} offen sc1")
    for i in range(2):
        for h in range(2):
            k(f"buffer_load_dwordx4 v[{128+i*8+h*4}:{131+i*8+h*4}], v11, s[44:47], s19 offen offset:{i*1024+h*16} sc1")
    k(f"v_mov_b32 v86, {C_P}")
    k("s_cmp_lg_u32 s3, 3")
    k("s_cbranch_scc1 kab_p0")
    k("s_waitcnt vmcnt(8)")
    for rot in (8, 4, 2, 1):
        for r in (56, 57):
            k(f"v_add_f32_dpp v{r}, v{r}, v{r} row_ror:{rot} row_mask:0xf bank_mask:0xf")
    for r in (56, 57):
        round_bf16(k, f"v{r}", f"v{r}")
    k("v_lshlrev_b32 v66, 3, v83")
    k("s_mov_b32 exec_lo, 0x00010001")
    k("s_mov_b32 exec_hi, 0x00010001")
    k(f"ds_write_b64 v66, v[56:57] offset:{PAR}")
    k("s_mov_b64 exec, -1")
    lds_signal(k, 86, 248)
    k.label("kab_p0")
    k("s_cmp_ge_u32 s7, 2")
    k("s_cbranch_scc1 kab_pv")
    raw_loads()
    k("v_mul_u32_u24 v8, 12288, v95")
    k("v_lshl_add_u32 v8, v92, 5, v8")
    k("s_lshl_b32 s22, s5, 7")
    k("s_add_u32 s22, s22, 6144")
    for j in range(2):
        k(f"buffer_load_dwordx4 v[{SBR+4*j}:{SBR+4*j+3}], v8, s[52:55], s22 offen offset:{16*j} sc1")
        k(f"buffer_load_dwordx4 v[{CBR+4*j}:{CBR+4*j+3}], v8, s[52:55], s22 offen offset:{2048+16*j} sc1")
    k("s_waitcnt vmcnt(12)")
    k("s_branch kab_pw")
    k.label("kab_pv")
    k("s_waitcnt vmcnt(0)")
    k.label("kab_pw")
    k("s_mov_b32 s56, 0")
    k.label("kab_sc")
    k("v_min3_u32 v24, v128, v129, v130")
    for j in range(131, 143, 2):
        k(f"v_min3_u32 v24, v24, v{j}, v{j+1}")
    k("v_min_u32 v24, v24, v143")
    k("v_cmp_eq_u32 vcc, 0, v24")
    k("s_cbranch_vccz kab_so")
    for i in range(2):
        for h in range(2):
            k(f"buffer_load_dwordx4 v[{128+i*8+h*4}:{131+i*8+h*4}], v11, s[44:47], s19 offen offset:{i*1024+h*16} sc1")
    k("s_add_u32 s56, s56, 1")
    k("s_waitcnt vmcnt(0)")
    k(f"s_cmp_lt_u32 s56, {SPIN}")
    k("s_cbranch_scc1 kab_sc")
    k.label("kab_so")
    k.stamp(7)
    for i in range(2):
        k(f"ds_write_b128 v14, v[{16+i*4}:{19+i*4}] offset:{i*1024}")
    M_, RS = 144, 160
    for j in range(16):
        k(f"v_lshlrev_b32 v{M_+j}, 16, v{128+j}")
        k(f"v_and_b32 v{RS+j}, 0xffff0000, v{128+j}")
    for j in range(16):
        k(f"v_rcp_f32 v{RS+j}, v{RS+j}")
    it = [(32 + 2 * j, 16 + j) for j in range(8)]
    for (t, w) in it:
        k(f"v_lshlrev_b32 v{t}, 16, v{w}")
        k(f"v_and_b32 v{t+1}, 0xffff0000, v{w}")
    for j, (t, w) in enumerate(it):
        k(f"v_pk_add_f32 v[{t}:{t+1}], v[{t}:{t+1}], v[{M_+2*j}:{M_+2*j+1}] neg_lo:[0,1] neg_hi:[0,1]")
    for (t, w) in it:
        k(f"v_cvt_pk_bf16_f32 v{w}, v{t}, v{t+1}")
    for (t, w) in it:
        k(f"v_lshlrev_b32 v{t}, 16, v{w}")
        k(f"v_and_b32 v{t+1}, 0xffff0000, v{w}")
    for j, (t, w) in enumerate(it):
        k(f"v_pk_mul_f32 v[{t}:{t+1}], v[{t}:{t+1}], v[{RS+2*j}:{RS+2*j+1}]")
    for (t, w) in it:
        k(f"v_cvt_pk_bf16_f32 v{w}, v{t}, v{t+1}")
    lds_wait(k, 86, 87, 1)
    k(f"ds_read_b32 v26, v10 offset:{PAR}")
    k(f"ds_read_b32 v12, v10 offset:{PAR+8}")
    for (t, w) in it:
        k(f"v_lshlrev_b32 v{t}, 16, v{w}")
        k(f"v_and_b32 v{t+1}, 0xffff0000, v{w}")
    k("s_waitcnt lgkmcnt(0)")
    k("v_add_f32 v12, 1.0, v12")
    round_bf16(k, "v12", "v12")
    for (t, w) in it:
        k(f"v_pk_mul_f32 v[{t}:{t+1}], v[{t}:{t+1}], v[12:13] op_sel:[0,0] op_sel_hi:[1,0]")
    for (t, w) in it:
        k(f"v_cvt_pk_bf16_f32 v{w}, v{t}, v{t+1}")
    for (t, w) in it:
        k(f"v_lshlrev_b32 v{t}, 16, v{w}")
        k(f"v_and_b32 v{t+1}, 0xffff0000, v{w}")
    for (t, w) in it:
        k(f"v_pk_add_f32 v[{t}:{t+1}], v[{t}:{t+1}], v[26:27] op_sel_hi:[1,0]")
    for (t, w) in it:
        k(f"v_cvt_pk_bf16_f32 v{w}, v{t}, v{t+1}")
    for i in range(2):
        k(f"ds_write_b128 v9, v[{16+i*4}:{19+i*4}] offset:{i*512}")
    k("s_waitcnt lgkmcnt(0)")
    k.stamp(9)
    k("s_barrier")
    k("s_setprio 0")
    k("s_cmp_lg_u32 s3, 3")
    k("s_cbranch_scc1 kab_nf")
    for rot in (8, 4, 2, 1):
        for r in (58, 59):
            k(f"v_add_f32_dpp v{r}, v{r}, v{r} row_ror:{rot} row_mask:0xf bank_mask:0xf")
    for r in (58, 59):
        round_bf16(k, f"v{r}", f"v{r}")
    k("v_lshrrev_b32 v65, 4, v1")
    k("v_lshlrev_b32 v65, 11, v65")
    k.srd(52, 36, 12288, WS_MOD)
    k("s_lshl_b32 s58, s88, 2")
    k("s_add_u32 s59, s58, 8192")
    k("s_mov_b32 exec_lo, 0x00010001")
    k("s_mov_b32 exec_hi, 0x00010001")
    k("buffer_store_dword v56, v65, s[52:55], s58 offen")
    k("buffer_store_dword v57, v65, s[52:55], s58 offen offset:8")
    k("s_mov_b32 exec_hi, 0")
    k("buffer_store_dword v58, v65, s[52:55], s59 offen")
    k("buffer_store_dword v59, v65, s[52:55], s59 offen offset:8")
    k("s_mov_b64 exec, -1")
    k("s_waitcnt lgkmcnt(0)")
    k.label("kab_nf")
    k("s_cmp_lg_u32 s3, 0")
    k("s_cbranch_scc1 kab_nx")
    k("v_mov_b32 v8, -1")
    k("v_mov_b32 v9, -1")
    k("v_lshlrev_b32 v7, 3, v1")
    k("s_lshl_b32 s58, s2, 9")
    k.srd(52, 36, 131072, WS_XST)
    k("buffer_store_dwordx2 v[8:9], v7, s[52:55], s58 offen")
    k.label("kab_nx")
    k("s_cmp_eq_u32 s3, 1")
    k("s_cbranch_scc1 kab_wpj")
    k("s_cmp_lg_u32 s3, 2")
    k("s_cbranch_scc1 kab_pf")
    k("s_cmp_ge_u32 s2, 88")
    k(f"s_cbranch_scc1 {L_end}")
    k.srd(16, 36, 32 * 22 * 1024, WS_WOF)
    k("v_lshrrev_b32 v94, 1, v1")
    k(f"v_mul_u32_u24 v94, {22*1024}, v94")
    k("v_and_b32 v7, 1, v1")
    k("v_lshl_add_u32 v94, v7, 7, v94")
    k("s_lshl_b32 s23, s2, 8")
    k("s_waitcnt vmcnt(0)")
    for cc in range(8):
        for q in range(4):
            j = cc >> 1
            k(f"v_perm_b32 v{OUTR+4*cc+q}, v{RAW+(2*q+1)*4+j}, v{RAW+2*q*4+j}, s{48 + (cc & 1)}")
        k(f"buffer_store_dwordx4 v[{OUTR+4*cc}:{OUTR+3+4*cc}], v94, s[16:19], s23 offen offset:{16*cc}")
    k(f"s_branch {L_end}")
    k.label("kab_pf")
    k.srd(28, 82, 2048 * 4096)
    k("s_lshl_b32 s22, s4, 15")
    k("s_lshr_b32 s23, s3, 1")
    k("s_lshl_b32 s23, s23, 7")
    k("s_add_u32 s22, s22, s23")
    k("v_lshrrev_b32 v8, 3, v1")
    k("v_lshlrev_b32 v8, 12, v8")
    k("v_and_b32 v9, 7, v1")
    k("v_lshl_add_u32 v8, v9, 4, v8")
    for i in range(PF1 // 2):
        k(f"buffer_load_dwordx4 v[244:247], v8, s[28:31], s22 offen offset:{i*256}")
    k(f"s_branch {L_end}")
    k.label("kab_wpj")
    k.srd(16, 36, 86 * 16384, WS_WPF)
    k.srd(24, 36, 2 * CSB_B, WS_CSB)
    k("v_add_u32 v4, s6, v95")
    k("v_lshrrev_b32 v7, 1, v4")
    k("v_lshlrev_b32 v7, 14, v7")
    k("v_lshl_add_u32 v7, v92, 8, v7")
    k("v_and_b32 v8, 1, v4")
    k("v_lshl_add_u32 v7, v8, 7, v7")
    k("v_cmp_gt_u32 vcc, 11, v95")
    k("v_mov_b32 v8, 0x7fff0000")
    k("v_cndmask_b32 v7, v8, v7, vcc")
    k("v_lshlrev_b32 v6, 9, v4")
    k("v_bfe_u32 v9, v1, 4, 1")
    k(f"v_mul_u32_u24 v9, {CSB_B}, v9")
    k("v_add_u32 v6, v6, v9")
    k("v_bfe_u32 v9, v1, 5, 1")
    k("v_lshl_add_u32 v6, v9, 8, v6")
    k("v_cndmask_b32 v6, v8, v6, vcc")
    k("s_lshl_b32 s23, s5, 10")
    k("s_lshl_b32 s21, s5, 2")
    k("s_mov_b32 s28, 0x3f803f80")
    for r in range(64, 80):
        k(f"v_mov_b32 v{r}, 0")
    k("s_waitcnt vmcnt(0)")
    k.stamp(10)
    for _ in range(int(os.environ.get("SHIFT", 0))):
        k("s_nop 0")
    if os.environ.get("DBG"):
        k.srd(56, 36, 1 << 20, 0x1800000)
        k("s_lshl_b32 s29, s2, 12")
        for j in range(4):
            k(f"buffer_store_dwordx4 v[{SBR+4*j}:{SBR+4*j+3}], v3, s[56:59], s29 offen offset:{j*1024}")
        k("s_nop 4")
    for rot in (8, 4, 2, 1):
        for r in range(SBR, SBR + 16):
            k(f"v_add_f32_dpp v{r}, v{r}, v{r} row_ror:{rot} row_mask:0xf bank_mask:0xf")
    for e in range(0, 16, 2):
        k(f"v_cvt_pk_bf16_f32 v8, v{SBR+e}, v{SBR+e+1}")
        k(f"v_lshlrev_b32 v{SBR+e}, 16, v8")
        k(f"v_and_b32 v{SBR+e+1}, 0xffff0000, v8")
    for e in range(0, 8, 2):
        k(f"v_pk_add_f32 v[{CBR+e}:{CBR+e+1}], v[{CBR+e}:{CBR+e+1}], 1.0 op_sel_hi:[1,0]")
    for e in range(0, 8, 2):
        k(f"v_cvt_pk_bf16_f32 v8, v{CBR+e}, v{CBR+e+1}")
        k(f"v_lshlrev_b32 v{CBR+e}, 16, v8")
        k(f"v_and_b32 v{CBR+e+1}, 0xffff0000, v8")
    for q in range(4):
        for h in range(2):
            e = 2 * q + h
            sel3 = "op_sel:[0,0,0] op_sel_hi:[1,0,1]" if h == 0 else "op_sel:[0,1,0] op_sel_hi:[1,1,1]"
            sel2 = "op_sel:[0,0] op_sel_hi:[1,0]" if h == 0 else "op_sel:[0,1] op_sel_hi:[1,1]"
            if h == 1:
                k(f"v_mov_b32 v{SBR+2*q}, v{SBR+2*q+1}")
                k(f"v_mov_b32 v{CBR+2*q}, v{CBR+2*q+1}")
                sel3 = sel2 = ""
            for j in range(4):
                t = 144 + h * 8 + 2 * j
                w = RAW + e * 4 + j
                k(f"v_lshlrev_b32 v{t}, 16, v{w}")
                k(f"v_and_b32 v{t+1}, 0xffff0000, v{w}")
            for j in range(4):
                t = 144 + h * 8 + 2 * j
                k(f"v_pk_fma_f32 v[{64+2*j}:{65+2*j}], v[{t}:{t+1}], v[{SBR+2*q}:{SBR+2*q+1}], v[{64+2*j}:{65+2*j}] {sel3}")
            for j in range(4):
                t = 144 + h * 8 + 2 * j
                k(f"v_pk_mul_f32 v[{t}:{t+1}], v[{t}:{t+1}], v[{CBR+2*q}:{CBR+2*q+1}] {sel2}")
        for cc in range(8):
            k(f"v_cvt_pk_bf16_f32 v{OUTR+4*cc+q}, v{144+cc}, v{152+cc}")
        for cc in range(8):
            k(f"v_dot2_f32_bf16 v{72+cc}, v{OUTR+4*cc+q}, s28, v{72+cc}")
    for cc in range(8):
        k(f"buffer_store_dwordx4 v[{OUTR+4*cc}:{OUTR+3+4*cc}], v7, s[16:19], s23 offen offset:{16*cc}")
    k.stamp(11)
    for cc in range(8):
        k(f"v_permlane16_swap_b32 v{72+cc}, v{64+cc}")
    for cc in range(8):
        k(f"v_add_f32 v{72+cc}, v{72+cc}, v{64+cc}")
    for cc in range(4):
        k(f"v_permlane32_swap_b32 v{72+cc}, v{76+cc}")
    for cc in range(4):
        k(f"v_add_f32 v{72+cc}, v{72+cc}, v{76+cc}")
    for cc in range(4):
        k(f"buffer_store_dword v{72+cc}, v6, s[24:27], s21 offen offset:{64*cc}")
    k.label(L_end)
    k.endpgm()
    k.label("kab_oob")
    k("s_endpgm")
    return k
```

```python
from gfx import Kernel
from layout import *
from common import f32, LOG2E
import math

import os
PF_FLAGS = os.environ.get('PF_FLAGS', 'nt')
C_GRID = 256
C_BLOCK = 512
SB = 0
ZB = 512
NB = ZB + 1024
AB = 4096
BB = AB + 65536
BSTG = 12288
NST = 7
C_LDS = BB + BSTG * NST

GC0 = -LOG2E * 2 * math.sqrt(2 / math.pi)
GC1 = GC0 * 0.044715

X, Y = 24, 44
ACC = 104
CSR = 228
R4 = 140
YK = 156
SS = 180
TP = 196
PK = 204


def ln_finalize(k, S, Q, t, inv_n, eps):
    k(f"v_mul_f32 v{S}, {inv_n}, v{S}")
    k(f"v_mul_f32 v{Q}, {inv_n}, v{Q}")
    k(f"v_fma_f32 v{Q}, -v{S}, v{S}, v{Q}")
    k(f"v_max_f32 v{Q}, 0, v{Q}")
    k(f"v_cvt_pk_bf16_f32 v{t}, v{S}, v{Q}")
    k(f"v_lshlrev_b32 v{S}, 16, v{t}")
    k(f"v_and_b32 v{Q}, 0xffff0000, v{t}")
    k(f"v_add_f32 v{Q}, {eps}, v{Q}")
    k(f"v_cvt_pk_bf16_f32 v{Q}, v{Q}, v{Q}")
    k(f"v_and_b32 v{Q}, 0xffff0000, v{Q}")
    k(f"v_sqrt_f32 v{Q}, v{Q}")
    k(f"v_cvt_pk_bf16_f32 v{Q}, v{Q}, v{Q}")
    k(f"v_and_b32 v{Q}, 0xffff0000, v{Q}")
    k(f"v_rcp_f32 v{Q}, v{Q}")


def gelu_batch(k, ps):
    for (x, t, p) in ps:
        k(f"v_pk_mul_f32 v[{t}:{t+1}], v[{x}:{x+1}], v[{x}:{x+1}]")
    for (x, t, p) in ps:
        k(f"v_pk_fma_f32 v[{t}:{t+1}], v[{t}:{t+1}], s[60:61], s[60:61] op_sel:[0,1,0] op_sel_hi:[1,1,0]")
    for (x, t, p) in ps:
        k(f"v_pk_mul_f32 v[{t}:{t+1}], v[{t}:{t+1}], v[{x}:{x+1}]")
    for (x, t, p) in ps:
        k(f"v_exp_f32 v{t}, v{t}")
        k(f"v_exp_f32 v{t+1}, v{t+1}")
    for (x, t, p) in ps:
        k(f"v_pk_add_f32 v[{t}:{t+1}], v[{t}:{t+1}], 1.0 op_sel_hi:[1,0]")
    for (x, t, p) in ps:
        k(f"v_rcp_f32 v{t}, v{t}")
        k(f"v_rcp_f32 v{t+1}, v{t+1}")
    for (x, t, p) in ps:
        k(f"v_pk_mul_f32 v[{x}:{x+1}], v[{x}:{x+1}], v[{t}:{t+1}]")
    for (x, t, p) in ps:
        k(f"v_cvt_pk_bf16_f32 v{p}, v{x}, v{x+1}")


def kernel_C():
    k = Kernel("kc_kernel", 2, 23)
    L_end = "kc_end"
    k(f"s_cmp_ge_u32 s2, {C_GRID}")
    k(f"s_cbranch_scc1 kc_oob")
    k.start()
    k("s_load_dwordx2 s[36:37], s[0:1], 128")
    k("s_load_dwordx2 s[38:39], s[0:1], 72")
    k("v_and_b32 v1, 63, v0")
    k("v_lshrrev_b32 v2, 6, v0")
    k("v_readfirstlane_b32 s11, v2")
    k("s_and_b32 s4, s2, 7")
    k("s_lshr_b32 s5, s2, 3")
    k("s_lshr_b32 s6, s5, 3")
    k("s_lshl_b32 s4, s4, 2")
    k("s_add_u32 s4, s4, s6")
    k("s_and_b32 s5, s5, 7")
    k("v_lshlrev_b32 v4, 4, v1")
    k("s_and_b32 s3, s11, 3")
    k("s_lshr_b32 s7, s3, 1")
    k("s_and_b32 s8, s3, 1")
    k("s_mul_i32 s6, s5, 5")
    k("s_min_u32 s40, s5, 3")
    k("s_add_u32 s40, s40, s6")
    k("s_add_u32 s40, s40, 43")
    k("s_max_u32 s41, s5, 5")
    k("s_add_u32 s41, s41, s6")
    k("s_sub_u32 s41, s41, 5")
    k("s_cmp_lt_u32 s5, 3")
    k("s_cselect_b32 s42, 6, 5")
    k("s_cmp_ge_u32 s5, 5")
    k("s_cselect_b32 s43, 6, 5")
    k("v_and_b32 v3, 15, v1")
    k("v_lshrrev_b32 v9, 4, v1")
    k("v_bfe_u32 v15, v1, 2, 2")
    k("v_lshl_add_u32 v16, v9, 3, v15")
    k("v_lshlrev_b32 v16, 7, v16")
    k("v_and_b32 v17, 3, v1")
    k("v_lshl_add_u32 v16, v17, 3, v16")
    k(f"v_add_u32 v16, {AB}, v16")
    k("v_lshrrev_b32 v15, 1, v15")
    k("v_and_b32 v17, 1, v9")
    k("v_lshl_or_b32 v15, v17, 1, v15")
    k(f"s_mov_b32 s27, {f32(1e-5)}")
    k("s_cmp_lt_u32 s11, 4")
    k("s_cbranch_scc1 kc_comp")

    def mk_srd(d, offreg, nreg):
        k(f"s_add_u32 s{d}, s36, {offreg}")
        k(f"s_addc_u32 s{d+1}, s37, 0")
        k(f"s_and_b32 s{d+1}, s{d+1}, 0xffff")
        k(f"s_mov_b32 s{d+2}, {nreg}")
        k(f"s_mov_b32 s{d+3}, 0x00020000")

    k("v_lshrrev_b32 v10, 3, v1")
    k("v_and_b32 v8, 2, v10")
    k("s_lshl_b32 s16, s8, 2")
    k("v_or_b32 v8, s16, v8")
    k("v_and_b32 v11, 7, v1")
    k("v_xor_b32 v8, v8, v11")
    k("v_lshlrev_b32 v8, 4, v8")
    k("s_lshl_b32 s16, s3, 3")
    k("v_add_u32 v10, s16, v10")
    k("v_lshl_add_u32 v8, v10, 12, v8")
    k("s_mul_i32 s16, s8, 49152")
    k("v_add_u32 v5, s16, v4")
    k("v_add_u32 v6, 16384, v5")
    k("v_add_u32 v7, 32768, v5")
    k("s_lshl_b32 s21, s4, 7")
    k("s_lshl_b32 s22, s3, 10")
    k(f"s_add_u32 s22, s22, {AB}")
    k("s_mul_i32 s23, s3, 3072")
    k(f"s_add_u32 s23, s23, {BB}")
    k("s_lshl_b32 s24, s7, 10")
    k("s_waitcnt lgkmcnt(0)")
    k.srd(12, 36, 512 * 4096, WS_X1T)
    for p in range(2):
        k(f"s_lshl_b32 s16, s{40+p}, 14")
        k(f"s_add_u32 s16, s16, {WS_WPF}")
        k(f"s_lshl_b32 s17, s{42+p}, 14")
        mk_srd(64 + 4 * p, "s16", "s17")

    cnt = []

    def dma(s, fill=()):
        p, sl = s // 8, s % 8
        n = 0
        fill = list(fill)
        per = (len(fill) + (4 if p == 0 else 2)) // (5 if p == 0 else 3)

        def f_():
            for _ in range(per):
                if fill:
                    k(fill.pop(0))
        if p == 0:
            for kk in range(2):
                kap = 2 * sl + kk
                k(f"s_add_u32 m0, s22, {kap*4096}")
                k(f"s_add_u32 s25, s21, {kap*32*4096}")
                k("buffer_load_dwordx4 v8, s[12:15], s25 offen lds")
                f_()
                n += 1
        k(f"s_add_u32 s25, s24, {sl*2048}")
        for i in range(3):
            k(f"s_add_u32 m0, s23, {(s % NST)*BSTG + i*1024}")
            k("s_nop 0")
            k(f"buffer_load_dwordx4 v{5+i}, s[{64+4*p}:{67+4*p}], s25 offen lds")
            f_()
            n += 1
        assert not fill
        state["vm"] += n
        cnt.append(state["vm"])

    state = {"vm": 0}
    PRO = int(os.environ.get('PRO', 4))
    for s in range(PRO):
        dma(s)
    k.stamp(2)
    k("v_xor_b32 v17, s3, v15")
    k("v_lshl_add_u32 v14, v17, 5, v16")
    for r in (20, 21, 12, 13):
        k(f"v_mov_b32 v{r}, 0")
    k("s_mov_b32 s26, 0x3f803f80")
    k.srd(28, 36, 2048 * 1024, WS_X1N)
    k.srd(32, 36, 131072, WS_XST)
    k("s_lshl_b32 s44, s4, 12")
    k("s_lshl_b32 s45, s5, 9")
    k("s_add_u32 s45, s45, s44")
    k("v_lshlrev_b32 v18, 3, v1")

    def waitstage(s):
        k(f"s_waitcnt vmcnt({state['vm'] - cnt[s]})")

    def stats(s):
        for kk in range(2):
            for h in range(2):
                x = 24 + (s & 1) * 8 + kk * 4 + h * 2
                k(f"ds_read_b64_tr_b16 v[{x}:{x+1}], v14 offset:{(2*s+kk)*4096 + h*512}")

    def stats2(s):
        out = []
        for j in range(8):
            a_, b_ = ((20, 21), (12, 13))[j & 1]
            x = 24 + (s & 1) * 8 + j
            out.append(f"v_dot2_f32_bf16 v{a_}, v{x}, s26, v{a_}")
            out.append(f"v_dot2_f32_bf16 v{b_}, v{x}, v{x}, v{b_}")
        return out

    nxt_stage = PRO
    k("s_setprio 2")
    for j in range(9):
        waitstage(j)
        k("s_barrier")
        if j in (4,):
            k.stamp(5 + j)
        fill = ["s_waitcnt lgkmcnt(0)"] + stats2(j - 1) if j >= 1 else []
        if os.environ.get("NOSTAT"): fill = []
        todo = [t for t in range(nxt_stage, min(j + 5, 15) + 1)][:1]
        if j == 8:
            for x in fill:
                k(x)
            fill = []
            k("v_add_f32 v20, v20, v12")
            k("v_add_f32 v21, v21, v13")
            for r in (20, 21):
                k(f"v_mov_b32 v17, v{r}")
                k(f"v_permlane16_swap_b32 v17, v{r}")
                k(f"v_add_f32 v{r}, v{r}, v17")
                k(f"v_mov_b32 v17, v{r}")
                k(f"v_permlane32_swap_b32 v17, v{r}")
                k(f"v_add_f32 v{r}, v{r}, v17")
            k(f"s_mov_b32 s46, {f32(1.0/512)}")
            ln_finalize(k, 20, 21, 17, "s46", "s27")
            k("v_mul_f32 v20, v20, v21")
            k("s_lshl_b32 s16, s3, 6")
            k("v_lshl_add_u32 v17, v3, 2, s16")
            k(f"ds_write_b32 v17, v21 offset:{SB}")
            k(f"ds_write_b32 v17, v20 offset:{SB+256}")
            k("s_waitcnt lgkmcnt(0)")
            k("s_barrier")
            k("s_setprio 0")
            todo = list(range(nxt_stage, 15))
        for t in todo:
            dma(t, fill)
            fill = []
            nxt_stage = t + 1
        for x in fill:
            k(x)
        if j < 8:
            stats(j)
    k("s_lshl_b32 s25, s5, 13")
    k("v_add_u32 v17, s25, v14")
    for q in range(2):
        for h in range(2):
            x = 24 + q * 4 + h * 2
            k(f"ds_read_b64_tr_b16 v[{x}:{x+1}], v17 offset:{q*4096 + h*512}")
    k("v_lshrrev_b32 v10, 2, v3")
    k("v_lshlrev_b32 v10, 3, v10")
    k("v_and_b32 v11, 3, v3")
    k("v_add_u32 v10, v10, v11")
    k("v_lshlrev_b32 v10, 10, v10")
    k("v_lshl_add_u32 v10, v9, 4, v10")
    k("s_lshl_b32 s25, s7, 5")
    k("s_lshl_b32 s16, s8, 2")
    k("s_add_u32 s25, s25, s16")
    k("s_lshl_b32 s16, s4, 6")
    k("s_add_u32 s25, s25, s16")
    k("s_lshl_b32 s25, s25, 10")
    k("s_lshl_b32 s16, s5, 7")
    k("s_add_u32 s25, s25, s16")
    k("s_waitcnt lgkmcnt(0)")
    k("buffer_store_dwordx4 v[24:27], v10, s[28:31], s25 offen")
    k("buffer_store_dwordx4 v[28:31], v10, s[28:31], s25 offen offset:64")
    state["vm"] += 2
    k("s_barrier")
    k.stamp(3)
    k("s_cmp_eq_u32 s3, 0")
    k("s_cselect_b32 s34, s34, 0")
    k(f"ds_read_b64 v[32:33], v18 offset:{ZB}")
    k(f"ds_read_b64 v[34:35], v18 offset:{ZB+512}")
    k("s_waitcnt lgkmcnt(0)")
    k("v_pk_add_f32 v[32:33], v[32:33], v[34:35]")
    k("buffer_store_dwordx2 v[32:33], v18, s[32:35], s45 offen sc1")
    state["vm"] += 1

    def poll_loads():
        for p in range(8):
            k(f"buffer_load_dwordx2 v[{32+2*p}:{33+2*p}], v18, s[32:35], s44 offen offset:{p*512} sc1")

    for s in range(8, 16):
        if s < 15:
            waitstage(s + 1)
        k("s_barrier")
        if s == 9:
            dma(15)
        if s == 12:
            poll_loads()
            state["vm"] += 8
    k("s_cmp_lg_u32 s3, 0")
    k("s_cbranch_scc1 kc_lfin")
    k("s_mov_b32 s47, 0")
    k.label("kc_poll")
    k("s_waitcnt vmcnt(0)")
    k("v_max3_u32 v48, v33, v35, v37")
    k("v_max3_u32 v49, v39, v41, v43")
    k("v_max3_u32 v48, v48, v45, v47")
    k("v_max_u32 v48, v48, v49")
    k("v_cmp_eq_u32 vcc, -1, v48")
    k("s_cbranch_vccz kc_got")
    k("s_add_u32 s47, s47, 1")
    k("s_cmp_ge_u32 s47, 0x40000")
    k("s_cbranch_scc1 kc_got")
    poll_loads()
    k("s_branch kc_poll")
    k.label("kc_got")
    k.stamp(4)
    for s_ in (4, 2, 1):
        for p in range(s_):
            k(f"v_pk_add_f32 v[{32+2*p}:{33+2*p}], v[{32+2*p}:{33+2*p}], v[{32+2*(p+s_)}:{33+2*(p+s_)}]")
    k(f"s_mov_b32 s46, {f32(1.0/688)}")
    ln_finalize(k, 32, 33, 48, "s46", "s27")
    k("v_mul_f32 v32, -v32, v33")
    k("v_lshlrev_b32 v17, 2, v1")
    k(f"ds_write_b32 v17, v33 offset:{NB}")
    k(f"ds_write_b32 v17, v32 offset:{NB+256}")
    k("s_waitcnt lgkmcnt(0)")
    k.label("kc_lfin")
    k("s_barrier")
    k.endpgm()

    k.label("kc_comp")
    k("s_mul_i32 s16, s8, 3072")
    k("v_lshlrev_b32 v5, 6, v3")
    k("v_lshl_add_u32 v5, v9, 4, v5")
    k("v_add_u32 v5, s16, v5")
    k("s_mul_i32 s16, s8, 196608")
    k("v_add_u32 v6, s16, v4")
    k("v_add_u32 v7, 0x10000, v6")
    k("v_add_u32 v8, 0x20000, v6")
    k("s_lshl_b32 s29, s4, 1")
    k("s_add_u32 s29, s29, s7")
    k("s_lshl_b32 s29, s29, 10")
    k("s_waitcnt lgkmcnt(0)")
    for p in range(2):
        for cb in range(2):
            k(f"s_lshl_b32 s16, s{40+p}, 10")
            k(f"s_add_u32 s16, s16, {WS_CSB + cb*CSB_B}")
            k(f"s_lshl_b32 s17, s{42+p}, 10")
            mk_srd(64, "s16", "s17")
            for t in range(3):
                r = X + 4 * (p * 6 + 2 * t + cb)
                k(f"buffer_load_dwordx4 v[{r}:{r+3}], v5, s[64:67], 0 offen offset:{t*1024}")
    for p in range(2):
        k(f"s_lshl_b32 s16, s{40+p}, 16")
        k(f"s_add_u32 s16, s16, {WS_ZF}")
        k(f"s_lshl_b32 s17, s{42+p}, 16")
        mk_srd(44 + 4 * p, "s16", "s17")
    for t in range(2):
        k(f"s_lshl_b32 s16, s7, 1")
        k(f"s_add_u32 s16, s16, {t}")
        k("v_xor_b32 v17, s16, v15")
        k(f"v_lshl_add_u32 v{10+t}, v17, 5, v16")
    k("s_mul_i32 s16, s8, 3072")
    k(f"s_add_u32 s16, s16, {BB}")
    k("v_add_u32 v12, s16, v4")
    k("v_mov_b32 v18, v10")
    k("v_mov_b32 v19, v11")
    k("v_mov_b32 v20, v12")
    for r in range(24):
        k(f"v_mov_b32 v{ACC+r}, 0")
    for r in range(16):
        k(f"v_mov_b32 v{SS+r}, 0")
    k(f"s_mov_b32 s60, {f32(GC0)}")
    k(f"s_mov_b32 s61, {f32(GC1)}")
    k("s_mov_b32 s70, 0")
    k("s_mov_b32 s71, 0")
    k("s_lshl_b32 s16, s7, 7")
    k("v_lshl_add_u32 v13, v9, 4, s16")

    def rd(S, kk):
        out = []
        for t in range(2):
            for h in range(2):
                out.append(f"ds_read_b64_tr_b16 v[{S+4*t+2*h}:{S+4*t+2*h+1}], v{18+t} offset:{kk*4096 + h*512}")
        for t in range(3):
            out.append(f"ds_read_b128 v[{S+8+4*t}:{S+11+4*t}], v20 offset:{kk*6144 + t*1024}")
        return out

    def mf(S):
        out = []
        for t in range(3):
            for r in range(2):
                a = ACC + (r * 3 + t) * 4
                out.append(f"v_mfma_f32_16x16x32_bf16 v[{a}:{a+3}], v[{S+4*r}:{S+4*r+3}], v[{S+8+4*t}:{S+11+4*t}], v[{a}:{a+3}]")
        return out

    def affine(p, dst):
        for t in range(3):
            c = CSR + 2 * (p * 6 + 2 * t)
            for r in range(2):
                for h in range(2):
                    w = dst + t * 8 + r * 4 + 2 * h
                    RM = R4 + 8 * r + 4 + 2 * h
                    k(f"v_pk_fma_f32 v[{w}:{w+1}], v[{RM}:{RM+1}], v[{c}:{c+1}], v[{c+2}:{c+3}] op_sel_hi:[1,0,0] neg_lo:[1,0,0] neg_hi:[1,0,0]")
        for t in range(3):
            for r in range(2):
                for h in range(2):
                    x = ACC + (r * 3 + t) * 4 + 2 * h
                    w = dst + t * 8 + r * 4 + 2 * h
                    R_ = R4 + 8 * r + 2 * h
                    k(f"v_pk_fma_f32 v[{w}:{w+1}], v[{x}:{x+1}], v[{R_}:{R_+1}], v[{w}:{w+1}]")

    k("s_waitcnt vmcnt(0)")
    for i in range(12):
        r = X + 4 * i
        k(f"v_pk_add_f32 v[{r}:{r+1}], v[{r}:{r+1}], v[{r+2}:{r+3}]")
    for i in range(12):
        r = X + 4 * i
        k(f"v_add_f32 v{r}, v{r}, v{r+1}")
    for i in range(12):
        k(f"v_mov_b32 v{X+4*i+1}, v{X+4*i}")
    for i in range(12):
        k(f"v_permlane16_swap_b32 v{X+4*i}, v{X+4*i+1}")
    for i in range(12):
        k(f"v_add_f32 v{X+4*i}, v{X+4*i}, v{X+4*i+1}")
    for i in range(12):
        k(f"v_mov_b32 v{X+4*i+1}, v{X+4*i}")
    for i in range(12):
        k(f"v_permlane32_swap_b32 v{X+4*i}, v{X+4*i+1}")
    for i in range(12):
        k(f"v_add_f32 v{CSR+2*i}, v{X+4*i}, v{X+4*i+1}")
    k.stamp(2)
    k("s_barrier")
    k.stamp(3)
    for x in rd(X, 0) + rd(Y, 1):
        k(x)
    k("s_mov_b32 s28, 0")
    k("s_mov_b32 s70, 8192")
    k(f"s_mov_b32 s71, {BSTG}")
    k("v_add_u32 v18, s70, v10")
    k("v_add_u32 v19, s70, v11")
    k("v_add_u32 v20, s71, v12")
    k(".p2align 6")
    k.label("kc_loop")
    for par in range(2):
        cur, nxt = par * 40, (1 - par) * 40
        for (S, kk) in ((X, 0), (Y, 1)):
            k("s_waitcnt lgkmcnt(7)")
            if kk == 0:
                k("s_barrier")
            m = mf(S + cur)
            rr = rd(S + nxt, kk)
            r = [rr[0:2], rr[2:4]] + [[x] for x in rr[4:]] + [[]]
            if kk == 0:
                r[2] += ["s_add_u32 s70, s70, 8192"]
                r[3] += ["s_and_b32 s70, s70, 0xffff"]
                r[4] += [f"s_add_u32 s71, s71, {BSTG}"]
                r[5] += [f"s_cmp_eq_u32 s71, {BSTG*NST}", "s_cselect_b32 s71, 0, s71"]
            else:
                r[2] += ["v_add_u32 v18, s70, v10"]
                r[3] += ["v_add_u32 v19, s70, v11"]
                r[5] += ["v_add_u32 v20, s71, v12"]
            for i, x in enumerate(m):
                k(x)
                for y in r[i]:
                    k(y)
    k("s_add_u32 s28, s28, 2")
    k("s_cmp_eq_u32 s28, 16")
    k("s_cbranch_scc1 kc_last")
    k("s_cmp_lg_u32 s28, 8")
    k("s_cbranch_scc1 kc_loop")
    k("s_barrier")
    k.stamp(4)
    for r in range(2):
        k(f"ds_read_b128 v[{R4+8*r}:{R4+8*r+3}], v13 offset:{SB + r*64}")
        k(f"ds_read_b128 v[{R4+8*r+4}:{R4+8*r+7}], v13 offset:{SB + 256 + r*64}")
    k("s_waitcnt vmcnt(0) lgkmcnt(0)")
    affine(0, YK)
    for r in range(24):
        k(f"v_mov_b32 v{ACC+r}, 0")
    for t in range(3):
        ps = [(YK + 8 * t + 2 * q, TP + 2 * q, PK + q) for q in range(4)]
        for (x, tm, p) in ps:
            k(f"v_cvt_pk_bf16_f32 v{tm}, v{x}, v{x+1}")
        for (x, tm, p) in ps:
            k(f"v_lshlrev_b32 v{x}, 16, v{tm}")
            k(f"v_and_b32 v{x+1}, 0xffff0000, v{tm}")
        gelu_batch(k, ps)
        for (x, tm, p) in ps:
            k(f"v_lshlrev_b32 v{x}, 16, v{p}")
            k(f"v_and_b32 v{x+1}, 0xffff0000, v{p}")
        for q, (x, tm, p) in enumerate(ps):
            ss = SS + 2 * q
            k(f"v_pk_add_f32 v[{ss}:{ss+1}], v[{ss}:{ss+1}], v[{x}:{x+1}]")
            k(f"v_pk_fma_f32 v[{ss+8}:{ss+9}], v[{x}:{x+1}], v[{x}:{x+1}], v[{ss+8}:{ss+9}]")
    src = lambda r, e, b: SS + 8 * b + 4 * r + e
    for e in range(4):
        for b in range(2):
            d = TP + e * 2 + b
            k(f"v_add_f32_dpp v{d}, v{src(0,e,b)}, v{src(0,e,b)} row_ror:8 row_mask:0xf bank_mask:0x3")
            k(f"v_add_f32_dpp v{d}, v{src(1,e,b)}, v{src(1,e,b)} row_ror:8 row_mask:0xf bank_mask:0xc")
    for m in range(4):
        k(f"v_add_f32_dpp v{SS+m}, v{TP+m}, v{TP+m} row_half_mirror row_mask:0xf bank_mask:0x5")
        k(f"v_add_f32_dpp v{SS+m}, v{TP+4+m}, v{TP+4+m} row_half_mirror row_mask:0xf bank_mask:0xa")
    for m in range(4):
        k(f"v_add_f32_dpp v{SS+m}, v{SS+m}, v{SS+m} quad_perm:[2,3,0,1] row_mask:0xf bank_mask:0xf")
    for m in range(4):
        k(f"v_add_f32_dpp v{SS+m}, v{SS+m}, v{SS+m} quad_perm:[1,0,3,2] row_mask:0xf bank_mask:0xf")
    k("v_bfe_u32 v17, v1, 3, 1")
    k("v_lshlrev_b32 v17, 7, v17")
    k("v_lshl_add_u32 v17, v9, 5, v17")
    k("v_bfe_u32 v14, v1, 2, 1")
    k("v_lshl_add_u32 v17, v14, 4, v17")
    k("s_lshl_b32 s16, s7, 8")
    k("s_lshl_b32 s17, s8, 9")
    k("s_add_u32 s16, s16, s17")
    k("v_add_u32 v17, s16, v17")
    k(f"ds_write_b128 v17, v[{SS}:{SS+3}] offset:{ZB}")
    k("s_waitcnt lgkmcnt(0)")
    k("s_barrier")
    k.stamp(5)
    k("s_branch kc_loop")
    k.label("kc_last")
    k("s_waitcnt lgkmcnt(0)")
    k.stamp(6)
    W1 = X
    W1 = X + 40
    affine(1, W1)
    for t in range(3):
        for q in range(4):
            x = W1 + 8 * t + 2 * q
            k(f"v_cvt_pk_bf16_f32 v{PK+4*t+q}, v{x}, v{x+1}")
        k(f"buffer_store_dwordx4 v[{PK+4*t}:{PK+4*t+3}], v{6+t}, s[48:51], s29 offen")
    k.stamp(7)
    k("s_barrier")
    k.stamp(8)
    for r in range(2):
        k(f"ds_read_b128 v[{R4+8*r}:{R4+8*r+3}], v13 offset:{NB + r*64}")
        k(f"ds_read_b128 v[{R4+8*r+4}:{R4+8*r+7}], v13 offset:{NB + 256 + r*64}")
    k("s_waitcnt lgkmcnt(0)")
    for t in range(3):
        for r in range(2):
            for h in range(2):
                x = YK + t * 8 + r * 4 + 2 * h
                R_ = R4 + 8 * r + 2 * h
                k(f"v_pk_fma_f32 v[{x}:{x+1}], v[{x}:{x+1}], v[{R_}:{R_+1}], v[{R_+4}:{R_+5}]")
        for q in range(4):
            x = YK + 8 * t + 2 * q
            k(f"v_cvt_pk_bf16_f32 v{X+4*t+q}, v{x}, v{x+1}")
        k(f"buffer_store_dwordx4 v[{X+4*t}:{X+4*t+3}], v{6+t}, s[44:47], s29 offen")
    k.label(L_end)
    k.endpgm()
    k.label("kc_oob")
    k("s_endpgm")
    return k
```

```python
from gfx import Kernel
from layout import *
from common import f32
from kc import GC0, GC1, gelu_batch
from kab import PF1

D_GRID = 256
D_BLOCK = 512
STG = 20480
NST = 7
D_LDS = STG * NST
NSTAGES = 32

X, Y = 32, 52
ACC = 112
Z1 = 136
BS = 160
ZR = 168


def kernel_D():
    k = Kernel("kd_kernel", 3, 31)
    L_end = "kd_end"
    k(f"s_cmp_ge_u32 s2, {D_GRID}")
    k(f"s_cbranch_scc1 kd_oob")
    k.start()
    k("s_load_dwordx2 s[36:37], s[0:1], 128")
    k("s_load_dwordx4 s[40:43], s[0:1], 72")
    k("v_and_b32 v1, 63, v0")
    k("v_lshrrev_b32 v2, 6, v0")
    k("v_readfirstlane_b32 s11, v2")
    k("s_and_b32 s4, s2, 7")
    k("s_lshr_b32 s5, s2, 3")
    k("s_lshr_b32 s6, s5, 3")
    k("s_lshl_b32 s4, s4, 2")
    k("s_add_u32 s4, s4, s6")
    k("s_and_b32 s5, s5, 7")
    k("v_lshlrev_b32 v4, 4, v1")
    k("s_and_b32 s3, s11, 3")
    k("s_lshr_b32 s7, s3, 1")
    k("s_and_b32 s8, s3, 1")
    k("s_mul_i32 s10, s8, 3")
    k("s_lshl_b32 s10, s10, 16")
    k("v_add_u32 v5, s10, v4")
    k("v_add_u32 v6, 0x10000, v5")
    k("v_add_u32 v7, 0x20000, v5")
    k("s_mul_i32 s9, s5, 6")
    k("s_sub_u32 s10, 43, s9")
    k("s_min_u32 s10, s10, 6")
    k("s_cmp_lt_u32 s11, 4")
    k("s_cbranch_scc1 kd_comp")

    k("v_lshrrev_b32 v3, 3, v1")
    k("v_lshrrev_b32 v12, 2, v3")
    k("v_lshlrev_b32 v12, 3, v12")
    k("v_and_b32 v13, 3, v3")
    k("v_add_u32 v12, v12, v13")
    k("v_lshlrev_b32 v12, 12, v12")
    k("v_lshrrev_b32 v13, 1, v3")
    k("v_and_b32 v14, 7, v1")
    k("v_xor_b32 v13, v13, v14")
    k("v_lshl_add_u32 v10, v13, 4, v12")
    k("v_xor_b32 v13, 4, v13")
    k("v_lshl_add_u32 v11, v13, 4, v12")
    k(f"v_add_u32 v11, {16*4096}, v11")
    k("s_lshl_b32 s16, s4, 18")
    k("s_lshl_b32 s17, s7, 17")
    k("s_add_u32 s16, s16, s17")
    k("s_lshl_b32 s17, s8, 14")
    k("s_add_u32 s64, s16, s17")
    k("s_lshl_b32 s65, s7, 10")
    k("s_lshl_b32 s66, s3, 11")
    k("s_mul_i32 s67, s3, 3072")
    k("s_add_u32 s67, s67, 8192")
    k("s_mov_b32 s68, 0")
    k("s_waitcnt lgkmcnt(0)")
    k.srd(12, 40, 2048 * 4096)
    k("s_lshl_b32 s24, s9, 16")
    k(f"s_add_u32 s25, s24, {WS_ZF + 43*65536}")
    k("s_add_u32 s20, s36, s25")
    k("s_addc_u32 s21, s37, 0")
    k("s_and_b32 s21, s21, 0xffff")
    k("s_lshl_b32 s22, s10, 16")
    k("s_mov_b32 s23, 0x00020000")

    def dma():
        k("s_add_u32 s69, s68, s66")
        k("s_mov_b32 m0, s69")
        k("s_add_u32 s70, s68, s67")
        k("buffer_load_dwordx4 v10, s[12:15], s64 offen lds")
        k("s_add_u32 m0, s69, 1024")
        k(f"s_add_u32 s68, s68, {STG}")
        k("buffer_load_dwordx4 v11, s[12:15], s64 offen lds")
        k("s_mov_b32 m0, s70")
        k("s_add_u32 s64, s64, 128")
        k("buffer_load_dwordx4 v5, s[20:23], s65 offen lds")
        k("s_add_u32 m0, s70, 1024")
        k(f"s_cmp_eq_u32 s68, {STG*NST}")
        k("buffer_load_dwordx4 v6, s[20:23], s65 offen lds")
        k("s_cselect_b32 s68, 0, s68")
        k("s_add_u32 m0, s70, 2048")
        k("s_add_u32 s28, s28, 1")
        k("buffer_load_dwordx4 v7, s[20:23], s65 offen lds")
        k("s_add_u32 s65, s65, 2048")

    k("s_mov_b32 s28, 0")
    k.label("kd_lpro")
    dma()
    k(f"s_cmp_lt_u32 s28, {NST-1}")
    k("s_cbranch_scc1 kd_lpro")
    k.stamp(2)
    k(f"s_waitcnt vmcnt({5*(NST-2)})")
    k("s_barrier")
    k.label("kd_lloop")
    k(f"s_waitcnt vmcnt({5*(NST-3)})")
    k("s_barrier")
    dma()
    k(f"s_cmp_lt_u32 s28, {NSTAGES}")
    k("s_cbranch_scc1 kd_lloop")
    for i in range(NST - 1):
        k(f"s_waitcnt vmcnt({max(0, 5*(NST-3-i))})")
        k("s_barrier")
    k.endpgm()

    k.label("kd_comp")
    k("v_and_b32 v3, 15, v1")
    k("v_lshrrev_b32 v12, 4, v1")
    k("s_lshl_b32 s24, s9, 16")
    k(f"s_add_u32 s25, s24, {WS_ZF}")
    k("s_lshl_b32 s29, s4, 1")
    k("s_add_u32 s29, s29, s7")
    k("s_lshl_b32 s26, s29, 10")
    k("v_lshlrev_b32 v21, 4, v12")
    k("s_lshl_b32 s27, s29, 6")
    k("s_waitcnt lgkmcnt(0)")
    k("s_add_u32 s44, s36, s25")
    k("s_addc_u32 s45, s37, 0")
    k("s_and_b32 s45, s45, 0xffff")
    k("s_lshl_b32 s46, s10, 16")
    k("s_mov_b32 s47, 0x00020000")
    for t in range(3):
        k(f"buffer_load_dwordx4 v[{ZR+4*t}:{ZR+4*t+3}], v{5+t}, s[44:47], s26 offen")
    k.srd(52, 42, 4096)
    k("buffer_load_dwordx4 v[24:27], v21, s[52:55], s27 offen")
    NPF = (32 - PF1) // 4
    k.srd(64, 40, 2048 * 4096)
    k("s_and_b32 s68, s2, 7")
    k("s_lshl_b32 s68, s68, 20")
    k("s_lshr_b32 s69, s2, 3")
    k("s_lshl_b32 s69, s69, 15")
    k("s_add_u32 s68, s68, s69")
    k("s_lshl_b32 s69, s3, 7")
    k("s_add_u32 s68, s68, s69")
    k("v_lshrrev_b32 v13, 3, v1")
    k("v_lshlrev_b32 v13, 12, v13")
    k("v_and_b32 v14, 7, v1")
    k("v_lshl_add_u32 v13, v14, 4, v13")
    for i in range(NPF):
        k(f"buffer_load_dwordx4 v[180:183], v13, s[64:67], s68 offen offset:{PF1*128 + i*512}")
    k("v_lshrrev_b32 v13, 1, v3")
    k("v_xor_b32 v13, v13, v12")
    k("v_lshlrev_b32 v14, 7, v3")
    k("s_lshl_b32 s24, s7, 12")
    k("v_add_u32 v14, s24, v14")
    k("v_lshl_add_u32 v15, v13, 4, v14")
    k("v_xor_b32 v13, 4, v13")
    k("v_lshl_add_u32 v16, v13, 4, v14")
    k("s_mul_i32 s24, s8, 3072")
    k("s_add_u32 s24, s24, 8192")
    k("v_add_u32 v17, s24, v4")
    k("v_mov_b32 v18, v15")
    k("v_mov_b32 v19, v16")
    k("v_mov_b32 v20, v17")
    for r in range(24):
        k(f"v_mov_b32 v{ACC+r}, 0")
    k("s_mov_b32 s71, 0")
    k(f"s_mov_b32 s60, {f32(GC0)}")
    k(f"s_mov_b32 s61, {f32(GC1)}")
    k("s_mul_i32 s24, s29, 88")
    k("s_mul_i32 s25, s8, 3")
    k("s_add_u32 s25, s25, s9")
    k("s_add_u32 s24, s24, s25")
    k("s_lshl_b32 s24, s24, 9")
    k(f"s_add_u32 s24, s24, {WS_UT}")
    k("s_sub_i32 s26, 44, s25")
    k("s_max_i32 s26, s26, 0")
    k("s_min_u32 s26, s26, 3")
    k("s_lshl_b32 s26, s26, 9")
    for r in range(2):
        d = 48 + 8 * r
        k(f"s_add_u32 s{d}, s36, s24")
        k(f"s_addc_u32 s{d+1}, s37, 0")
        k(f"s_and_b32 s{d+1}, s{d+1}, 0xffff")
        k(f"s_mov_b32 s{d+2}, s26")
        k(f"s_mov_b32 s{d+3}, 0x00020000")
        if r == 0:
            k(f"s_add_u32 s24, s24, {44*512}")
    k("v_lshrrev_b32 v21, 1, v12")
    k("v_lshlrev_b32 v21, 2, v21")
    k("v_xor_b32 v21, v21, v1")
    k("v_lshlrev_b32 v21, 3, v21")
    k(f"s_waitcnt vmcnt({NPF})")
    k.stamp(2)
    for q in range(4):
        k(f"v_lshlrev_b32 v{BS+2*q}, 16, v{24+q}")
        k(f"v_and_b32 v{BS+2*q+1}, 0xffff0000, v{24+q}")
    for t in range(3):
        ps = [(Z1 + 8 * t + 2 * q, X + 2 * q, X + 8 + q) for q in range(4)]
        for q, (x, tm, p) in enumerate(ps):
            k(f"v_lshlrev_b32 v{x}, 16, v{ZR+4*t+q}")
            k(f"v_and_b32 v{x+1}, 0xffff0000, v{ZR+4*t+q}")
        gelu_batch(k, ps)
        for (x, tm, p) in ps:
            k(f"v_lshlrev_b32 v{x}, 16, v{p}")
            k(f"v_and_b32 v{x+1}, 0xffff0000, v{p}")

    def rd(S, kk):
        out = []
        for t in range(2):
            out.append(f"ds_read_b128 v[{S+4*t}:{S+4*t+3}], v{18+kk} offset:{t*2048}")
        for t in range(3):
            out.append(f"ds_read_b128 v[{S+8+4*t}:{S+11+4*t}], v20 offset:{kk*6144 + t*1024}")
        return out

    def mf(S):
        out = []
        for t in range(3):
            for r in range(2):
                a = ACC + (r * 3 + t) * 4
                out.append(f"v_mfma_f32_16x16x32_bf16 v[{a}:{a+3}], v[{S+4*r}:{S+4*r+3}], v[{S+8+4*t}:{S+11+4*t}], v[{a}:{a+3}]")
        return out

    k.stamp(3)
    k("s_barrier")
    k.stamp(4)
    for x in rd(X, 0) + rd(Y, 1):
        k(x)
    k("s_mov_b32 s28, 0")
    k(f"s_mov_b32 s71, {STG}")
    k("v_add_u32 v18, s71, v15")
    k("v_add_u32 v19, s71, v16")
    k("v_add_u32 v20, s71, v17")
    Lp = "kd_loop"
    k(".p2align 6")
    k.label(Lp)
    for par in range(2):
        cur, nxt = par * 40, (1 - par) * 40
        for (S, kk) in ((X, 0), (Y, 1)):
            k("s_waitcnt lgkmcnt(5)")
            if kk == 0:
                k("s_barrier")
            m = mf(S + cur)
            r = [[x] for x in rd(S + nxt, kk)]
            if kk == 1:
                r[0] += [f"s_add_u32 s71, s71, {STG}"]
                r[1] += [f"s_cmp_eq_u32 s71, {STG*NST}"]
                r[2] += ["s_cselect_b32 s71, 0, s71"]
                r[3] += ["v_add_u32 v18, s71, v15"]
                r[4] += ["v_add_u32 v19, s71, v16"]
                r.append(["v_add_u32 v20, s71, v17"])
            for i, x in enumerate(m):
                k(x)
                if i < len(r):
                    for y in r[i]:
                        k(y)
    k("s_add_u32 s28, s28, 2")
    k(f"s_cmp_lt_u32 s28, {NSTAGES}")
    k(f"s_cbranch_scc1 {Lp}")
    k("s_waitcnt lgkmcnt(0)")
    k.stamp(5)
    for t in range(3):
        items = [(ACC + (r * 3 + t) * 4 + 2 * h, X + 2 * r + h, 2 * r + h) for r in range(2) for h in range(2)]
        for (x, tm, q) in items:
            k(f"v_cvt_pk_bf16_f32 v{tm}, v{x}, v{x+1}")
        for (x, tm, q) in items:
            k(f"v_lshlrev_b32 v{x}, 16, v{tm}")
            k(f"v_and_b32 v{x+1}, 0xffff0000, v{tm}")
        for (x, tm, q) in items:
            k(f"v_pk_add_f32 v[{x}:{x+1}], v[{x}:{x+1}], v[{BS+2*q}:{BS+2*q+1}]")
        for (x, tm, q) in items:
            k(f"v_cvt_pk_bf16_f32 v{tm}, v{x}, v{x+1}")
        for (x, tm, q) in items:
            k(f"v_lshlrev_b32 v{x}, 16, v{tm}")
            k(f"v_and_b32 v{x+1}, 0xffff0000, v{tm}")
        for (x, tm, q) in items:
            z = Z1 + 8 * t + 2 * q
            k(f"v_pk_mul_f32 v[{x}:{x+1}], v[{x}:{x+1}], v[{z}:{z+1}]")
        for (x, tm, q) in items:
            k(f"v_cvt_pk_bf16_f32 v{Y+4*t+q}, v{x}, v{x+1}")
        for r in range(2):
            k(f"buffer_store_dwordx2 v[{Y+4*t+2*r}:{Y+4*t+2*r+1}], v21, s[{48+8*r}:{51+8*r}], 0 offen offset:{t*512}")
    k.label(L_end)
    k.endpgm()
    k.label("kd_oob")
    k("s_endpgm")
    return k
```

```python
from gfx import Kernel
from layout import *

E_GRID = 256
E_LDS = 4 * 44 * 512
WB = 64
AF = 32
ACC = 16


def kernel_E():
    k = Kernel("ke_kernel", 4, 15)
    L_end = "ke_end"
    k(f"s_cmp_ge_u32 s2, {E_GRID}")
    k(f"s_cbranch_scc1 ke_oob")
    k.start()
    k("s_load_dwordx2 s[36:37], s[0:1], 128")
    k("s_load_dwordx2 s[38:39], s[0:1], 112")
    k("v_and_b32 v1, 63, v0")
    k("v_lshrrev_b32 v2, 6, v0")
    k("v_readfirstlane_b32 s3, v2")
    k("s_and_b32 s4, s2, 7")
    k("s_lshr_b32 s5, s2, 3")
    k("s_lshr_b32 s6, s5, 3")
    k("s_lshl_b32 s4, s4, 2")
    k("s_add_u32 s4, s4, s6")
    k("s_and_b32 s5, s5, 7")
    k("v_lshlrev_b32 v4, 4, v1")
    k("s_lshl_b32 s7, s4, 2")
    k("s_add_u32 s7, s7, s3")
    k("s_mul_i32 s7, s7, 22528")
    k(f"s_add_u32 s7, s7, {WS_UT}")
    k("s_lshl_b32 s8, s5, 2")
    k("s_add_u32 s8, s8, s3")
    k("s_mul_i32 s9, s8, 22528")
    k(f"s_add_u32 s9, s9, {WS_WOF}")
    k("s_mul_i32 s10, s3, 22528")
    k("s_waitcnt lgkmcnt(0)")
    for d, o in ((12, 7), (16, 9)):
        k(f"s_add_u32 s{d}, s36, s{o}")
        k(f"s_addc_u32 s{d+1}, s37, 0")
        k(f"s_and_b32 s{d+1}, s{d+1}, 0xffff")
        k(f"s_mov_b32 s{d+2}, 22528")
        k(f"s_mov_b32 s{d+3}, 0x00020000")
    k("s_mov_b32 s11, 0")
    for ph in range(22):
        if ph % 4 == 0:
            k(f"s_add_u32 m0, s10, {ph*1024}")
            k(f"s_mov_b32 s11, {ph*1024}")
        k(f"buffer_load_dwordx4 v4, s[12:15], s11 offen offset:{(ph%4)*1024} lds")
        k(f"buffer_load_dwordx4 v[{WB+4*ph}:{WB+4*ph+3}], v4, s[16:19], s11 offen offset:{(ph%4)*1024}")
    k.stamp(2)
    k.srd(20, 36, 2048 * 1024, WS_X1N)
    k.srd(24, 36, 12288, WS_MOD)
    k.srd(28, 38, 2048 * 1024)
    k("v_and_b32 v3, 15, v1")
    k("v_lshrrev_b32 v9, 4, v1")
    k("v_lshrrev_b32 v10, 2, v3")
    k("v_lshlrev_b32 v10, 3, v10")
    k("v_and_b32 v11, 3, v3")
    k("v_add_u32 v10, v10, v11")
    k("v_lshlrev_b32 v10, 10, v10")
    k("v_lshl_add_u32 v10, v9, 3, v10")
    k("s_lshl_b32 s32, s4, 16")
    k("s_lshl_b32 s33, s8, 5")
    k("s_add_u32 s32, s32, s33")
    k("s_add_u32 s33, s32, 4096")
    k("s_add_u32 s34, s32, 32768")
    k("s_add_u32 s35, s32, 36864")
    for rho in range(4):
        k(f"buffer_load_dwordx2 v[{152+2*rho}:{153+2*rho}], v10, s[20:23], s{32+rho} offen")
    k("v_lshlrev_b32 v11, 4, v9")
    k("s_lshl_b32 s40, s8, 6")
    k(f"s_add_u32 s40, s40, {5*2048}")
    k("buffer_load_dwordx4 v[160:163], v11, s[24:27], s40 offen")
    k("v_bfe_u32 v5, v1, 2, 2")
    k("v_and_b32 v6, 3, v1")
    k("v_and_b32 v7, 1, v9")
    k("v_lshl_add_u32 v5, v7, 3, v5")
    k("v_lshrrev_b32 v7, 1, v6")
    k("v_lshl_add_u32 v5, v7, 2, v5")
    k("v_lshl_add_u32 v5, v6, 4, v5")
    k("v_lshlrev_b32 v5, 3, v5")
    k("v_lshrrev_b32 v7, 1, v9")
    k("v_lshl_add_u32 v5, v7, 9, v5")
    k("v_xor_b32 v6, 32, v5")
    k(f"v_add_u32 v7, {2*22528}, v5")
    k(f"v_add_u32 v8, {2*22528}, v6")

    def reads(ph):
        s = ph & 1
        out = []
        for rho in range(4):
            for h in range(2):
                x = AF + s * 16 + rho * 4 + 2 * h
                out.append(f"ds_read_b64_tr_b16 v[{x}:{x+1}], v{5 + h + 2*(rho>>1)} offset:{(rho&1)*22528 + ph*1024}")
        return out

    groups = [(0, 4), (4, 10), (10, 16), (16, 22)]
    for gi, (a, b) in enumerate(groups):
        k(f"s_waitcnt vmcnt({2*(22-b) + 5})")
        k("s_barrier")
        for x in reads(a):
            k(x)
        for ph in range(a, b):
            k("s_waitcnt lgkmcnt(0)")
            fill = reads(ph + 1) if ph + 1 < b else []
            n = 0
            for rho in range(4):
                acc = ACC + 4 * rho
                af = AF + (ph & 1) * 16 + rho * 4
                c = "0" if ph == 0 else f"v[{acc}:{acc+3}]"
                k(f"v_mfma_f32_16x16x32_bf16 v[{acc}:{acc+3}], v[{WB+4*ph}:{WB+4*ph+3}], v[{af}:{af+3}], {c}")
                for _ in range(2):
                    if n < len(fill):
                        k(fill[n]); n += 1
    k.stamp(3)
    k("s_waitcnt vmcnt(0)")
    items = [(ACC + 4 * rho + 2 * h, AF + 2 * (2 * rho + h), rho, h) for rho in range(4) for h in range(2)]
    for (x, t, rho, h) in items:
        k(f"v_cvt_pk_bf16_f32 v{t}, v{x}, v{x+1}")
    for (x, t, rho, h) in items:
        k(f"v_lshlrev_b32 v{x}, 16, v{t}")
        k(f"v_and_b32 v{x+1}, 0xffff0000, v{t}")
    for (x, t, rho, h) in items:
        k(f"v_pk_mul_f32 v[{x}:{x+1}], v[{x}:{x+1}], v[{160+2*h}:{161+2*h}]")
    for (x, t, rho, h) in items:
        k(f"v_cvt_pk_bf16_f32 v{t}, v{x}, v{x+1}")
    for (x, t, rho, h) in items:
        k(f"v_lshlrev_b32 v{x}, 16, v{t}")
        k(f"v_and_b32 v{x+1}, 0xffff0000, v{t}")
    for (x, t, rho, h) in items:
        z = 152 + 2 * rho + h
        k(f"v_lshlrev_b32 v{t}, 16, v{z}")
        k(f"v_and_b32 v{t+1}, 0xffff0000, v{z}")
    for (x, t, rho, h) in items:
        k(f"v_pk_add_f32 v[{x}:{x+1}], v[{x}:{x+1}], v[{t}:{t+1}]")
    for (x, t, rho, h) in items:
        k(f"v_cvt_pk_bf16_f32 v{48+2*rho+h}, v{x}, v{x+1}")
    for rho in range(4):
        k(f"buffer_store_dwordx2 v[{48+2*rho}:{49+2*rho}], v10, s[28:31], s{32+rho} offen")
    k.label(L_end)
    k.endpgm()
    k.label("ke_oob")
    k("s_endpgm")
    return k
```

```python
WS_MOD = 0x0000000
WS_BAR = 0x0008000
WS_XST = 0x0020000
WS_MP  = 0x0040000
WS_CSB = 0x0080000
CSB_B  = 1408 * 4
KR_CP  = 4160
KR_CH  = 2 * KR_CP
WS_X1T = 0x0100000
WS_X1N = 0x0300000
WS_WPF = 0x0500000
WS_WOF = 0x0660000
WS_ZF  = 0x0800000
WS_UT  = 0x0E00000
WS_XT  = 0x1100000
WS_ST1 = 0x1300000
WS_END = 0x1500000
```

```python
import sys, os
import gfx
gfx.PROF = bool(os.environ.get('PROF'))
from gfx import Module
HEADER = open("adaLN_cond__ssm_conv_s4d__mixer_gmlp__prompt.s.ref").read().split("; Override launch")[0]
def build(path, upto=99):
    m = Module()
    import kab
    m.add(kab.kernel_AB(), kab.AB_GRID, kab.AB_BLOCK, kab.AB_LDS)
    if upto >= 2:
        import kc
        m.add(kc.kernel_C(), kc.C_GRID, kc.C_BLOCK, kc.C_LDS)
    if upto >= 3:
        import kd
        m.add(kd.kernel_D(), kd.D_GRID, kd.D_BLOCK, kd.D_LDS)
    if upto >= 4 and not getattr(kd, "FUSE_E", False):
        import ke
        m.add(ke.kernel_E(), ke.E_GRID, 256, ke.E_LDS)
    if os.environ.get("TWICE"):
        tw = os.environ["TWICE"]
        m.launches = [l for l in m.launches for _ in range(2 if any(("kernel=k%s_" % c) in l for c in tw.split(",")) else 1)]
    open(path, "w").write(m.text(HEADER))
if __name__ == "__main__":
    upto = int(sys.argv[1]) if len(sys.argv) > 1 else 99
    build(sys.argv[2] if len(sys.argv) > 2 else "k.s", upto)
```

```python
from gfx import Kernel
from layout import *
from common import *
import os

AB_GRID = 256
AB_BLOCK = 512
CNT = 0
PAR = 64
KB = 128
HB = KB + 2 * KR_CH
XB = HB + 9216
RB = XB + 8192
REC = RB
T16 = RB + 12288
PT = RB + 16384
PTS = 3136
SJ = PT + 8 * PTS
AB_LDS = SJ
PF1 = int(os.environ.get('PF1', 32))
C_K1, C_K2, C_A, C_R, C_W, C_L, C_G, C_P, C_W2, C_X = 0, 4, 8, 12, 20, 24, 28, 32, 36, 40
LNP = SJ
SPIN = 0x100000
NBAR = 1
RAW = 96
OUTR = 192
SBR, CBR = 176, 184
XCOL_FLAGS = os.environ.get("XCOL_FLAGS", "")


def lds_signal(k, addr_v, one_v):
    k("s_waitcnt lgkmcnt(0)")
    k("s_mov_b64 exec, 1")
    k(f"ds_add_u32 v{addr_v}, v{one_v}")
    k("s_mov_b64 exec, -1")


def lds_wait(k, addr_v, tmp_v, target, st="s90"):
    L = k.newlabel("w")
    k.label(L)
    k(f"ds_read_b32 v{tmp_v}, v{addr_v}")
    k("s_waitcnt lgkmcnt(0)")
    k(f"v_readfirstlane_b32 {st}, v{tmp_v}")
    k(f"s_cmp_lt_u32 {st}, {target}")
    k(f"s_cbranch_scc1 {L}")


def gpoll(k, name, b, sleep=2):
    k("s_mov_b32 s56, 0")
    k(f"s_mov_b32 s91, {b*16384}")
    k.label(name)
    k(f"s_sleep {sleep}")
    k("buffer_load_dword v87, v89, s[40:43], s91 offen sc1")
    k("s_add_u32 s56, s56, 1")
    k("s_waitcnt vmcnt(0)")
    k("v_cmp_gt_u32 vcc, 16, v87")
    k(f"s_cbranch_vccz {name}_ok")
    k(f"s_cmp_lt_u32 s56, {SPIN}")
    k(f"s_cbranch_scc1 {name}")
    k.label(name + "_ok")


def kernel_AB():
    k = Kernel("kab_kernel", 0, 250)
    L_end = "kab_end"
    k(f"s_cmp_ge_u32 s2, {AB_GRID}")
    k("s_cbranch_scc1 kab_oob")
    k.start()
    k("s_load_dwordx16 s[64:79], s[0:1], 0")
    k("s_load_dwordx8 s[80:87], s[0:1], 64")
    k("s_load_dwordx4 s[92:95], s[0:1], 96")
    k("s_load_dwordx4 s[32:35], s[0:1], 120")
    if not os.environ.get("NOCPF"):
        k.code_prefetch(240, 12, 8)
    k("v_and_b32 v1, 63, v0")
    k("v_lshrrev_b32 v2, 6, v0")
    k("v_readfirstlane_b32 s11, v2")
    k("s_and_b32 s4, s2, 7")
    k("s_lshl_b32 s4, s4, 5")
    k("s_lshr_b32 s5, s2, 3")
    k("s_add_u32 s4, s4, s5")
    k("s_and_b32 s3, s11, 3")
    k("s_lshr_b32 s88, s4, 1")
    k("s_lshl_b32 s88, s88, 2")
    k("s_and_b32 s89, s4, 1")
    k("s_add_u32 s88, s88, s89")
    k("v_lshlrev_b32 v3, 4, v1")
    k("v_mov_b32 v248, 1")
    k("s_cmp_ge_u32 s11, 4")
    k("s_cbranch_scc1 kab_h")

    k("v_and_b32 v4, 31, v0")
    k("v_bfe_u32 v5, v0, 5, 1")
    k("v_lshl_add_u32 v4, v2, 5, v4")
    k("v_lshlrev_b32 v4, 1, v4")
    k("v_lshl_add_u32 v4, v5, 9, v4")
    k("s_lshl_b32 s54, s88, 8")
    k("s_lshl_b32 s55, s88, 1")
    k("v_lshlrev_b32 v29, 2, v5")
    k("s_mul_i32 s5, s2, 3")
    k("s_add_u32 s5, s5, s3")
    k(f"s_mul_hi_u32 s6, s5, {(2**32 + 47)//48}")
    k("s_mul_i32 s7, s6, 48")
    k("s_sub_u32 s7, s5, s7")
    k("v_lshrrev_b32 v8, 3, v1")
    k("v_and_b32 v113, 7, v1")
    k(f"v_mul_u32_u24 v112, {4*6144}, v8")
    k("v_lshl_add_u32 v112, v113, 4, v112")
    k("v_lshlrev_b32 v9, 3, v8")
    k(f"s_mul_i32 s8, s6, {32*6144}")
    k("s_lshl_b32 s9, s7, 7")
    k("s_add_u32 s8, s8, s9")
    k("s_lshl_b32 s9, s6, 6")
    k("v_mov_b32 v110, 0")
    k("s_waitcnt lgkmcnt(0)")
    k("s_barrier")
    k.stamp(6)
    k("s_mov_b64 s[36:37], s[34:35]")
    k.srd(60, 32, 256)
    k("s_lshr_b32 s38, s2, 3")
    k("s_lshl_b32 s38, s38, 2")
    k("s_add_u32 s38, s38, s3")
    k("s_cmp_lg_u32 s38, 67")
    k("s_cbranch_scc1 kab_nz")
    k.srd(40, 36, 65536, WS_BAR)
    k("s_and_b32 s39, s2, 7")
    k("s_lshl_b32 s39, s39, 11")
    for r in range(116, 120):
        k(f"v_mov_b32 v{r}, 0")
    k("buffer_store_dwordx4 v[116:119], v3, s[40:43], s39 offen sc1")
    k("buffer_store_dwordx4 v[116:119], v3, s[40:43], s39 offen offset:1024 sc1")
    k.srd(40, 36, 8192, WS_ST1)
    k("s_lshr_b32 s39, s39, 1")
    k("buffer_store_dwordx4 v[116:119], v3, s[40:43], s39 offen sc1")
    k("s_lshr_b32 s39, s39, 5")
    k("s_waitcnt vmcnt(0)")
    k.stamp(12) if os.environ.get("ZDBG") else None
    k("s_mov_b64 exec, 1")
    k("buffer_store_dword v248, v110, s[60:63], s39 offen sc1")
    k("s_mov_b64 exec, -1")
    if os.environ.get("ZDBG"):
        k("s_waitcnt vmcnt(0)")
        k.stamp(11)
    k.label("kab_nz")
    k.srd(20, 92, 1024)
    k.srd(24, 94, 512 * 6144)
    k("s_cmp_eq_u32 s3, 3")
    k("s_cselect_b32 s22, 0, s22")
    k("s_cselect_b32 s26, 0, s26")
    k("buffer_load_dwordx2 v[114:115], v9, s[20:23], s9 offen")
    for i in range(4):
        k(f"buffer_load_dwordx4 v[{128+4*i}:{131+4*i}], v112, s[24:27], s8 offen nt")
        if i < 3:
            k("s_add_u32 s8, s8, 6144")
    k.srd(12, 74, 1024)
    k("buffer_load_ushort v10, v29, s[12:15], s55 offen")
    k.srd(16, 66, 131072)
    k("buffer_load_ushort v11, v4, s[16:19], s54 offen nt")
    k.srd(20, 68, 131072)
    k("buffer_load_ushort v12, v4, s[20:23], s54 offen nt")
    k.srd(24, 70, 131072)
    k("buffer_load_ushort v13, v4, s[24:27], s54 offen nt")
    k.srd(28, 72, 131072)
    k("buffer_load_ushort v14, v4, s[28:31], s54 offen nt")
    k.srd(12, 76, 1024)
    k("buffer_load_ushort v111, v29, s[12:15], s55 offen")
    k("v_and_b32 v6, 15, v1")
    k("v_lshrrev_b32 v7, 4, v1")
    k("v_lshrrev_b32 v8, 3, v6")
    k("v_and_b32 v9, 7, v6")
    k("v_lshl_add_u32 v8, v8, 7, v9")
    k("v_add_u32 v8, 1, v8")
    k("v_cvt_f32_u32 v20, v8")
    k("v_lshrrev_b32 v8, 2, v6")
    k("v_and_b32 v15, 3, v6")
    k("v_lshlrev_b32 v15, 1, v15")
    k("v_lshl_add_u32 v8, v8, 7, v15")
    k("v_add_u32 v8, 258, v8")
    k("v_lshrrev_b32 v15, 1, v9")
    k("v_and_b32 v16, 1, v6")
    k("v_lshlrev_b32 v16, 2, v16")
    k("v_lshl_add_u32 v15, v15, 7, v16")
    k("v_add_u32 v15, 516, v15")
    k("v_cmp_gt_u32 vcc, 8, v6")
    k("v_cndmask_b32 v8, v15, v8, vcc")
    k("v_cvt_f32_u32 v42, v8")
    k("v_lshlrev_b32 v8, 3, v6")
    k("v_cvt_f32_u32 v22, v8")
    k(f"v_mul_u32_u24 v24, {PTS}, v2")
    k(f"v_add_u32 v24, {PT}, v24")
    k("v_lshrrev_b32 v8, 1, v7")
    k("v_and_b32 v9, 1, v7")
    k("v_lshlrev_b32 v15, 7, v8")
    k("v_lshl_add_u32 v15, v9, 2, v15")
    k("v_lshl_add_u32 v15, v6, 3, v15")
    k("v_add_u32 v15, 4, v15")
    k("v_lshl_add_u32 v25, v15, 2, v24")
    k("v_lshl_add_u32 v15, v8, 4, v6")
    k("v_add_u32 v15, 516, v15")
    k("v_add_u32 v16, 660, v6")
    k("v_cmp_eq_u32 vcc, 1, v9")
    k("v_cndmask_b32 v15, v16, v15, vcc")
    k("v_lshl_add_u32 v28, v15, 2, v24")
    k("v_lshlrev_b32 v8, 6, v7")
    k("v_add_u32 v8, 260, v8")
    k("v_lshl_add_u32 v9, v6, 2, v8")
    k("v_lshl_add_u32 v15, v6, 1, v8")
    k("v_cmp_gt_u32 vcc, 2, v7")
    k("v_cndmask_b32 v8, v15, v9, vcc")
    k("v_lshl_add_u32 v26, v8, 2, v24")
    k("v_mov_b32 v9, 128")
    k("v_cndmask_b32 v9, v9, 8, vcc")
    k("v_add_u32 v27, v26, v9")
    k("v_add_u32 v8, 2, v7")
    k("v_lshl_add_u32 v9, v7, 1, 1")
    k("v_cndmask_b32 v8, v9, v8, vcc")
    k("v_lshl_add_u32 v8, v8, 4, v6")
    k("v_add_u32 v8, 516, v8")
    k("v_lshl_add_u32 v17, v8, 2, v24")
    k("v_lshl_add_u32 v8, v7, 5, v6")
    k("v_add_u32 v8, 516, v8")
    k("v_cndmask_b32 v8, v8, v16, vcc")
    k("v_lshl_add_u32 v18, v8, 2, v24")
    k(f"v_mul_u32_u24 v19, {4*PTS}, v5")
    k("v_add3_u32 v19, v19, v24, 12")
    k("v_lshlrev_b32 v8, 3, v0")
    k("v_sub_u32 v8, 2047, v8")
    k("s_movk_i32 s44, 0x80")
    k(f"s_mov_b32 s45, {17024}")
    for e in range(9):
        g = 30 + e
        if e:
            k("v_subrev_u32 v8, 1, v8")
        if e == 8:
            k("v_max_i32 v8, 0, v8")
        k("v_cvt_f32_u32 v9, v8")
        k("v_cvt_pk_bf16_f32 v9, v9, v9")
        k("v_lshrrev_b32 v9, 16, v9")
        k("v_subrev_u32 v9, s45, v9")
        k("v_med3_i32 v9, v9, v8, s44")
        k(f"v_lshlrev_b32 v{g}, 1, v9")
    k(f"s_mov_b32 s46, {f32(LOG2E_HI)}")
    k(f"s_mov_b32 s47, {f32(LOG2E_LO)}")
    k(f"s_mov_b32 s48, {f32(-LOG2E)}")
    k(f"s_mov_b32 s49, {f32(1.0/(2*math.pi))}")
    k(f"s_mov_b32 s58, {f32(1024.0)}")
    k("v_mul_u32_u24 v8, 3072, v2")
    k(f"v_add_u32 v8, {REC}, v8")
    k("v_mad_u32_u24 v40, v1, 48, v8")
    k("v_mul_u32_u24 v41, 384, v7")
    k("v_add_u32 v41, v41, v8")
    k.stamp(7)
    k.srd(40, 36, 16 * 12288, WS_MP)
    k("s_cmp_eq_u32 s3, 3")
    k("s_cbranch_scc1 kab_nomod")
    k("s_waitcnt vmcnt(10)")
    for j in range(2):
        k(f"v_lshlrev_b32 v{44+2*j}, 16, v{114+j}")
        k(f"v_and_b32 v{45+2*j}, 0xffff0000, v{114+j}")
    for j in range(4):
        k(f"v_mul_f32 v{48+j}, s48, v{44+j}")
    for j in range(4):
        k(f"v_exp_f32 v{48+j}, v{48+j}")
    for j in range(4):
        k(f"v_add_f32 v{48+j}, 1.0, v{48+j}")
    for j in range(4):
        k(f"v_rcp_f32 v{48+j}, v{48+j}")
    for j in range(4):
        k(f"v_mul_f32 v{48+j}, v{44+j}, v{48+j}")
    for j in range(2):
        k(f"v_cvt_pk_bf16_f32 v{114+j}, v{48+2*j}, v{49+2*j}")
    for j in range(2):
        k(f"v_lshlrev_b32 v{44+4*j}, 16, v{114+j}")
        k(f"v_and_b32 v{46+4*j}, 0xffff0000, v{114+j}")
    for i in range(4):
        sp = 44 + 2 * i
        k(f"s_waitcnt vmcnt({9-i})")
        for j in range(4):
            w = 128 + 4 * i + j
            k(f"v_lshlrev_b32 v{60+2*j}, 16, v{w}")
            k(f"v_and_b32 v{61+2*j}, 0xffff0000, v{w}")
        for j in range(4):
            a_ = 52 + 2 * j
            if i == 0:
                k(f"v_pk_mul_f32 v[{a_}:{a_+1}], v[{60+2*j}:{61+2*j}], v[{sp}:{sp+1}] op_sel_hi:[1,0]")
            else:
                sel = "op_sel:[0,0,0] op_sel_hi:[1,0,1]"
                k(f"v_pk_fma_f32 v[{a_}:{a_+1}], v[{60+2*j}:{61+2*j}], v[{sp}:{sp+1}], v[{a_}:{a_+1}] {sel}")
    for q in range(4):
        k(f"v_add_f32_dpp v{60+q}, v{52+q}, v{52+q} row_ror:8 row_mask:0xf bank_mask:0x3")
        k(f"v_add_f32_dpp v{60+q}, v{56+q}, v{56+q} row_ror:8 row_mask:0xf bank_mask:0xc")
    k("v_bfe_u32 v64, v1, 3, 1")
    k("v_lshlrev_b32 v65, 5, v113")
    k("v_lshl_add_u32 v65, v64, 4, v65")
    k("v_permlane16_swap_b32 v60, v61")
    k("v_permlane16_swap_b32 v62, v63")
    k("v_bfe_u32 v64, v1, 5, 1")
    k("v_lshl_add_u32 v65, v64, 3, v65")
    k("v_add_f32 v60, v60, v61")
    k("v_add_f32 v62, v62, v63")
    k("v_bfe_u32 v64, v1, 4, 1")
    k("v_lshl_add_u32 v65, v64, 2, v65")
    k("v_permlane32_swap_b32 v60, v62")
    k("s_mul_i32 s56, s6, 12288")
    k("s_lshl_b32 s57, s7, 8")
    k("s_add_u32 s56, s56, s57")
    k("v_add_f32 v60, v60, v62")
    k("s_waitcnt vmcnt(0)")
    k("buffer_store_dword v60, v65, s[40:43], s56 offen sc1")
    k("s_branch kab_mod_done")
    k.label("kab_nomod")
    k("s_waitcnt vmcnt(0)")
    k.label("kab_mod_done")
    k("v_lshlrev_b32 v10, 16, v10")
    exp_precise(k, "v10", "v10", "v15", "v16", "s46", "s47")
    round_bf16(k, "v10", "v10")
    k("v_lshlrev_b32 v11, 16, v11")
    exp_precise(k, "v11", "v11", "v15", "v16", "s46", "s47")
    round_bf16(k, "v11", "v11")
    k("v_mul_f32 v11, v11, v10")
    k("v_mul_f32 v44, s48, v11")
    k("v_lshlrev_b32 v12, 16, v12")
    k("v_mul_f32 v12, v12, v10")
    k("v_mul_f32 v45, s49, v12")
    k("v_pk_mul_f32 v[52:53], v[44:45], s[58:59] op_sel_hi:[1,0]")
    k("v_fract_f32 v53, v53")
    k("v_exp_f32 v52, v52")
    k("v_cos_f32 v54, v53")
    k("v_sin_f32 v55, v53")
    k("v_pk_mul_f32 v[54:55], v[54:55], v[52:53] op_sel_hi:[1,0]")
    k.stamp(2)
    k("v_lshlrev_b32 v13, 16, v13")
    k("v_lshlrev_b32 v14, 16, v14")
    k("v_max_f32 v15, abs(v13), abs(v14)")
    k("v_add_f32_dpp v16, v13, v13 row_ror:8 row_mask:0xf bank_mask:0xf")
    for rot in (8, 4, 2, 1):
        k(f"v_max_f32_dpp v15, v15, v15 row_ror:{rot} row_mask:0xf bank_mask:0xf")
        if rot != 8:
            k(f"v_add_f32_dpp v16, v16, v16 row_ror:{rot} row_mask:0xf bank_mask:0xf")
    k("v_mov_b32 v8, v15")
    k("v_mov_b32 v9, v16")
    k("v_permlane16_swap_b32 v8, v15")
    k("v_permlane16_swap_b32 v9, v16")
    k("v_max_f32 v15, v15, v8")
    k("v_add_f32 v16, v16, v9")
    k("v_and_b32 v15, 0x7f800000, v15")
    k("v_max_u32 v15, 0x00800000, v15")
    k("v_min_u32 v15, 0x7e800000, v15")
    k("v_sub_u32 v8, 0x7f000000, v15")
    k("v_mul_f32 v46, v8, v13")
    k("v_mul_f32 v47, -v8, v14")
    k("v_add_f32 v10, v10, v10")
    k("v_mul_f32 v16, v16, v10")
    k("v_mul_f32 v15, v15, v10")
    k("v_mov_b32 v48, v47")
    k("v_sub_f32 v49, 0, v46")
    k("v_mul_f32 v50, v54, v46")
    k("v_fma_f32 v50, v55, v47, v50")
    k("v_mul_f32 v51, v54, v47")
    k("v_fma_f32 v51, -v55, v46, v51")
    k("v_mov_b32 v52, v51")
    k("v_sub_f32 v53, 0, v50")
    k("ds_write_b128 v40, v[44:47]")
    k("ds_write_b128 v40, v[48:51] offset:16")
    k("ds_write_b64 v40, v[52:53] offset:32")
    k("s_mov_b32 exec_lo, 1")
    k("s_mov_b32 exec_hi, 1")
    k("ds_write_b32 v19, v16")
    k("s_mov_b64 exec, -1")
    k("v_readlane_b32 s50, v15, 0")
    k("v_readlane_b32 s52, v15, 32")
    k("s_cmp_eq_u32 s3, 3")
    k("s_cbranch_scc1 kab_na")
    k("s_waitcnt vmcnt(0)")
    k(f"v_mov_b32 v9, {C_A}")
    lds_signal(k, 9, 248)
    k.label("kab_na")
    k.stamp(8)
    k("s_mov_b32 s53, 0")
    k("s_waitcnt lgkmcnt(0)")
    D0, PR, FR = 48, 128, 88
    TA_ = (104, 106, 108)
    TC_ = (120, 122, 124, 126)
    UP = (20, 42, 22)
    k.label("kab_kloop")
    for c in range(4):
        k(f"ds_read_b128 v[{PR+c*10}:{PR+c*10+3}], v41 offset:{c*48}")
        k(f"ds_read_b128 v[{PR+c*10+4}:{PR+c*10+7}], v41 offset:{c*48+16}")
        k(f"ds_read_b64 v[{PR+c*10+8}:{PR+c*10+9}], v41 offset:{c*48+32}")
    k("s_bitcmp1_b32 s53, 0")
    k("s_cbranch_scc1 kab_knz")
    for r in range(16):
        k(f"v_mov_b32 v{D0+r}, 0")
    k.label("kab_knz")
    for c in range(4):
        k(f"s_waitcnt lgkmcnt({9-3*c})")
        p = PR + c * 10
        for Ti in range(3):
            t = TA_[Ti]
            k(f"v_pk_mul_f32 v[{t}:{t+1}], v[{p}:{p+1}], v[{UP[Ti]}:{UP[Ti]+1}] op_sel_hi:[1,0]")
        for Ti in range(3):
            t = TA_[Ti]
            k(f"v_fract_f32 v{t+1}, v{t+1}")
            k(f"v_exp_f32 v{t}, v{t}")
        for Ti in range(3):
            k(f"v_cos_f32 v{TC_[Ti]}, v{TA_[Ti]+1}")
            k(f"v_sin_f32 v{TC_[Ti]+1 if Ti < 2 else TC_[3]}, v{TA_[Ti]+1}")
        for Ti in range(2):
            t, q = TA_[Ti], TC_[Ti]
            k(f"v_pk_mul_f32 v[{q}:{q+1}], v[{q}:{q+1}], v[{t}:{t+1}] op_sel_hi:[1,0]")
        k(f"v_mul_f32 v{TC_[2]}, v{TC_[2]}, v{TA_[2]}")
        k(f"v_mul_f32 v{TC_[3]}, v{TC_[3]}, v{TA_[2]}")
        for Ti in range(2):
            k(f"v_cvt_pk_f16_f32 v{FR+Ti*4+c}, v{TC_[Ti]}, v{TC_[Ti]+1}")
        for y in range(2):
            t = TA_[y]
            cc = p + 2 + 4 * y
            k(f"v_pk_mul_f32 v[{t}:{t+1}], v[{cc}:{cc+1}], v[{TC_[2]}:{TC_[2]+1}] op_sel_hi:[1,0]")
        for y in range(2):
            t = TA_[y]
            cc = p + 4 + 4 * y
            k(f"v_pk_fma_f32 v[{t}:{t+1}], v[{cc}:{cc+1}], v[{TC_[3]}:{TC_[3]+1}], v[{t}:{t+1}] op_sel_hi:[1,0,1]")
        for y in range(2):
            k(f"v_cvt_pk_f16_f32 v{FR+8+4*y+c}, v{TA_[y]}, v{TA_[y]+1}")
    for y in range(2):
        for x in range(2):
            d = D0 + (y * 2 + x) * 4
            k(f"v_mfma_f32_16x16x32_f16 v[{d}:{d+3}], v[{FR+4*x}:{FR+4*x+3}], v[{FR+8+4*y}:{FR+11+4*y}], v[{d}:{d+3}]")
    k("v_add_u32 v41, 192, v41")
    k("s_bitcmp1_b32 s53, 0")
    k("s_cbranch_scc0 kab_knf")
    for r in range(D0, D0 + 8, 2):
        k(f"v_pk_mul_f32 v[{r}:{r+1}], v[{r}:{r+1}], s[50:51] op_sel_hi:[1,0]")
    for r in (D0 + 11, D0 + 13, D0 + 15):
        k(f"v_mul_f32 v{r}, s50, v{r}")
    k(f"ds_write_b128 v25, v[{D0}:{D0+3}]")
    k(f"ds_write_b64 v26, v[{D0+4}:{D0+5}]")
    k(f"ds_write_b64 v27, v[{D0+6}:{D0+7}]")
    k(f"ds_write_b32 v28, v{D0+11}")
    k(f"ds_write_b32 v18, v{D0+13}")
    k(f"ds_write_b32 v17, v{D0+15}")
    for r in (25, 26, 27, 28, 17, 18):
        k(f"v_add_u32 v{r}, {4*PTS}, v{r}")
    k(f"v_add_u32 v41, {1536-384}, v41")
    k("s_mov_b32 s50, s52")
    k("s_waitcnt lgkmcnt(0)")
    k.label("kab_knf")
    k("s_add_u32 s53, s53, 1")
    k("s_cmp_lt_u32 s53, 4")
    k("s_cbranch_scc1 kab_kloop")
    k.stamp(3)
    k(f"v_mov_b32 v10, {C_K1}")
    lds_signal(k, 10, 248)
    k("v_lshlrev_b32 v8, 2, v0")
    k("v_lshlrev_b32 v9, 1, v0")
    lds_wait(k, 10, 11, 4)
    k.stamp(4)
    for c in range(2):
        for e in range(3):
            for w in range(4):
                k(f"ds_read_b32 v{48+c*12+e*4+w}, v8 offset:{PT+12+(c*4+w)*PTS+e*1024}") if PT + 12 + (c*4+w)*PTS + e*1024 < 65536 else \
                    k(f"ds_read_b32 v{48+c*12+e*4+w}, v12 offset:{PT+12+(c*4+w)*PTS+e*1024-32768}")
        if c == 0:
            k("v_add_u32 v12, 32768, v8")
            k("s_waitcnt lgkmcnt(3)")
    for c in range(2):
        k(f"s_waitcnt lgkmcnt({12 if c == 0 else 3})")
        for e in range(3):
            b = 48 + c * 12 + e * 4
            k(f"v_add_f32 v{b}, v{b}, v{b+1}")
            k(f"v_add_f32 v{b+2}, v{b+2}, v{b+3}")
        for e in range(3):
            b = 48 + c * 12 + e * 4
            k(f"v_add_f32 v{b}, v{b}, v{b+2}")
        for e in range(3):
            b = 48 + c * 12 + e * 4
            k(f"v_cvt_pk_bf16_f32 v{b}, v{b}, v{b}")
        for e in range(3):
            k(f"ds_write_b16 v9, v{48+c*12+e*4} offset:{T16+c*1536+e*512}")
    k(f"v_mov_b32 v10, {C_K2}")
    lds_signal(k, 10, 248)
    k("s_lshr_b32 s40, s3, 1")
    k("s_and_b32 s41, s3, 1")
    k("v_and_b32 v12, 14, v6")
    k("v_lshlrev_b32 v12, 1, v12")
    k("v_lshlrev_b32 v13, 4, v7")
    k("v_sub_u32 v12, v13, v12")
    k("v_and_b32 v13, 1, v6")
    k(f"v_mul_u32_u24 v13, {KR_CP}, v13")
    k("v_sub_u32 v12, v12, v13")
    k(f"s_mul_i32 s42, s40, {KR_CH}")
    k("s_lshl_b32 s43, s41, 8")
    k("s_sub_u32 s42, s42, s43")
    k(f"s_add_u32 s42, s42, {KB + KR_CP + 4060 - 512}")
    k("v_add_u32 v20, s42, v12")
    for a_ in range(1, 4):
        k(f"v_subrev_u32 v{20+a_}, {1024*a_}, v20")
    k("v_lshlrev_b32 v12, 5, v6")
    k("v_lshl_add_u32 v12, v7, 4, v12")
    k("s_mul_i32 s42, s40, 4608")
    k("s_sub_u32 s42, s42, s43")
    k(f"s_add_u32 s42, s42, {HB + 512 - 32}")
    k("v_add_u32 v24, s42, v12")
    k("v_lshlrev_b32 v12, 5, v6")
    k("v_lshl_add_u32 v12, v7, 3, v12")
    k("s_lshl_b32 s43, s41, 11")
    k("s_mul_i32 s42, s40, 4608")
    k("s_add_u32 s42, s42, s43")
    k(f"s_add_u32 s42, s42, {HB + 512}")
    k("v_add_u32 v25, s42, v12")
    k("v_lshlrev_b32 v12, 6, v6")
    k("v_lshrrev_b32 v13, 1, v7")
    k("v_lshl_add_u32 v12, v13, 5, v12")
    k("v_and_b32 v13, 1, v7")
    k("v_lshl_add_u32 v12, v13, 3, v12")
    k("s_lshl_b32 s42, s40, 4")
    k("s_lshl_b32 s45, s41, 12")
    k("s_add_u32 s42, s42, s45")
    k(f"s_add_u32 s42, s42, {XB}")
    k("v_add_u32 v26, s42, v12")
    k("v_lshrrev_b32 v12, 1, v6")
    k("v_lshlrev_b32 v12, 3, v12")
    k("v_and_b32 v13, 1, v7")
    k("v_lshl_add_u32 v12, v13, 2, v12")
    k("v_and_b32 v13, 1, v6")
    k("v_lshl_add_u32 v12, v13, 1, v12")
    k("v_lshrrev_b32 v13, 1, v7")
    k("v_add_u32 v12, v12, v13")
    k("v_lshlrev_b32 v27, 3, v12")
    k("s_lshl_b32 s44, s40, 1")
    k("s_add_u32 s44, s44, s88")
    k("s_lshl_b32 s44, s44, 12")
    k("s_add_u32 s44, s44, s43")
    k("s_lshl_b32 s42, s3, 12")
    k(f"s_add_u32 s42, s42, {RB}")
    k("v_add_u32 v28, s42, v3")
    k("s_xor_b32 s42, s3, 1")
    k("s_lshl_b32 s42, s42, 12")
    k(f"s_add_u32 s42, s42, {RB}")
    k("v_add_u32 v29, s42, v3")
    k.srd(16, 36, 512 * 4096, WS_X1T)
    k("v_lshlrev_b32 v12, 16, v111")
    k("v_readlane_b32 s47, v12, 0")
    k("v_readlane_b32 s48, v12, 32")
    k("s_cmp_eq_u32 s40, 0")
    k("s_cselect_b32 s47, s47, s48")
    lds_wait(k, 10, 11, 4)
    k.stamp(5)
    for c in range(2):
        for e in range(9):
            k(f"ds_read_u16 v{48+c*10+e}, v{30+e} offset:{T16+c*1536}")
        if c == 0:
            k("s_waitcnt lgkmcnt(6)")
    k("v_lshlrev_b32 v8, 4, v0")
    for r in range(72, 76):
        k(f"v_mov_b32 v{r}, 0")
    k("v_cmp_eq_u32 vcc, 255, v0")
    for c in range(2):
        k(f"s_waitcnt lgkmcnt({9 if c == 0 else 2})")
        b = 48 + c * 10
        o = 80 + c * 8
        k(f"v_cndmask_b32 v{b+8}, v{b+8}, v72, vcc")
        for j in range(4):
            k(f"v_lshl_or_b32 v{o+j}, v{b+1+2*j}, 16, v{b+2*j}")
        k(f"ds_write_b128 v8, v[{o}:{o+3}] offset:{KB + c*KR_CH}")
        for j in range(4):
            k(f"v_lshl_or_b32 v{o+4+j}, v{b+2+2*j}, 16, v{b+1+2*j}")
        k(f"ds_write_b128 v8, v[{o+4}:{o+7}] offset:{KB + c*KR_CH + KR_CP}")
    for r in range(44, 76):
        k(f"v_mov_b32 v{r}, 0")
    k("s_waitcnt lgkmcnt(0)")
    k.stamp(9)
    k("s_barrier")
    k.stamp(10)

    FA = (76, 144)
    FB = (176, 208)

    def reads(s):
        out = []
        for m in range(8):
            a_ = m >> 1
            o = 0 if (m & 1) else 128
            x = FA[s] + 4 * m
            out.append(f"ds_read2_b32 v[{x}:{x+1}], v{20+a_} offset0:{o} offset1:{o+1}")
            out.append(f"ds_read2_b32 v[{x+2}:{x+3}], v{20+a_} offset0:{o+2} offset1:{o+3}")
            y = FB[s] + 4 * m
            out.append(f"ds_read_b128 v[{y}:{y+3}], v24 offset:{512*m}")
        return out

    def adv():
        return [f"v_subrev_u32 v{r}, 64, v{r}" for r in range(20, 25)]

    def mfmas(s):
        pairs = sorted([(m, t) for m in range(8) for t in range(8) if m + t <= 7], key=lambda p: (max(p), p[0] + p[1]))
        return [f"v_mfma_f32_16x16x32_bf16 v[{44+4*(m+t)}:{47+4*(m+t)}], v[{FA[s]+4*m}:{FA[s]+4*m+3}], v[{FB[s]+4*t}:{FB[s]+4*t+3}], v[{44+4*(m+t)}:{47+4*(m+t)}]"
                for (m, t) in pairs]

    k("s_lshl_b32 s42, s40, 2")
    k(f"v_mov_b32 v12, s42")
    k(f"ds_read_b32 v12, v12 offset:{PAR+16}")
    for r_ in reads(0):
        k(r_)
    for x in adv():
        k(x)
    k("s_mov_b32 s50, 0")
    k("s_waitcnt lgkmcnt(0)")
    k("v_readfirstlane_b32 s46, v12")
    k.label("kab_cloop")
    for s in range(2):
        k("s_waitcnt lgkmcnt(0)")
        rd = reads(1 - s)
        mf = mfmas(s)
        ad = adv()
        for idx, x in enumerate(mf):
            k(x)
            if idx < len(rd):
                k(rd[idx])
            elif idx - len(rd) < len(ad):
                k(ad[idx - len(rd)])
    k("s_add_u32 s50, s50, 1")
    k("s_cmp_lt_u32 s50, 2")
    k("s_cbranch_scc1 kab_cloop")
    k("s_waitcnt lgkmcnt(0)")
    k.stamp(11) if not os.environ.get("ZDBG") else None
    L1, L2 = k.newlabel(), k.newlabel()
    k("s_cmp_eq_u32 s41, 0")
    k(f"s_cbranch_scc0 {L1}")
    for kk in range(4):
        k(f"ds_write_b128 v28, v[{60+4*kk}:{63+4*kk}] offset:{1024*kk}")
    k(f"s_branch {L2}")
    k.label(L1)
    for kk in range(4):
        k(f"ds_write_b128 v28, v[{44+4*kk}:{47+4*kk}] offset:{1024*kk}")
    for r in range(0, 16, 2):
        k(f"v_pk_mov_b32 v[{44+r}:{45+r}], v[{60+r}:{61+r}], v[{60+r}:{61+r}] op_sel:[0,1]")
    k.label(L2)
    k("s_lshl_b32 s42, s40, 2")
    k(f"s_add_u32 s42, s42, {C_R}")
    k("v_mov_b32 v10, s42")
    lds_signal(k, 10, 248)
    for kk in range(4):
        k(f"ds_read_b64 v[{76+2*kk}:{77+2*kk}], v25 offset:{512*kk}")
        k(f"ds_read_b64 v[{84+2*kk}:{85+2*kk}], v26 offset:{1024*kk}")
    k("s_waitcnt lgkmcnt(0)")
    HD, XF = 144, 160
    for p in range(8):
        t = HD + 2 * p
        k(f"v_lshlrev_b32 v{t}, 16, v{76+p}")
        k(f"v_and_b32 v{t+1}, 0xffff0000, v{76+p}")
    for p in range(8):
        t = HD + 2 * p
        k(f"v_pk_mul_f32 v[{t}:{t+1}], v[{t}:{t+1}], s[46:47] op_sel:[0,1] op_sel_hi:[1,1]")
    for p in range(8):
        t = HD + 2 * p
        k(f"v_cvt_pk_bf16_f32 v{76+p}, v{t}, v{t+1}")
    lds_wait(k, 10, 11, 2)
    k.stamp(12) if not os.environ.get("ZDBG") else None
    for kk in range(4):
        k(f"ds_read_b128 v[{60+4*kk}:{63+4*kk}], v29 offset:{1024*kk}")
    for p in range(8):
        t = HD + 2 * p
        k(f"v_lshlrev_b32 v{t}, 16, v{76+p}")
        k(f"v_and_b32 v{t+1}, 0xffff0000, v{76+p}")
        u = XF + 2 * p
        k(f"v_lshlrev_b32 v{u}, 16, v{84+p}")
        k(f"v_and_b32 v{u+1}, 0xffff0000, v{84+p}")
    k("s_waitcnt lgkmcnt(0)")
    P8 = range(8)

    def rnd():
        for p in P8:
            k(f"v_cvt_pk_bf16_f32 v{76+p}, v{44+2*p}, v{45+2*p}")
        for p in P8:
            k(f"v_lshlrev_b32 v{44+2*p}, 16, v{76+p}")
            k(f"v_and_b32 v{45+2*p}, 0xffff0000, v{76+p}")

    for p in P8:
        k(f"v_pk_add_f32 v[{44+2*p}:{45+2*p}], v[{44+2*p}:{45+2*p}], v[{60+2*p}:{61+2*p}]")
    rnd()
    for p in P8:
        k(f"v_pk_add_f32 v[{44+2*p}:{45+2*p}], v[{44+2*p}:{45+2*p}], v[{HD+2*p}:{HD+2*p+1}]")
    rnd()
    for p in P8:
        k(f"v_pk_mul_f32 v[{44+2*p}:{45+2*p}], v[{44+2*p}:{45+2*p}], s[46:47] op_sel:[0,0] op_sel_hi:[1,0]")
    rnd()
    for p in P8:
        k(f"v_pk_add_f32 v[{44+2*p}:{45+2*p}], v[{44+2*p}:{45+2*p}], v[{XF+2*p}:{XF+2*p+1}]")
    for kk in range(4):
        for h in range(2):
            p = 2 * kk + h
            k(f"v_cvt_pk_bf16_f32 v{76+p}, v{44+2*p}, v{45+2*p}")
        k(f"buffer_store_dwordx2 v[{76+2*kk}:{77+2*kk}], v27, s[16:19], s44 offen offset:{512*kk}")
    k.endpgm()

    k.label("kab_h")
    k("s_setprio 2")
    k("v_and_b32 v0, 255, v0")
    for r in range(8, 12):
        k(f"v_mov_b32 v{r}, 0")
    k("s_cmp_lg_u32 s3, 0")
    k("s_cbranch_scc1 kab_h0")
    k("v_lshrrev_b32 v7, 5, v1")
    k("v_mul_u32_u24 v7, 4608, v7")
    k("v_and_b32 v6, 31, v1")
    k("v_lshl_add_u32 v7, v6, 4, v7")
    k(f"ds_write_b128 v7, v[8:11] offset:{HB}")
    k("v_lshrrev_b32 v6, 2, v1")
    k(f"v_mul_u32_u24 v7, {KR_CP}, v6")
    k("v_and_b32 v6, 3, v1")
    k("v_lshl_add_u32 v7, v6, 4, v7")
    k(f"v_add_u32 v7, {KB + 4096}, v7")
    k("v_lshlrev_b32 v6, 4, v6")
    k("v_cmp_gt_u32 vcc, 16, v1")
    k("v_cndmask_b32 v7, v6, v7, vcc")
    k("ds_write_b128 v7, v[8:11]")
    k.label("kab_h0")
    k("s_lshl_b32 s10, s2, 13")
    k("s_add_u32 s38, s10, 4096")
    k("s_lshl_b32 s39, s3, 11")
    k("s_add_u32 s39, s39, s10")
    k("v_lshlrev_b32 v4, 2, v0")
    k("v_and_b32 v2, 3, v0")
    k("s_waitcnt lgkmcnt(0)")
    k("s_barrier")
    k.stamp(6)
    k("s_mov_b64 s[36:37], s[34:35]")
    k.srd(12, 64, 2048 * 1024)
    k("buffer_load_dwordx4 v[16:19], v3, s[12:15], s39 offen nt")
    k("buffer_load_dwordx4 v[20:23], v3, s[12:15], s39 offen offset:1024 nt")
    for r in range(8):
        k(f"buffer_load_dword v{24+r}, v4, s[12:15], s{(10, 38)[r//4]} offen offset:{(r%4)*1024} nt")
    k("s_lshr_b32 s5, s2, 4")
    k("s_and_b32 s6, s2, 15")
    k("s_mul_i32 s6, s6, 11")
    k("s_min_u32 s6, s6, 161")
    k("v_lshrrev_b32 v92, 4, v1")
    k("v_and_b32 v95, 15, v1")
    k(f"v_mul_u32_u24 v93, {8*2752}, v92")
    k("v_lshl_add_u32 v93, v95, 4, v93")
    k("v_cmp_gt_u32 vcc, 11, v95")
    k("v_mov_b32 v94, 0x7fff0000")
    k("v_cndmask_b32 v93, v94, v93, vcc")
    k("s_lshl_b32 s8, s2, 13")
    k("v_add_u32 v94, s8, v3")
    k(f"s_mul_i32 s8, s5, {32*2752}")
    k("s_lshl_b32 s9, s6, 4")
    k("s_add_u32 s8, s8, s9")
    k("s_cmp_eq_u32 s3, 1")
    k("s_cselect_b64 vcc, -1, 0")
    k("s_cselect_b64 s[68:69], s[80:81], s[86:87]")
    k(f"s_mov_b32 s70, {688*1024}")
    k(f"s_cselect_b32 s70, {512*2752}, s70")
    k("s_cselect_b32 s8, s8, 0")
    k("s_movk_i32 s9, 1024")
    k("s_cselect_b32 s9, 2752, s9")
    k("v_cndmask_b32 v93, v94, v93, vcc")
    k("s_sub_u32 s7, s3, 1")
    k("s_cmp_lt_u32 s7, 2")
    k("s_cselect_b32 s70, s70, 0")
    k("s_and_b32 s69, s69, 0xffff")
    k("s_mov_b32 s71, 0x00020000")

    def raw_loads():
        for e in range(8):
            k(f"buffer_load_dwordx4 v[{RAW+e*4}:{RAW+3+e*4}], v93, s[68:71], s8 offen nt")
            if e < 7:
                k("s_add_u32 s8, s8, s9")

    k.srd(60, 32, 256)
    k.srd(40, 36, 65536, WS_BAR)
    k.srd(44, 36, (2 << 20) + 8192, WS_XT)
    k.srd(52, 36, 16 * 12288, WS_MP)
    k("v_and_b32 v84, 7, v1")
    k("v_lshlrev_b32 v84, 5, v84")
    k("s_mov_b32 s48, 0x05040100")
    k("s_mov_b32 s49, 0x07060302")
    k(f"s_mov_b32 s50, {f32(1.0/512)}")
    k(f"s_mov_b32 s51, {f32(1e-5)}")
    k("v_lshrrev_b32 v4, 1, v1")
    k("s_lshl_b32 s15, s3, 6")
    k("v_add_u32 v4, s15, v4")
    k("v_and_b32 v7, 1, v1")
    k("v_lshlrev_b32 v6, 13, v4")
    k("v_lshl_add_u32 v6, v7, 4, v6")
    k("v_mul_u32_u24 v9, 4608, v7")
    k(f"v_add_u32 v9, {HB+512}, v9")
    k("v_lshl_add_u32 v9, v4, 4, v9")
    k("v_lshlrev_b32 v10, 2, v7")
    k("v_lshlrev_b32 v11, 5, v4")
    k("v_lshl_add_u32 v14, v7, 4, v11")
    k(f"v_add_u32 v14, {XB}, v14")
    k(f"s_mov_b32 s19, {WS_ST1 - WS_XT}")
    k("s_lshl_b32 s20, s89, 12")
    k("s_lshr_b32 s21, s4, 1")
    k("s_lshl_b32 s21, s21, 5")
    k("s_add_u32 s20, s20, s21")
    k(f"s_add_u32 s21, s20, {32*8192}")
    k("s_lshr_b32 s15, s2, 3")
    k("s_and_b32 s15, s15, 15")
    k("s_lshl_b32 s15, s15, 7")
    k("v_lshl_add_u32 v88, v1, 11, s15")
    k("s_and_b32 s15, s2, 7")
    k("s_lshl_b32 s15, s15, 11")
    k("v_and_b32 v89, 15, v1")
    k("v_lshl_add_u32 v89, v89, 7, s15")
    k(f"v_mov_b32 v86, {C_A}")
    k(f"v_mov_b32 v90, {C_G}")
    k("v_and_b32 v82, 15, v1")
    k("v_lshrrev_b32 v83, 4, v1")
    k("v_mul_u32_u24 v82, 12288, v82")
    k("v_and_b32 v8, 1, v83")
    k("v_lshl_add_u32 v85, v8, 11, v82")
    k("v_add_u32 v85, 8192, v85")
    k("v_lshl_add_u32 v82, v83, 11, v82")
    k("s_lshl_b32 s58, s88, 2")
    k("v_lshlrev_b32 v5, 4, v0")
    k("v_bfe_u32 v15, v1, 3, 1")
    k("s_lshl_b32 s15, s3, 3")
    k("v_lshl_add_u32 v15, v15, 2, s15")
    k("s_lshl_b32 s14, s2, 5")
    k("s_add_u32 s14, s14, s19")
    k(f"v_mov_b32 v81, {C_L}")
    k("s_waitcnt vmcnt(0)")
    k.stamp(2)
    for q in range(4):
        k(f"v_perm_b32 v{68+q}, v{25+2*q}, v{24+2*q}, s48")
        k(f"v_perm_b32 v{76+q}, v{25+2*q}, v{24+2*q}, s49")
    k("buffer_store_dwordx4 v[68:71], v5, s[44:47], s10 offen sc1")
    k("buffer_store_dwordx4 v[76:79], v5, s[44:47], s38 offen sc1")
    for r in range(2):
        for j in range(4):
            k(f"v_lshlrev_b32 v{32+8*r+2*j}, 16, v{16+4*r+j}")
            k(f"v_and_b32 v{33+8*r+2*j}, 0xffff0000, v{16+4*r+j}")

    def wave_reduce2(a, b, d, t):
        k(f"v_add_f32_dpp v{d}, v{a}, v{a} row_ror:8 row_mask:0xf bank_mask:0x3")
        k(f"v_add_f32_dpp v{d}, v{b}, v{b} row_ror:8 row_mask:0xf bank_mask:0xc")
        k(f"v_add_f32_dpp v{d}, v{d}, v{d} row_half_mirror row_mask:0xf bank_mask:0xf")
        k(f"v_add_f32_dpp v{d}, v{d}, v{d} quad_perm:[2,3,0,1] row_mask:0xf bank_mask:0xf")
        k(f"v_add_f32_dpp v{d}, v{d}, v{d} quad_perm:[1,0,3,2] row_mask:0xf bank_mask:0xf")
        k(f"v_mov_b32 v{t}, v{d}")
        k(f"v_permlane16_swap_b32 v{t}, v{d}")
        k(f"v_add_f32 v{d}, v{d}, v{t}")
        k(f"v_mov_b32 v{t}, v{d}")
        k(f"v_permlane32_swap_b32 v{t}, v{d}")
        k(f"v_add_f32 v{d}, v{d}, v{t}")

    for r in range(2):
        x, t = 32 + 8 * r, 48 + 4 * r
        k(f"v_pk_add_f32 v[{t}:{t+1}], v[{x}:{x+1}], v[{x+2}:{x+3}]")
        k(f"v_pk_add_f32 v[{t+2}:{t+3}], v[{x+4}:{x+5}], v[{x+6}:{x+7}]")
    for r in range(2):
        t = 48 + 4 * r
        k(f"v_pk_add_f32 v[{t}:{t+1}], v[{t}:{t+1}], v[{t+2}:{t+3}]")
    for r in range(2):
        t = 48 + 4 * r
        k(f"v_add_f32 v{t}, v{t}, v{t+1}")
    wave_reduce2(48, 52, 56, 57)
    k("v_mul_f32 v56, s50, v56")
    k("v_readlane_b32 s16, v56, 0")
    k("v_readlane_b32 s17, v56, 8")
    for r in range(2):
        sel = "op_sel_hi:[1,0]" if r == 0 else "op_sel:[0,1] op_sel_hi:[1,1]"
        for j in range(4):
            x = 32 + 8 * r + 2 * j
            k(f"v_pk_add_f32 v[{x}:{x+1}], v[{x}:{x+1}], s[16:17] {sel} neg_lo:[0,1] neg_hi:[0,1]")
    for j in range(4):
        for r in range(2):
            x, t = 32 + 8 * r + 2 * j, 48 + 4 * r
            if j == 0:
                k(f"v_pk_mul_f32 v[{t}:{t+1}], v[{x}:{x+1}], v[{x}:{x+1}]")
            else:
                k(f"v_pk_fma_f32 v[{t}:{t+1}], v[{x}:{x+1}], v[{x}:{x+1}], v[{t}:{t+1}]")
    for r in range(2):
        t = 48 + 4 * r
        k(f"v_add_f32 v{t}, v{t}, v{t+1}")
    wave_reduce2(48, 52, 58, 57)
    k("v_mul_f32 v58, s50, v58")
    round_bf16(k, "v58", "v58")
    k("v_add_f32 v58, s51, v58")
    round_bf16(k, "v58", "v58")
    k("v_sqrt_f32 v58, v58")
    k("v_cvt_pk_bf16_f32 v58, v56, v58")
    k(f"ds_write_b32 v15, v58 offset:{PAR+32}")
    lds_signal(k, 81, 248)
    k.stamp(3)
    k("s_cmp_eq_u32 s3, 3")
    k("s_cbranch_scc1 kab_sync")
    k("s_waitcnt vmcnt(0)")
    k.stamp(4)
    lds_signal(k, 86, 248)
    k.label("kab_gs")
    k("s_sleep 1")
    k("ds_read_b32 v87, v90")
    k("s_waitcnt lgkmcnt(0)")
    k("v_readfirstlane_b32 s90, v87")
    k("s_cmp_eq_u32 s90, 0")
    k("s_cbranch_scc1 kab_gs")
    k("s_branch kab_go")
    k.label("kab_sync")
    k("s_mov_b32 s56, 0")
    lds_wait(k, 81, 87, 4)
    k("v_and_b32 v15, 1, v1")
    k("v_lshlrev_b32 v15, 4, v15")
    k(f"ds_read_b128 v[60:63], v15 offset:{PAR+32}")
    k.label("kab_rp")
    k("buffer_load_dword v91, v84, s[60:63], 0 offen sc1")
    k("s_add_u32 s56, s56, 1")
    k("s_waitcnt vmcnt(0) lgkmcnt(0)")
    k("v_cmp_eq_u32 vcc, 0, v91")
    k("s_cbranch_vccz kab_rg")
    k("s_sleep 4")
    k(f"s_cmp_lt_u32 s56, {SPIN}")
    k("s_cbranch_scc1 kab_rp")
    k.label("kab_rg")
    k("s_mov_b64 exec, 3")
    k("buffer_store_dwordx4 v[60:63], v15, s[44:47], s14 offen sc1")
    k("s_mov_b64 exec, -1")
    k.stamp(8)
    lds_wait(k, 86, 87, 6)
    k("s_mov_b64 exec, 0xff")
    k("buffer_atomic_add v248, v88, s[40:43], 0 offen sc1")
    k("s_mov_b64 exec, -1")
    k.stamp(4)
    gpoll(k, "kab_b1", 0)
    k("s_mov_b64 exec, 1")
    k("ds_write_b32 v90, v248")
    k("s_mov_b64 exec, -1")
    k("buffer_load_dword v56, v82, s[52:55], s58 offen sc1")
    k("buffer_load_dword v57, v82, s[52:55], s58 offen offset:8 sc1")
    k("buffer_load_dword v58, v85, s[52:55], s58 offen sc1")
    k("buffer_load_dword v59, v85, s[52:55], s58 offen offset:8 sc1")
    k.label("kab_go")
    k.stamp(5)
    for i in range(2):
        k(f"buffer_load_dwordx4 v[{16+i*4}:{19+i*4}], v6, s[44:47], s{20+i} offen sc1")
    for i in range(2):
        for h in range(2):
            k(f"buffer_load_dwordx4 v[{128+i*8+h*4}:{131+i*8+h*4}], v11, s[44:47], s19 offen offset:{i*1024+h*16} sc1")
    k(f"v_mov_b32 v86, {C_P}")
    k("s_cmp_lg_u32 s3, 3")
    k("s_cbranch_scc1 kab_p0")
    k("s_waitcnt vmcnt(8)")
    for rot in (8, 4, 2, 1):
        for r in (56, 57):
            k(f"v_add_f32_dpp v{r}, v{r}, v{r} row_ror:{rot} row_mask:0xf bank_mask:0xf")
    for r in (56, 57):
        round_bf16(k, f"v{r}", f"v{r}")
    k("v_lshlrev_b32 v66, 3, v83")
    k("s_mov_b32 exec_lo, 0x00010001")
    k("s_mov_b32 exec_hi, 0x00010001")
    k(f"ds_write_b64 v66, v[56:57] offset:{PAR}")
    k("s_mov_b64 exec, -1")
    lds_signal(k, 86, 248)
    k.label("kab_p0")
    k("s_cmp_ge_u32 s7, 2")
    k("s_cbranch_scc1 kab_pv")
    raw_loads()
    k("v_mul_u32_u24 v8, 12288, v95")
    k("v_lshl_add_u32 v8, v92, 5, v8")
    k("s_lshl_b32 s22, s5, 7")
    k("s_add_u32 s22, s22, 6144")
    for j in range(2):
        k(f"buffer_load_dwordx4 v[{SBR+4*j}:{SBR+4*j+3}], v8, s[52:55], s22 offen offset:{16*j} sc1")
        k(f"buffer_load_dwordx4 v[{CBR+4*j}:{CBR+4*j+3}], v8, s[52:55], s22 offen offset:{2048+16*j} sc1")
    k("s_waitcnt vmcnt(12)")
    k("s_branch kab_pw")
    k.label("kab_pv")
    k("s_waitcnt vmcnt(0)")
    k.label("kab_pw")
    k("s_mov_b32 s56, 0")
    k.label("kab_sc")
    k("v_min3_u32 v24, v128, v129, v130")
    for j in range(131, 143, 2):
        k(f"v_min3_u32 v24, v24, v{j}, v{j+1}")
    k("v_min_u32 v24, v24, v143")
    k("v_cmp_eq_u32 vcc, 0, v24")
    k("s_cbranch_vccz kab_so")
    for i in range(2):
        for h in range(2):
            k(f"buffer_load_dwordx4 v[{128+i*8+h*4}:{131+i*8+h*4}], v11, s[44:47], s19 offen offset:{i*1024+h*16} sc1")
    k("s_add_u32 s56, s56, 1")
    k("s_waitcnt vmcnt(0)")
    k(f"s_cmp_lt_u32 s56, {SPIN}")
    k("s_cbranch_scc1 kab_sc")
    k.label("kab_so")
    k.stamp(7)
    for i in range(2):
        k(f"ds_write_b128 v14, v[{16+i*4}:{19+i*4}] offset:{i*1024}")
    M_, RS = 144, 160
    for j in range(16):
        k(f"v_lshlrev_b32 v{M_+j}, 16, v{128+j}")
        k(f"v_and_b32 v{RS+j}, 0xffff0000, v{128+j}")
    for j in range(16):
        k(f"v_rcp_f32 v{RS+j}, v{RS+j}")
    it = [(32 + 2 * j, 16 + j) for j in range(8)]
    for (t, w) in it:
        k(f"v_lshlrev_b32 v{t}, 16, v{w}")
        k(f"v_and_b32 v{t+1}, 0xffff0000, v{w}")
    for j, (t, w) in enumerate(it):
        k(f"v_pk_add_f32 v[{t}:{t+1}], v[{t}:{t+1}], v[{M_+2*j}:{M_+2*j+1}] neg_lo:[0,1] neg_hi:[0,1]")
    for (t, w) in it:
        k(f"v_cvt_pk_bf16_f32 v{w}, v{t}, v{t+1}")
    for (t, w) in it:
        k(f"v_lshlrev_b32 v{t}, 16, v{w}")
        k(f"v_and_b32 v{t+1}, 0xffff0000, v{w}")
    for j, (t, w) in enumerate(it):
        k(f"v_pk_mul_f32 v[{t}:{t+1}], v[{t}:{t+1}], v[{RS+2*j}:{RS+2*j+1}]")
    for (t, w) in it:
        k(f"v_cvt_pk_bf16_f32 v{w}, v{t}, v{t+1}")
    lds_wait(k, 86, 87, 1)
    k(f"ds_read_b32 v26, v10 offset:{PAR}")
    k(f"ds_read_b32 v12, v10 offset:{PAR+8}")
    for (t, w) in it:
        k(f"v_lshlrev_b32 v{t}, 16, v{w}")
        k(f"v_and_b32 v{t+1}, 0xffff0000, v{w}")
    k("s_waitcnt lgkmcnt(0)")
    k("v_add_f32 v12, 1.0, v12")
    round_bf16(k, "v12", "v12")
    for (t, w) in it:
        k(f"v_pk_mul_f32 v[{t}:{t+1}], v[{t}:{t+1}], v[12:13] op_sel:[0,0] op_sel_hi:[1,0]")
    for (t, w) in it:
        k(f"v_cvt_pk_bf16_f32 v{w}, v{t}, v{t+1}")
    for (t, w) in it:
        k(f"v_lshlrev_b32 v{t}, 16, v{w}")
        k(f"v_and_b32 v{t+1}, 0xffff0000, v{w}")
    for (t, w) in it:
        k(f"v_pk_add_f32 v[{t}:{t+1}], v[{t}:{t+1}], v[26:27] op_sel_hi:[1,0]")
    for (t, w) in it:
        k(f"v_cvt_pk_bf16_f32 v{w}, v{t}, v{t+1}")
    for i in range(2):
        k(f"ds_write_b128 v9, v[{16+i*4}:{19+i*4}] offset:{i*512}")
    k("s_waitcnt lgkmcnt(0)")
    k.stamp(9)
    k("s_barrier")
    k("s_setprio 0")
    k("s_cmp_lg_u32 s3, 3")
    k("s_cbranch_scc1 kab_nf")
    for rot in (8, 4, 2, 1):
        for r in (58, 59):
            k(f"v_add_f32_dpp v{r}, v{r}, v{r} row_ror:{rot} row_mask:0xf bank_mask:0xf")
    for r in (58, 59):
        round_bf16(k, f"v{r}", f"v{r}")
    k("v_lshrrev_b32 v65, 4, v1")
    k("v_lshlrev_b32 v65, 11, v65")
    k.srd(52, 36, 12288, WS_MOD)
    k("s_lshl_b32 s58, s88, 2")
    k("s_add_u32 s59, s58, 8192")
    k("s_mov_b32 exec_lo, 0x00010001")
    k("s_mov_b32 exec_hi, 0x00010001")
    k("buffer_store_dword v56, v65, s[52:55], s58 offen")
    k("buffer_store_dword v57, v65, s[52:55], s58 offen offset:8")
    k("s_mov_b32 exec_hi, 0")
    k("buffer_store_dword v58, v65, s[52:55], s59 offen")
    k("buffer_store_dword v59, v65, s[52:55], s59 offen offset:8")
    k("s_mov_b64 exec, -1")
    k("s_waitcnt lgkmcnt(0)")
    k.label("kab_nf")
    k("s_cmp_lg_u32 s3, 0")
    k("s_cbranch_scc1 kab_nx")
    k("v_mov_b32 v8, -1")
    k("v_mov_b32 v9, -1")
    k("v_lshlrev_b32 v7, 3, v1")
    k("s_lshl_b32 s58, s2, 9")
    k.srd(52, 36, 131072, WS_XST)
    k("buffer_store_dwordx2 v[8:9], v7, s[52:55], s58 offen")
    k.srd(52, 36, 4096, WS_BAR + 0x8000)
    k("v_mov_b32 v8, 0")
    k("s_lshl_b32 s58, s2, 7")
    k("v_add_u32 v7, s58, v8")
    k("s_mov_b64 exec, 1")
    k("buffer_store_dword v8, v7, s[52:55], 0 offen")
    k("s_mov_b64 exec, -1")
    k.label("kab_nx")
    k("s_cmp_eq_u32 s3, 1")
    k("s_cbranch_scc1 kab_wpj")
    k("s_cmp_lg_u32 s3, 2")
    k("s_cbranch_scc1 kab_pf")
    k("s_cmp_ge_u32 s2, 88")
    k(f"s_cbranch_scc1 {L_end}")
    k.srd(16, 36, 32 * 22 * 1024, WS_WOF)
    k("v_lshrrev_b32 v94, 1, v1")
    k(f"v_mul_u32_u24 v94, {22*1024}, v94")
    k("v_and_b32 v7, 1, v1")
    k("v_lshl_add_u32 v94, v7, 7, v94")
    k("s_lshl_b32 s23, s2, 8")
    k("s_waitcnt vmcnt(0)")
    for cc in range(8):
        for q in range(4):
            j = cc >> 1
            k(f"v_perm_b32 v{OUTR+4*cc+q}, v{RAW+(2*q+1)*4+j}, v{RAW+2*q*4+j}, s{48 + (cc & 1)}")
        k(f"buffer_store_dwordx4 v[{OUTR+4*cc}:{OUTR+3+4*cc}], v94, s[16:19], s23 offen offset:{16*cc}")
    k(f"s_branch {L_end}")
    k.label("kab_pf")
    k.srd(28, 82, 2048 * 4096)
    k("s_lshl_b32 s22, s4, 15")
    k("s_lshr_b32 s23, s3, 1")
    k("s_lshl_b32 s23, s23, 7")
    k("s_add_u32 s22, s22, s23")
    k("v_lshrrev_b32 v8, 3, v1")
    k("v_lshlrev_b32 v8, 12, v8")
    k("v_and_b32 v9, 7, v1")
    k("v_lshl_add_u32 v8, v9, 4, v8")
    for i in range(PF1 // 2):
        k(f"buffer_load_dwordx4 v[244:247], v8, s[28:31], s22 offen offset:{i*256}")
    k(f"s_branch {L_end}")
    k.label("kab_wpj")
    k.srd(16, 36, 86 * 16384, WS_WPF)
    k.srd(24, 36, 2 * CSB_B, WS_CSB)
    k("v_add_u32 v4, s6, v95")
    k("v_lshrrev_b32 v7, 1, v4")
    k("v_lshlrev_b32 v7, 14, v7")
    k("v_lshl_add_u32 v7, v92, 8, v7")
    k("v_and_b32 v8, 1, v4")
    k("v_lshl_add_u32 v7, v8, 7, v7")
    k("v_cmp_gt_u32 vcc, 11, v95")
    k("v_mov_b32 v8, 0x7fff0000")
    k("v_cndmask_b32 v7, v8, v7, vcc")
    k("v_lshlrev_b32 v6, 9, v4")
    k("v_bfe_u32 v9, v1, 4, 1")
    k(f"v_mul_u32_u24 v9, {CSB_B}, v9")
    k("v_add_u32 v6, v6, v9")
    k("v_bfe_u32 v9, v1, 5, 1")
    k("v_lshl_add_u32 v6, v9, 8, v6")
    k("v_cndmask_b32 v6, v8, v6, vcc")
    k("s_lshl_b32 s23, s5, 10")
    k("s_lshl_b32 s21, s5, 2")
    k("s_mov_b32 s28, 0x3f803f80")
    for r in range(64, 80):
        k(f"v_mov_b32 v{r}, 0")
    k("s_waitcnt vmcnt(0)")
    k.stamp(10)
    for _ in range(int(os.environ.get("SHIFT", 0))):
        k("s_nop 0")
    if os.environ.get("DBG"):
        k.srd(56, 36, 1 << 20, 0x1800000)
        k("s_lshl_b32 s29, s2, 12")
        for j in range(4):
            k(f"buffer_store_dwordx4 v[{SBR+4*j}:{SBR+4*j+3}], v3, s[56:59], s29 offen offset:{j*1024}")
        k("s_nop 4")
    for rot in (8, 4, 2, 1):
        for r in range(SBR, SBR + 16):
            k(f"v_add_f32_dpp v{r}, v{r}, v{r} row_ror:{rot} row_mask:0xf bank_mask:0xf")
    for e in range(0, 16, 2):
        k(f"v_cvt_pk_bf16_f32 v8, v{SBR+e}, v{SBR+e+1}")
        k(f"v_lshlrev_b32 v{SBR+e}, 16, v8")
        k(f"v_and_b32 v{SBR+e+1}, 0xffff0000, v8")
    for e in range(0, 8, 2):
        k(f"v_pk_add_f32 v[{CBR+e}:{CBR+e+1}], v[{CBR+e}:{CBR+e+1}], 1.0 op_sel_hi:[1,0]")
    for e in range(0, 8, 2):
        k(f"v_cvt_pk_bf16_f32 v8, v{CBR+e}, v{CBR+e+1}")
        k(f"v_lshlrev_b32 v{CBR+e}, 16, v8")
        k(f"v_and_b32 v{CBR+e+1}, 0xffff0000, v8")
    for q in range(4):
        for h in range(2):
            e = 2 * q + h
            sel3 = "op_sel:[0,0,0] op_sel_hi:[1,0,1]" if h == 0 else "op_sel:[0,1,0] op_sel_hi:[1,1,1]"
            sel2 = "op_sel:[0,0] op_sel_hi:[1,0]" if h == 0 else "op_sel:[0,1] op_sel_hi:[1,1]"
            if h == 1:
                k(f"v_mov_b32 v{SBR+2*q}, v{SBR+2*q+1}")
                k(f"v_mov_b32 v{CBR+2*q}, v{CBR+2*q+1}")
                sel3 = sel2 = ""
            for j in range(4):
                t = 144 + h * 8 + 2 * j
                w = RAW + e * 4 + j
                k(f"v_lshlrev_b32 v{t}, 16, v{w}")
                k(f"v_and_b32 v{t+1}, 0xffff0000, v{w}")
            for j in range(4):
                t = 144 + h * 8 + 2 * j
                k(f"v_pk_fma_f32 v[{64+2*j}:{65+2*j}], v[{t}:{t+1}], v[{SBR+2*q}:{SBR+2*q+1}], v[{64+2*j}:{65+2*j}] {sel3}")
            for j in range(4):
                t = 144 + h * 8 + 2 * j
                k(f"v_pk_mul_f32 v[{t}:{t+1}], v[{t}:{t+1}], v[{CBR+2*q}:{CBR+2*q+1}] {sel2}")
        for cc in range(8):
            k(f"v_cvt_pk_bf16_f32 v{OUTR+4*cc+q}, v{144+cc}, v{152+cc}")
        for cc in range(8):
            k(f"v_dot2_f32_bf16 v{72+cc}, v{OUTR+4*cc+q}, s28, v{72+cc}")
    for cc in range(8):
        k(f"buffer_store_dwordx4 v[{OUTR+4*cc}:{OUTR+3+4*cc}], v7, s[16:19], s23 offen offset:{16*cc}")
    k.stamp(11)
    for cc in range(8):
        k(f"v_permlane16_swap_b32 v{72+cc}, v{64+cc}")
    for cc in range(8):
        k(f"v_add_f32 v{72+cc}, v{72+cc}, v{64+cc}")
    for cc in range(4):
        k(f"v_permlane32_swap_b32 v{72+cc}, v{76+cc}")
    for cc in range(4):
        k(f"v_add_f32 v{72+cc}, v{72+cc}, v{76+cc}")
    for cc in range(4):
        k(f"buffer_store_dword v{72+cc}, v6, s[24:27], s21 offen offset:{64*cc}")
    k.label(L_end)
    k.endpgm()
    k.label("kab_oob")
    k("s_endpgm")
    return k
```

```python
from gfx import Kernel
from layout import *
from common import f32, LOG2E
import math

import os
PF_FLAGS = os.environ.get('PF_FLAGS', 'nt')
CSAT = int(os.environ.get('CSAT', 6))
C_GRID = 256
C_BLOCK = 512
SB = 0
ZB = 512
NB = ZB + 1024
CSL = NB + 512
AB = 4096
BB = AB + 65536
BSTG = 12288
NST = 7
C_LDS = BB + BSTG * NST

GC0 = -LOG2E * 2 * math.sqrt(2 / math.pi)
GC1 = GC0 * 0.044715

X, Y = 24, 44
ACC = 104
CSR = 228
R4 = 140
YK = 156
SS = 180
TP = 196
PK = 204


def ln_finalize(k, S, Q, t, inv_n, eps):
    k(f"v_mul_f32 v{S}, {inv_n}, v{S}")
    k(f"v_mul_f32 v{Q}, {inv_n}, v{Q}")
    k(f"v_fma_f32 v{Q}, -v{S}, v{S}, v{Q}")
    k(f"v_max_f32 v{Q}, 0, v{Q}")
    k(f"v_cvt_pk_bf16_f32 v{t}, v{S}, v{Q}")
    k(f"v_lshlrev_b32 v{S}, 16, v{t}")
    k(f"v_and_b32 v{Q}, 0xffff0000, v{t}")
    k(f"v_add_f32 v{Q}, {eps}, v{Q}")
    k(f"v_cvt_pk_bf16_f32 v{Q}, v{Q}, v{Q}")
    k(f"v_and_b32 v{Q}, 0xffff0000, v{Q}")
    k(f"v_sqrt_f32 v{Q}, v{Q}")
    k(f"v_cvt_pk_bf16_f32 v{Q}, v{Q}, v{Q}")
    k(f"v_and_b32 v{Q}, 0xffff0000, v{Q}")
    k(f"v_rcp_f32 v{Q}, v{Q}")


def gelu_batch(k, ps):
    for (x, t, p) in ps:
        k(f"v_pk_mul_f32 v[{t}:{t+1}], v[{x}:{x+1}], v[{x}:{x+1}]")
    for (x, t, p) in ps:
        k(f"v_pk_fma_f32 v[{t}:{t+1}], v[{t}:{t+1}], s[60:61], s[60:61] op_sel:[0,1,0] op_sel_hi:[1,1,0]")
    for (x, t, p) in ps:
        k(f"v_pk_mul_f32 v[{t}:{t+1}], v[{t}:{t+1}], v[{x}:{x+1}]")
    for (x, t, p) in ps:
        k(f"v_exp_f32 v{t}, v{t}")
        k(f"v_exp_f32 v{t+1}, v{t+1}")
    for (x, t, p) in ps:
        k(f"v_pk_add_f32 v[{t}:{t+1}], v[{t}:{t+1}], 1.0 op_sel_hi:[1,0]")
    for (x, t, p) in ps:
        k(f"v_rcp_f32 v{t}, v{t}")
        k(f"v_rcp_f32 v{t+1}, v{t+1}")
    for (x, t, p) in ps:
        k(f"v_pk_mul_f32 v[{x}:{x+1}], v[{x}:{x+1}], v[{t}:{t+1}]")
    for (x, t, p) in ps:
        k(f"v_cvt_pk_bf16_f32 v{p}, v{x}, v{x+1}")


def kernel_C():
    k = Kernel("kc_kernel", 2, 23)
    L_end = "kc_end"
    k(f"s_cmp_ge_u32 s2, {C_GRID}")
    k(f"s_cbranch_scc1 kc_oob")
    k.start()
    k("s_load_dwordx2 s[36:37], s[0:1], 128")
    k("s_load_dwordx2 s[38:39], s[0:1], 72")
    k("v_and_b32 v1, 63, v0")
    k("v_lshrrev_b32 v2, 6, v0")
    k("v_readfirstlane_b32 s11, v2")
    CB = int(os.environ.get("CMAP", 1))
    k("s_and_b32 s6, s2, 7")
    k("s_lshr_b32 s5, s2, 3")
    k(f"s_lshr_b32 s4, s6, {CB}")
    k(f"s_lshl_b32 s4, s4, {2+CB}")
    k(f"s_lshr_b32 s7, s5, {3-CB}")
    k("s_add_u32 s4, s4, s7")
    k(f"s_and_b32 s5, s5, {(8 >> CB) - 1}")
    k(f"s_and_b32 s6, s6, {(1 << CB) - 1}")
    k(f"s_lshl_b32 s6, s6, {3-CB}")
    k("s_add_u32 s5, s5, s6")
    k("v_lshlrev_b32 v4, 4, v1")
    k("s_and_b32 s3, s11, 3")
    k("s_lshr_b32 s7, s3, 1")
    k("s_and_b32 s8, s3, 1")
    k("s_mul_i32 s6, s5, 5")
    k("s_min_u32 s40, s5, 3")
    k("s_add_u32 s40, s40, s6")
    k("s_add_u32 s40, s40, 43")
    k("s_max_u32 s41, s5, 5")
    k("s_add_u32 s41, s41, s6")
    k("s_sub_u32 s41, s41, 5")
    k("s_cmp_lt_u32 s5, 3")
    k("s_cselect_b32 s42, 6, 5")
    k("s_cmp_ge_u32 s5, 5")
    k("s_cselect_b32 s43, 6, 5")
    k("v_and_b32 v3, 15, v1")
    k("v_lshrrev_b32 v9, 4, v1")
    k("v_bfe_u32 v15, v1, 2, 2")
    k("v_lshl_add_u32 v16, v9, 3, v15")
    k("v_lshlrev_b32 v16, 7, v16")
    k("v_and_b32 v17, 3, v1")
    k("v_lshl_add_u32 v16, v17, 3, v16")
    k(f"v_add_u32 v16, {AB}, v16")
    k("v_lshrrev_b32 v15, 1, v15")
    k("v_and_b32 v17, 1, v9")
    k("v_lshl_or_b32 v15, v17, 1, v15")
    k(f"s_mov_b32 s27, {f32(1e-5)}")
    k("s_cmp_lt_u32 s11, 4")
    k("s_cbranch_scc1 kc_comp")

    def mk_srd(d, offreg, nreg):
        k(f"s_add_u32 s{d}, s36, {offreg}")
        k(f"s_addc_u32 s{d+1}, s37, 0")
        k(f"s_and_b32 s{d+1}, s{d+1}, 0xffff")
        k(f"s_mov_b32 s{d+2}, {nreg}")
        k(f"s_mov_b32 s{d+3}, 0x00020000")

    k("v_lshrrev_b32 v10, 3, v1")
    k("v_and_b32 v8, 2, v10")
    k("s_lshl_b32 s16, s8, 2")
    k("v_or_b32 v8, s16, v8")
    k("v_and_b32 v11, 7, v1")
    k("v_xor_b32 v8, v8, v11")
    k("v_lshlrev_b32 v8, 4, v8")
    k("s_lshl_b32 s16, s3, 3")
    k("v_add_u32 v10, s16, v10")
    k("v_lshl_add_u32 v8, v10, 12, v8")
    k("s_mul_i32 s16, s8, 49152")
    k("v_add_u32 v5, s16, v4")
    k("v_add_u32 v6, 16384, v5")
    k("v_add_u32 v7, 32768, v5")
    k("s_lshl_b32 s21, s4, 7")
    k("s_lshl_b32 s22, s3, 10")
    k(f"s_add_u32 s22, s22, {AB}")
    k("s_mul_i32 s23, s3, 3072")
    k(f"s_add_u32 s23, s23, {BB}")
    k("s_lshl_b32 s24, s7, 10")
    k("s_waitcnt lgkmcnt(0)")
    k.srd(12, 36, 512 * 4096, WS_X1T)
    for p in range(2):
        k(f"s_lshl_b32 s16, s{40+p}, 14")
        k(f"s_add_u32 s16, s16, {WS_WPF}")
        k(f"s_lshl_b32 s17, s{42+p}, 14")
        mk_srd(64 + 4 * p, "s16", "s17")

    cnt = []

    def dma(s, fill=()):
        p, sl = s // 8, s % 8
        n = 0
        fill = list(fill)
        per = (len(fill) + (4 if p == 0 else 2)) // (5 if p == 0 else 3)

        def f_():
            for _ in range(per):
                if fill:
                    k(fill.pop(0))
        if p == 0:
            for kk in range(2):
                kap = 2 * sl + kk
                k(f"s_add_u32 m0, s22, {kap*4096}")
                k(f"s_add_u32 s25, s21, {kap*32*4096}")
                k("buffer_load_dwordx4 v8, s[12:15], s25 offen lds")
                f_()
                n += 1
        k(f"s_add_u32 s25, s24, {sl*2048}")
        for i in range(3):
            k(f"s_add_u32 m0, s23, {(s % NST)*BSTG + i*1024}")
            k("s_nop 0")
            k(f"buffer_load_dwordx4 v{5+i}, s[{64+4*p}:{67+4*p}], s25 offen lds")
            f_()
            n += 1
        assert not fill
        state["vm"] += n
        cnt.append(state["vm"])

    state = {"vm": 0}
    PRO = int(os.environ.get('PRO', 3))
    for s in range(PRO):
        dma(s)
    k.stamp(2)
    k("v_xor_b32 v17, s3, v15")
    k("v_lshl_add_u32 v14, v17, 5, v16")
    for r in (20, 21, 12, 13):
        k(f"v_mov_b32 v{r}, 0")
    k("s_mov_b32 s26, 0x3f803f80")
    k.srd(28, 36, 2048 * 1024, WS_X1N)
    k.srd(32, 36, 131072, WS_XST)
    k("s_lshl_b32 s44, s4, 12")
    k("s_lshl_b32 s45, s5, 9")
    k("s_add_u32 s45, s45, s44")
    k("v_lshlrev_b32 v18, 3, v1")
    k("s_cmp_eq_u32 s7, 0")
    k("s_cselect_b32 s16, s40, s41")
    k("s_cselect_b32 s17, s42, s43")
    k("s_lshl_b32 s16, s16, 10")
    k("s_lshl_b32 s17, s17, 10")
    k(f"s_mul_i32 s18, s8, {CSB_B}")
    k("s_add_u32 s16, s16, s18")
    k(f"s_add_u32 s16, s16, {WS_CSB}")
    mk_srd(72, "s16", "s17")
    k("v_lshlrev_b32 v10, 6, v3")
    k("v_lshl_add_u32 v10, v9, 4, v10")
    k("v_add_u32 v11, 4096, v10")
    k("s_mul_i32 s16, s3, 384")
    k("v_lshl_add_u32 v19, v3, 2, s16")

    def waitstage(s):
        k(f"s_waitcnt vmcnt({state['vm'] - cnt[s]})")

    def stats(s):
        for kk in range(2):
            for h in range(2):
                x = 24 + (s & 1) * 8 + kk * 4 + h * 2
                k(f"ds_read_b64_tr_b16 v[{x}:{x+1}], v14 offset:{(2*s+kk)*4096 + h*512}")

    def stats2(s):
        out = []
        for j in range(8):
            a_, b_ = ((20, 21), (12, 13))[j & 1]
            x = 24 + (s & 1) * 8 + j
            out.append(f"v_dot2_f32_bf16 v{a_}, v{x}, s26, v{a_}")
            out.append(f"v_dot2_f32_bf16 v{b_}, v{x}, v{x}, v{b_}")
        return out

    nxt_stage = PRO
    k("s_setprio 2") if not os.environ.get("NOPRIO") else None
    for j in range(9):
        waitstage(j)
        k("s_barrier")
        if j in (2, 4, 6, 7):
            k.stamp(4 + j)
        fill = ["s_waitcnt lgkmcnt(0)"] + stats2(j - 1) if j >= 1 else []
        if os.environ.get("NOSTAT"): fill = []
        todo = [nxt_stage] if nxt_stage <= 8 else []
        if j == 6:
            k(f"s_waitcnt vmcnt({state['vm'] - state['cs']})")
            R = [48 + 4 * t for t in range(6)]
            for r in R:
                fill.append(f"v_pk_add_f32 v[{r}:{r+1}], v[{r}:{r+1}], v[{r+2}:{r+3}]")
            for r in R:
                fill.append(f"v_add_f32 v{r}, v{r}, v{r+1}")
            for sw in ("16", "32"):
                for r in R:
                    fill.append(f"v_mov_b32 v{r+1}, v{r}")
                for r in R:
                    fill.append(f"v_permlane{sw}_swap_b32 v{r}, v{r+1}")
                for r in R:
                    fill.append(f"v_add_f32 v{r}, v{r}, v{r+1}")
            for t, r in enumerate(R):
                fill.append(f"ds_write_b32 v19, v{r} offset:{CSL + t*64}")
        if j == 8:
            for x in fill:
                k(x)
            fill = []
            k("v_add_f32 v20, v20, v12")
            k("v_add_f32 v21, v21, v13")
            for r in (20, 21):
                k(f"v_mov_b32 v17, v{r}")
                k(f"v_permlane16_swap_b32 v17, v{r}")
                k(f"v_add_f32 v{r}, v{r}, v17")
                k(f"v_mov_b32 v17, v{r}")
                k(f"v_permlane32_swap_b32 v17, v{r}")
                k(f"v_add_f32 v{r}, v{r}, v17")
            k(f"s_mov_b32 s46, {f32(1.0/512)}")
            ln_finalize(k, 20, 21, 17, "s46", "s27")
            k("v_mul_f32 v20, v20, v21")
            k("s_lshl_b32 s16, s3, 6")
            k("v_lshl_add_u32 v17, v3, 2, s16")
            k(f"ds_write_b32 v17, v21 offset:{SB}")
            k(f"ds_write_b32 v17, v20 offset:{SB+256}")
            k("s_waitcnt lgkmcnt(0)")
            k("s_barrier")
            k("s_setprio 0")
            todo = list(range(nxt_stage, 15))
        for t in todo:
            dma(t, fill)
            fill = []
            nxt_stage = t + 1
            if t == CSAT:
                for tt in range(6):
                    k(f"buffer_load_dwordx4 v[{48+4*tt}:{51+4*tt}], v{10 + tt//4}, s[72:75], 0 offen offset:{(tt%4)*1024}")
                state["vm"] += 6
                state["cs"] = state["vm"]
        for x in fill:
            k(x)
        if j < 8 and not os.environ.get("NOTR"):
            stats(j)
    k("s_lshl_b32 s25, s5, 13")
    k("v_add_u32 v17, s25, v14")
    for q in range(2):
        for h in range(2):
            x = 24 + q * 4 + h * 2
            k(f"ds_read_b64_tr_b16 v[{x}:{x+1}], v17 offset:{q*4096 + h*512}")
    k("v_lshrrev_b32 v10, 2, v3")
    k("v_lshlrev_b32 v10, 3, v10")
    k("v_and_b32 v11, 3, v3")
    k("v_add_u32 v10, v10, v11")
    k("v_lshlrev_b32 v10, 10, v10")
    k("v_lshl_add_u32 v10, v9, 4, v10")
    k("s_lshl_b32 s25, s7, 5")
    k("s_lshl_b32 s16, s8, 2")
    k("s_add_u32 s25, s25, s16")
    k("s_lshl_b32 s16, s4, 6")
    k("s_add_u32 s25, s25, s16")
    k("s_lshl_b32 s25, s25, 10")
    k("s_lshl_b32 s16, s5, 7")
    k("s_add_u32 s25, s25, s16")
    k("s_waitcnt lgkmcnt(0)")
    k("buffer_store_dwordx4 v[24:27], v10, s[28:31], s25 offen")
    k("buffer_store_dwordx4 v[28:31], v10, s[28:31], s25 offen offset:64")
    state["vm"] += 2
    k("s_barrier")
    k.stamp(3)
    k("s_cmp_eq_u32 s3, 0")
    k("s_cselect_b32 s34, s34, 0")
    k(f"ds_read_b64 v[32:33], v18 offset:{ZB}")
    k(f"ds_read_b64 v[34:35], v18 offset:{ZB+512}")
    k("s_waitcnt lgkmcnt(0)")
    k("v_pk_add_f32 v[32:33], v[32:33], v[34:35]")
    k("buffer_store_dwordx2 v[32:33], v18, s[32:35], s45 offen sc1")
    state["vm"] += 1

    def poll_loads():
        for p in range(8):
            k(f"buffer_load_dwordx2 v[{32+2*p}:{33+2*p}], v18, s[32:35], s44 offen offset:{p*512} sc1")

    for s in range(8, 16):
        if s < 15:
            waitstage(s + 1)
        k("s_barrier")
        if s == 9:
            dma(15)
        if s == 12:
            poll_loads()
            state["vm"] += 8
    k("s_cmp_lg_u32 s3, 0")
    k("s_cbranch_scc1 kc_lfin")
    k("s_mov_b32 s47, 0")
    k.label("kc_poll")
    k("s_waitcnt vmcnt(0)")
    k("v_max3_u32 v48, v33, v35, v37")
    k("v_max3_u32 v49, v39, v41, v43")
    k("v_max3_u32 v48, v48, v45, v47")
    k("v_max_u32 v48, v48, v49")
    k("v_cmp_eq_u32 vcc, -1, v48")
    k("s_cbranch_vccz kc_got")
    k("s_add_u32 s47, s47, 1")
    k("s_cmp_ge_u32 s47, 0x40000")
    k("s_cbranch_scc1 kc_got")
    poll_loads()
    k("s_branch kc_poll")
    k.label("kc_got")
    k.stamp(4)
    for s_ in (4, 2, 1):
        for p in range(s_):
            k(f"v_pk_add_f32 v[{32+2*p}:{33+2*p}], v[{32+2*p}:{33+2*p}], v[{32+2*(p+s_)}:{33+2*(p+s_)}]")
    k(f"s_mov_b32 s46, {f32(1.0/688)}")
    ln_finalize(k, 32, 33, 48, "s46", "s27")
    k("v_mul_f32 v32, -v32, v33")
    k("v_lshlrev_b32 v17, 2, v1")
    k(f"ds_write_b32 v17, v33 offset:{NB}")
    k(f"ds_write_b32 v17, v32 offset:{NB+256}")
    k("s_waitcnt lgkmcnt(0)")
    k.label("kc_lfin")
    k("s_barrier")
    k.endpgm()

    k.label("kc_comp")
    k("s_mul_i32 s16, s8, 192")
    k("v_lshl_add_u32 v5, v3, 2, s16")
    k("s_mul_i32 s16, s8, 196608")
    k("v_add_u32 v6, s16, v4")
    k("v_add_u32 v7, 0x10000, v6")
    k("v_add_u32 v8, 0x20000, v6")
    k("s_lshl_b32 s29, s4, 1")
    k("s_add_u32 s29, s29, s7")
    k("s_lshl_b32 s29, s29, 10")
    k("s_waitcnt lgkmcnt(0)")
    for p in range(2):
        k(f"s_lshl_b32 s16, s{40+p}, 16")
        k(f"s_add_u32 s16, s16, {WS_ZF}")
        k(f"s_lshl_b32 s17, s{42+p}, 16")
        mk_srd(44 + 4 * p, "s16", "s17")
    for t in range(2):
        k(f"s_lshl_b32 s16, s7, 1")
        k(f"s_add_u32 s16, s16, {t}")
        k("v_xor_b32 v17, s16, v15")
        k(f"v_lshl_add_u32 v{10+t}, v17, 5, v16")
    k("s_mul_i32 s16, s8, 3072")
    k(f"s_add_u32 s16, s16, {BB}")
    k("v_add_u32 v12, s16, v4")
    k("v_mov_b32 v18, v10")
    k("v_mov_b32 v19, v11")
    k("v_mov_b32 v20, v12")
    for r in range(24):
        k(f"v_mov_b32 v{ACC+r}, 0")
    for r in range(16):
        k(f"v_mov_b32 v{SS+r}, 0")
    k(f"s_mov_b32 s60, {f32(GC0)}")
    k(f"s_mov_b32 s61, {f32(GC1)}")
    k("s_mov_b32 s70, 0")
    k("s_mov_b32 s71, 0")
    k("s_lshl_b32 s16, s7, 7")
    k("v_lshl_add_u32 v13, v9, 4, s16")

    def rd(S, kk):
        out = []
        for t in range(2):
            for h in range(2):
                out.append(f"ds_read_b64_tr_b16 v[{S+4*t+2*h}:{S+4*t+2*h+1}], v{18+t} offset:{kk*4096 + h*512}")
        for t in range(3):
            out.append(f"ds_read_b128 v[{S+8+4*t}:{S+11+4*t}], v20 offset:{kk*6144 + t*1024}")
        return out

    def mf(S):
        out = []
        for t in range(3):
            for r in range(2):
                a = ACC + (r * 3 + t) * 4
                out.append(f"v_mfma_f32_16x16x32_bf16 v[{a}:{a+3}], v[{S+4*r}:{S+4*r+3}], v[{S+8+4*t}:{S+11+4*t}], v[{a}:{a+3}]")
        return out

    def affine(p, dst):
        for t in range(3):
            c = CSR + 2 * (p * 6 + 2 * t)
            for r in range(2):
                for h in range(2):
                    w = dst + t * 8 + r * 4 + 2 * h
                    RM = R4 + 8 * r + 4 + 2 * h
                    k(f"v_pk_fma_f32 v[{w}:{w+1}], v[{RM}:{RM+1}], v[{c}:{c+1}], v[{c+2}:{c+3}] op_sel_hi:[1,0,0] neg_lo:[1,0,0] neg_hi:[1,0,0]")
        for t in range(3):
            for r in range(2):
                for h in range(2):
                    x = ACC + (r * 3 + t) * 4 + 2 * h
                    w = dst + t * 8 + r * 4 + 2 * h
                    R_ = R4 + 8 * r + 2 * h
                    k(f"v_pk_fma_f32 v[{w}:{w+1}], v[{x}:{x+1}], v[{R_}:{R_+1}], v[{w}:{w+1}]")

    k.stamp(2)
    k("s_barrier")
    k.stamp(3)
    for x in rd(X, 0) + rd(Y, 1):
        k(x)
    k("s_mov_b32 s28, 0")
    k("s_mov_b32 s70, 8192")
    k(f"s_mov_b32 s71, {BSTG}")
    k("v_add_u32 v18, s70, v10")
    k("v_add_u32 v19, s70, v11")
    k("v_add_u32 v20, s71, v12")
    k(".p2align 6")
    k.label("kc_loop")
    for par in range(2):
        cur, nxt = par * 40, (1 - par) * 40
        for (S, kk) in ((X, 0), (Y, 1)):
            k("s_waitcnt lgkmcnt(7)")
            if kk == 0:
                k("s_barrier")
            m = mf(S + cur)
            rr = rd(S + nxt, kk)
            r = [rr[0:2], rr[2:4]] + [[x] for x in rr[4:]] + [[]]
            if kk == 0:
                r[2] += ["s_add_u32 s70, s70, 8192"]
                r[3] += ["s_and_b32 s70, s70, 0xffff"]
                r[4] += [f"s_add_u32 s71, s71, {BSTG}"]
                r[5] += [f"s_cmp_eq_u32 s71, {BSTG*NST}", "s_cselect_b32 s71, 0, s71"]
            else:
                r[2] += ["v_add_u32 v18, s70, v10"]
                r[3] += ["v_add_u32 v19, s70, v11"]
                r[5] += ["v_add_u32 v20, s71, v12"]
            for i, x in enumerate(m):
                k(x)
                for y in r[i]:
                    k(y)
    k("s_add_u32 s28, s28, 2")
    k("s_cmp_eq_u32 s28, 16")
    k("s_cbranch_scc1 kc_last")
    k("s_cmp_lg_u32 s28, 8")
    k("s_cbranch_scc1 kc_loop")
    k("s_barrier")
    k.stamp(4)
    for r in range(2):
        k(f"ds_read_b128 v[{R4+8*r}:{R4+8*r+3}], v13 offset:{SB + r*64}")
        k(f"ds_read_b128 v[{R4+8*r+4}:{R4+8*r+7}], v13 offset:{SB + 256 + r*64}")
    k("s_waitcnt lgkmcnt(3)")
    for p in range(2):
        for t in range(3):
            for cb in range(2):
                k(f"ds_read_b32 v{CSR+2*(p*6+2*t+cb)}, v5 offset:{CSL + (2*p+cb)*384 + t*64}")
    k("s_waitcnt lgkmcnt(0)")
    affine(0, YK)
    for r in range(24):
        k(f"v_mov_b32 v{ACC+r}, 0")
    for t in range(3):
        ps = [(YK + 8 * t + 2 * q, TP + 2 * q, PK + q) for q in range(4)]
        for (x, tm, p) in ps:
            k(f"v_cvt_pk_bf16_f32 v{tm}, v{x}, v{x+1}")
        for (x, tm, p) in ps:
            k(f"v_lshlrev_b32 v{x}, 16, v{tm}")
            k(f"v_and_b32 v{x+1}, 0xffff0000, v{tm}")
        gelu_batch(k, ps)
        for (x, tm, p) in ps:
            k(f"v_lshlrev_b32 v{x}, 16, v{p}")
            k(f"v_and_b32 v{x+1}, 0xffff0000, v{p}")
        for q, (x, tm, p) in enumerate(ps):
            ss = SS + 2 * q
            k(f"v_pk_add_f32 v[{ss}:{ss+1}], v[{ss}:{ss+1}], v[{x}:{x+1}]")
            k(f"v_pk_fma_f32 v[{ss+8}:{ss+9}], v[{x}:{x+1}], v[{x}:{x+1}], v[{ss+8}:{ss+9}]")
    src = lambda r, e, b: SS + 8 * b + 4 * r + e
    for e in range(4):
        for b in range(2):
            d = TP + e * 2 + b
            k(f"v_add_f32_dpp v{d}, v{src(0,e,b)}, v{src(0,e,b)} row_ror:8 row_mask:0xf bank_mask:0x3")
            k(f"v_add_f32_dpp v{d}, v{src(1,e,b)}, v{src(1,e,b)} row_ror:8 row_mask:0xf bank_mask:0xc")
    for m in range(4):
        k(f"v_add_f32_dpp v{SS+m}, v{TP+m}, v{TP+m} row_half_mirror row_mask:0xf bank_mask:0x5")
        k(f"v_add_f32_dpp v{SS+m}, v{TP+4+m}, v{TP+4+m} row_half_mirror row_mask:0xf bank_mask:0xa")
    for m in range(4):
        k(f"v_add_f32_dpp v{SS+m}, v{SS+m}, v{SS+m} quad_perm:[2,3,0,1] row_mask:0xf bank_mask:0xf")
    for m in range(4):
        k(f"v_add_f32_dpp v{SS+m}, v{SS+m}, v{SS+m} quad_perm:[1,0,3,2] row_mask:0xf bank_mask:0xf")
    k("v_bfe_u32 v17, v1, 3, 1")
    k("v_lshlrev_b32 v17, 7, v17")
    k("v_lshl_add_u32 v17, v9, 5, v17")
    k("v_bfe_u32 v14, v1, 2, 1")
    k("v_lshl_add_u32 v17, v14, 4, v17")
    k("s_lshl_b32 s16, s7, 8")
    k("s_lshl_b32 s17, s8, 9")
    k("s_add_u32 s16, s16, s17")
    k("v_add_u32 v17, s16, v17")
    k(f"ds_write_b128 v17, v[{SS}:{SS+3}] offset:{ZB}")
    k("s_waitcnt lgkmcnt(0)")
    k("s_barrier")
    k.stamp(5)
    k("s_branch kc_loop")
    k.label("kc_last")
    k("s_waitcnt lgkmcnt(0)")
    k.stamp(6)
    W1 = X
    W1 = X + 40
    affine(1, W1)
    for t in range(3):
        for q in range(4):
            x = W1 + 8 * t + 2 * q
            k(f"v_cvt_pk_bf16_f32 v{PK+4*t+q}, v{x}, v{x+1}")
        k(f"buffer_store_dwordx4 v[{PK+4*t}:{PK+4*t+3}], v{6+t}, s[48:51], s29 offen")
    k.stamp(7)
    k("s_barrier")
    k.stamp(8)
    for r in range(2):
        k(f"ds_read_b128 v[{R4+8*r}:{R4+8*r+3}], v13 offset:{NB + r*64}")
        k(f"ds_read_b128 v[{R4+8*r+4}:{R4+8*r+7}], v13 offset:{NB + 256 + r*64}")
    k("s_waitcnt lgkmcnt(0)")
    for t in range(3):
        for r in range(2):
            for h in range(2):
                x = YK + t * 8 + r * 4 + 2 * h
                R_ = R4 + 8 * r + 2 * h
                k(f"v_pk_fma_f32 v[{x}:{x+1}], v[{x}:{x+1}], v[{R_}:{R_+1}], v[{R_+4}:{R_+5}]")
        for q in range(4):
            x = YK + 8 * t + 2 * q
            k(f"v_cvt_pk_bf16_f32 v{X+4*t+q}, v{x}, v{x+1}")
        k(f"buffer_store_dwordx4 v[{X+4*t}:{X+4*t+3}], v{6+t}, s[44:47], s29 offen")
    k.label(L_end)
    k.endpgm()
    k.label("kc_oob")
    k("s_endpgm")
    return k
```

```python
from gfx import Kernel
from layout import *
from common import f32
from kc import GC0, GC1, gelu_batch
from kab import PF1

FUSE_E = True
SPIN = 0x100000
D_GRID = 256
D_BLOCK = 512
STG = 20480
NST = 7
D_LDS = STG * NST
NSTAGES = 32
import os
EGROUPS = [(0, 4), (4, 8), (8, 13), (13, 18), (18, 22)]
ELOOK = int(os.environ.get('ELOOK', 8))

X, Y = 32, 52
ACC = 112
Z1 = 136
BS = 160
ZR = 168


def kernel_D():
    k = Kernel("kd_kernel", 3, 31)
    L_end = "kd_end"
    k(f"s_cmp_ge_u32 s2, {D_GRID}")
    k(f"s_cbranch_scc1 kd_oob")
    k.start()
    k("s_load_dwordx2 s[36:37], s[0:1], 128")
    k("s_load_dwordx4 s[40:43], s[0:1], 72")
    k("s_load_dwordx2 s[38:39], s[0:1], 112")
    k("v_and_b32 v1, 63, v0")
    k("v_lshrrev_b32 v2, 6, v0")
    k("v_readfirstlane_b32 s11, v2")
    k("s_and_b32 s4, s2, 7")
    k("s_lshr_b32 s5, s2, 3")
    k("s_lshr_b32 s6, s5, 3")
    k("s_lshl_b32 s4, s4, 2")
    k("s_add_u32 s4, s4, s6")
    k("s_and_b32 s5, s5, 7")
    k("v_lshlrev_b32 v4, 4, v1")
    k("s_and_b32 s3, s11, 3")
    k("s_lshr_b32 s7, s3, 1")
    k("s_and_b32 s8, s3, 1")
    k("s_mul_i32 s10, s8, 3")
    k("s_lshl_b32 s10, s10, 16")
    k("v_add_u32 v5, s10, v4")
    k("v_add_u32 v6, 0x10000, v5")
    k("v_add_u32 v7, 0x20000, v5")
    k("s_mul_i32 s9, s5, 6")
    k("s_sub_u32 s10, 43, s9")
    k("s_min_u32 s10, s10, 6")
    k("s_cmp_lt_u32 s11, 4")
    k("s_cbranch_scc1 kd_comp")

    k("v_lshrrev_b32 v3, 3, v1")
    k("v_lshrrev_b32 v12, 2, v3")
    k("v_lshlrev_b32 v12, 3, v12")
    k("v_and_b32 v13, 3, v3")
    k("v_add_u32 v12, v12, v13")
    k("v_lshlrev_b32 v12, 12, v12")
    k("v_lshrrev_b32 v13, 1, v3")
    k("v_and_b32 v14, 7, v1")
    k("v_xor_b32 v13, v13, v14")
    k("v_lshl_add_u32 v10, v13, 4, v12")
    k("v_xor_b32 v13, 4, v13")
    k("v_lshl_add_u32 v11, v13, 4, v12")
    k(f"v_add_u32 v11, {16*4096}, v11")
    k("s_lshl_b32 s16, s4, 18")
    k("s_lshl_b32 s17, s7, 17")
    k("s_add_u32 s16, s16, s17")
    k("s_lshl_b32 s17, s8, 14")
    k("s_add_u32 s64, s16, s17")
    k("s_lshl_b32 s65, s7, 10")
    k("s_lshl_b32 s66, s3, 11")
    k("s_mul_i32 s67, s3, 3072")
    k("s_add_u32 s67, s67, 8192")
    k("s_mov_b32 s68, 0")
    k("s_waitcnt lgkmcnt(0)")
    k.srd(12, 40, 2048 * 4096)
    k("s_lshl_b32 s24, s9, 16")
    k(f"s_add_u32 s25, s24, {WS_ZF + 43*65536}")
    k("s_add_u32 s20, s36, s25")
    k("s_addc_u32 s21, s37, 0")
    k("s_and_b32 s21, s21, 0xffff")
    k("s_lshl_b32 s22, s10, 16")
    k("s_mov_b32 s23, 0x00020000")

    def dma():
        k("s_add_u32 s69, s68, s66")
        k("s_mov_b32 m0, s69")
        k("s_add_u32 s70, s68, s67")
        k("buffer_load_dwordx4 v10, s[12:15], s64 offen lds")
        k("s_add_u32 m0, s69, 1024")
        k(f"s_add_u32 s68, s68, {STG}")
        k("buffer_load_dwordx4 v11, s[12:15], s64 offen lds")
        k("s_mov_b32 m0, s70")
        k("s_add_u32 s64, s64, 128")
        k("buffer_load_dwordx4 v5, s[20:23], s65 offen lds")
        k("s_add_u32 m0, s70, 1024")
        k(f"s_cmp_eq_u32 s68, {STG*NST}")
        k("buffer_load_dwordx4 v6, s[20:23], s65 offen lds")
        k("s_cselect_b32 s68, 0, s68")
        k("s_add_u32 m0, s70, 2048")
        k("s_add_u32 s28, s28, 1")
        k("buffer_load_dwordx4 v7, s[20:23], s65 offen lds")
        k("s_add_u32 s65, s65, 2048")

    k("s_mov_b32 s28, 0")
    k.label("kd_lpro")
    dma()
    k(f"s_cmp_lt_u32 s28, {NST-1}")
    k("s_cbranch_scc1 kd_lpro")
    k.stamp(2)
    k(f"s_waitcnt vmcnt({5*(NST-2)})")
    k("s_barrier")
    k.label("kd_lloop")
    k(f"s_waitcnt vmcnt({5*(NST-3)})")
    k("s_barrier")
    dma()
    k(f"s_cmp_lt_u32 s28, {NSTAGES}")
    k("s_cbranch_scc1 kd_lloop")
    k(f"s_mul_i32 s24, s5, {4*22528}")
    k(f"s_add_u32 s24, s24, {WS_WOF}")
    k("s_add_u32 s72, s36, s24")
    k("s_addc_u32 s73, s37, 0")
    k("s_and_b32 s73, s73, 0xffff")
    k(f"s_mov_b32 s74, {4*22528}")
    k("s_mov_b32 s75, 0x00020000")
    k("s_mul_i32 s25, s3, 5120")
    k("v_add_u32 v12, s25, v4")
    for i in range(NST - 1):
        k(f"s_waitcnt vmcnt({20 if i < 5 else 25})")
        k("s_barrier")
        if i < 5:
            slot = (4 + i) % NST
            for j in range(5):
                if j % 4 == 0:
                    k(f"s_add_u32 m0, s25, {slot*STG + j*1024}")
                    k(f"v_add_u32 v13, {i*20480 + j*1024}, v12")
                k(f"buffer_load_dwordx4 v13, s[72:75], 0 offen offset:{(j%4)*1024} lds")
    k("s_lshl_b32 s24, s4, 2")
    k("s_add_u32 s24, s24, s3")
    k("s_mul_i32 s24, s24, 22528")
    k(f"s_add_u32 s24, s24, {WS_UT}")
    k("s_add_u32 s76, s36, s24")
    k("s_addc_u32 s77, s37, 0")
    k("s_and_b32 s77, s77, 0xffff")
    k("s_mov_b32 s78, 22528")
    k("s_mov_b32 s79, 0x00020000")
    k.srd(80, 36, 4096, WS_BAR + 0x8000)
    k("s_lshl_b32 s24, s4, 7")
    k("v_mov_b32 v13, s24")
    k("v_mov_b32 v14, 1")
    k("s_mul_i32 s26, s3, 22528")
    k("s_waitcnt vmcnt(0)")
    k("s_barrier")
    k("s_barrier")
    k.stamp(3)
    k("s_cmp_lg_u32 s3, 0")
    k("s_cbranch_scc1 kd_pg")
    k("s_mov_b64 exec, 1")
    k("buffer_atomic_add v14, v13, s[80:83], 0 offen sc1")
    k("s_mov_b32 s28, 0")
    k.label("kd_pl")
    k("buffer_load_dword v15, v13, s[80:83], 0 offen sc1")
    k("s_add_u32 s28, s28, 1")
    k("s_waitcnt vmcnt(0)")
    k("v_readfirstlane_b32 s29, v15")
    k("s_cmp_ge_u32 s29, 8")
    k("s_cbranch_scc1 kd_po")
    k("s_sleep 1")
    k(f"s_cmp_lt_u32 s28, {SPIN}")
    k("s_cbranch_scc1 kd_pl")
    k.label("kd_po")
    k("s_mov_b64 exec, -1")
    k.label("kd_pg")
    k("s_barrier")
    k.stamp(4)
    def udma(lo, hi):
        for ph in range(lo, hi):
            if ph % 4 == 0 or ph == lo:
                k(f"s_add_u32 m0, s26, {(ph & ~3)*1024}")
                k(f"s_mov_b32 s27, {(ph & ~3)*1024}")
            k(f"buffer_load_dwordx4 v4, s[76:79], s27 offen offset:{(ph%4)*1024} sc1 lds")

    issued = 0
    for gi, (a_, b_) in enumerate(EGROUPS):
        tgt = min(22, b_ + ELOOK)
        udma(issued, tgt)
        issued = tgt
        k(f"s_waitcnt vmcnt({issued - b_})")
        k("s_barrier")
    k.endpgm()

    k.label("kd_comp")
    k("v_and_b32 v3, 15, v1")
    k("v_lshrrev_b32 v12, 4, v1")
    k("s_lshl_b32 s24, s9, 16")
    k(f"s_add_u32 s25, s24, {WS_ZF}")
    k("s_lshl_b32 s29, s4, 1")
    k("s_add_u32 s29, s29, s7")
    k("s_lshl_b32 s26, s29, 10")
    k("v_lshlrev_b32 v21, 4, v12")
    k("s_lshl_b32 s27, s29, 6")
    k("s_waitcnt lgkmcnt(0)")
    k("s_add_u32 s44, s36, s25")
    k("s_addc_u32 s45, s37, 0")
    k("s_and_b32 s45, s45, 0xffff")
    k("s_lshl_b32 s46, s10, 16")
    k("s_mov_b32 s47, 0x00020000")
    for t in range(3):
        k(f"buffer_load_dwordx4 v[{ZR+4*t}:{ZR+4*t+3}], v{5+t}, s[44:47], s26 offen")
    k.srd(52, 42, 4096)
    k("buffer_load_dwordx4 v[24:27], v21, s[52:55], s27 offen")
    NPF = (32 - PF1) // 4
    k.srd(64, 40, 2048 * 4096)
    k("s_and_b32 s68, s2, 7")
    k("s_lshl_b32 s68, s68, 20")
    k("s_lshr_b32 s69, s2, 3")
    k("s_lshl_b32 s69, s69, 15")
    k("s_add_u32 s68, s68, s69")
    k("s_lshl_b32 s69, s3, 7")
    k("s_add_u32 s68, s68, s69")
    k("v_lshrrev_b32 v13, 3, v1")
    k("v_lshlrev_b32 v13, 12, v13")
    k("v_and_b32 v14, 7, v1")
    k("v_lshl_add_u32 v13, v14, 4, v13")
    for i in range(NPF):
        k(f"buffer_load_dwordx4 v[180:183], v13, s[64:67], s68 offen offset:{PF1*128 + i*512}")
    k.srd(72, 36, 2048 * 1024, WS_X1N)
    k.srd(76, 36, 12288, WS_MOD)
    k.srd(80, 38, 2048 * 1024)
    k("v_lshrrev_b32 v22, 2, v3")
    k("v_lshlrev_b32 v22, 3, v22")
    k("v_and_b32 v23, 3, v3")
    k("v_add_u32 v22, v22, v23")
    k("v_lshlrev_b32 v22, 10, v22")
    k("v_lshl_add_u32 v22, v12, 3, v22")
    k("s_lshl_b32 s84, s29, 15")
    k("s_lshl_b32 s85, s5, 7")
    k("s_add_u32 s84, s84, s85")
    k("s_lshl_b32 s85, s8, 6")
    k("s_add_u32 s84, s84, s85")
    k("s_add_u32 s85, s84, 4096")
    k("s_lshl_b32 s86, s5, 8")
    k("s_lshl_b32 s87, s8, 7")
    k("s_add_u32 s86, s86, s87")
    k(f"s_add_u32 s86, s86, {5*2048}")
    k("v_lshlrev_b32 v23, 4, v12")
    k("v_lshrrev_b32 v13, 1, v3")
    k("v_xor_b32 v13, v13, v12")
    k("v_lshlrev_b32 v14, 7, v3")
    k("s_lshl_b32 s24, s7, 12")
    k("v_add_u32 v14, s24, v14")
    k("v_lshl_add_u32 v15, v13, 4, v14")
    k("v_xor_b32 v13, 4, v13")
    k("v_lshl_add_u32 v16, v13, 4, v14")
    k("s_mul_i32 s24, s8, 3072")
    k("s_add_u32 s24, s24, 8192")
    k("v_add_u32 v17, s24, v4")
    k("v_mov_b32 v18, v15")
    k("v_mov_b32 v19, v16")
    k("v_mov_b32 v20, v17")
    for r in range(24):
        k(f"v_mov_b32 v{ACC+r}, 0")
    k("s_mov_b32 s71, 0")
    k(f"s_mov_b32 s60, {f32(GC0)}")
    k(f"s_mov_b32 s61, {f32(GC1)}")
    k("s_mul_i32 s24, s29, 88")
    k("s_mul_i32 s25, s8, 3")
    k("s_add_u32 s25, s25, s9")
    k("s_add_u32 s24, s24, s25")
    k("s_lshl_b32 s24, s24, 9")
    k(f"s_add_u32 s24, s24, {WS_UT}")
    k("s_sub_i32 s26, 44, s25")
    k("s_max_i32 s26, s26, 0")
    k("s_min_u32 s26, s26, 3")
    k("s_lshl_b32 s26, s26, 9")
    for r in range(2):
        d = 48 + 8 * r
        k(f"s_add_u32 s{d}, s36, s24")
        k(f"s_addc_u32 s{d+1}, s37, 0")
        k(f"s_and_b32 s{d+1}, s{d+1}, 0xffff")
        k(f"s_mov_b32 s{d+2}, s26")
        k(f"s_mov_b32 s{d+3}, 0x00020000")
        if r == 0:
            k(f"s_add_u32 s24, s24, {44*512}")
    k("v_lshrrev_b32 v21, 1, v12")
    k("v_lshlrev_b32 v21, 2, v21")
    k("v_xor_b32 v21, v21, v1")
    k("v_lshlrev_b32 v21, 3, v21")
    k(f"s_waitcnt vmcnt({NPF})")
    k.stamp(2)
    for q in range(4):
        k(f"v_lshlrev_b32 v{BS+2*q}, 16, v{24+q}")
        k(f"v_and_b32 v{BS+2*q+1}, 0xffff0000, v{24+q}")
    for t in range(3):
        ps = [(Z1 + 8 * t + 2 * q, X + 2 * q, X + 8 + q) for q in range(4)]
        for q, (x, tm, p) in enumerate(ps):
            k(f"v_lshlrev_b32 v{x}, 16, v{ZR+4*t+q}")
            k(f"v_and_b32 v{x+1}, 0xffff0000, v{ZR+4*t+q}")
        gelu_batch(k, ps)
        for (x, tm, p) in ps:
            k(f"v_lshlrev_b32 v{x}, 16, v{p}")
            k(f"v_and_b32 v{x+1}, 0xffff0000, v{p}")

    def rd(S, kk):
        out = []
        for t in range(2):
            out.append(f"ds_read_b128 v[{S+4*t}:{S+4*t+3}], v{18+kk} offset:{t*2048}")
        for t in range(3):
            out.append(f"ds_read_b128 v[{S+8+4*t}:{S+11+4*t}], v20 offset:{kk*6144 + t*1024}")
        return out

    def mf(S):
        out = []
        for t in range(3):
            for r in range(2):
                a = ACC + (r * 3 + t) * 4
                out.append(f"v_mfma_f32_16x16x32_bf16 v[{a}:{a+3}], v[{S+4*r}:{S+4*r+3}], v[{S+8+4*t}:{S+11+4*t}], v[{a}:{a+3}]")
        return out

    k.stamp(3)
    k("s_barrier")
    k.stamp(4)
    for x in rd(X, 0) + rd(Y, 1):
        k(x)
    k("s_mov_b32 s28, 0")
    k(f"s_mov_b32 s71, {STG}")
    k("v_add_u32 v18, s71, v15")
    k("v_add_u32 v19, s71, v16")
    k("v_add_u32 v20, s71, v17")
    Lp = "kd_loop"
    k(".p2align 6")
    k.label(Lp)
    for par in range(2):
        cur, nxt = par * 40, (1 - par) * 40
        for (S, kk) in ((X, 0), (Y, 1)):
            k("s_waitcnt lgkmcnt(5)")
            if kk == 0:
                k("s_barrier")
            m = mf(S + cur)
            r = [[x] for x in rd(S + nxt, kk)]
            if kk == 1:
                r[0] += [f"s_add_u32 s71, s71, {STG}"]
                r[1] += [f"s_cmp_eq_u32 s71, {STG*NST}"]
                r[2] += ["s_cselect_b32 s71, 0, s71"]
                r[3] += ["v_add_u32 v18, s71, v15"]
                r[4] += ["v_add_u32 v19, s71, v16"]
                r.append(["v_add_u32 v20, s71, v17"])
            for i, x in enumerate(m):
                k(x)
                if i < len(r):
                    for y in r[i]:
                        k(y)
    k("s_add_u32 s28, s28, 2")
    k(f"s_cmp_lt_u32 s28, {NSTAGES}")
    k(f"s_cbranch_scc1 {Lp}")
    k("s_waitcnt lgkmcnt(0)")
    k.stamp(5)
    for t in range(3):
        items = [(ACC + (r * 3 + t) * 4 + 2 * h, X + 2 * r + h, 2 * r + h) for r in range(2) for h in range(2)]
        for (x, tm, q) in items:
            k(f"v_cvt_pk_bf16_f32 v{tm}, v{x}, v{x+1}")
        for (x, tm, q) in items:
            k(f"v_lshlrev_b32 v{x}, 16, v{tm}")
            k(f"v_and_b32 v{x+1}, 0xffff0000, v{tm}")
        for (x, tm, q) in items:
            k(f"v_pk_add_f32 v[{x}:{x+1}], v[{x}:{x+1}], v[{BS+2*q}:{BS+2*q+1}]")
        for (x, tm, q) in items:
            k(f"v_cvt_pk_bf16_f32 v{tm}, v{x}, v{x+1}")
        for (x, tm, q) in items:
            k(f"v_lshlrev_b32 v{x}, 16, v{tm}")
            k(f"v_and_b32 v{x+1}, 0xffff0000, v{tm}")
        for (x, tm, q) in items:
            z = Z1 + 8 * t + 2 * q
            k(f"v_pk_mul_f32 v[{x}:{x+1}], v[{x}:{x+1}], v[{z}:{z+1}]")
        for (x, tm, q) in items:
            k(f"v_cvt_pk_bf16_f32 v{Y+4*t+q}, v{x}, v{x+1}")
        for r in range(2):
            k(f"buffer_store_dwordx2 v[{Y+4*t+2*r}:{Y+4*t+2*r+1}], v21, s[{48+8*r}:{51+8*r}], 0 offen offset:{t*512} sc1")
    EX, EG, EA, EF, EW = 8, 24, 64, 32, 80
    XR, GR = 232, 240
    WR = 56
    AFR = 8
    k.stamp(6)
    k("s_barrier")
    for r in range(2):
        for t in range(2):
            k(f"buffer_load_dwordx2 v[{XR+4*r+2*t}:{XR+4*r+2*t+1}], v22, s[72:75], s{84+r} offen offset:{32*t}")
    for t in range(2):
        k(f"buffer_load_dwordx4 v[{GR+4*t}:{GR+4*t+3}], v23, s[76:79], s86 offen offset:{64*t}")
    k(f"v_add_u32 v5, {3*STG}, v4")
    k(f"v_add_u32 v6, {6*STG}, v4")
    k("s_cmp_eq_u32 s8, 1")
    k("s_cbranch_scc1 kd_w1")
    for bb in range(2):
        if bb == 1:
            k("s_branch kd_w2")
            k.label("kd_w1")
        for t in range(2):
            for ph in range(22):
                w = (2 * bb + t) * 22 + ph
                addr = ((4 + w // 20) % NST) * STG + (w % 20) * 1024
                base, off = (4, addr) if addr < 3 * STG else ((5, addr - 3 * STG) if addr < 6 * STG else (6, addr - 6 * STG))
                r = WR + (t * 22 + ph) * 4
                k(f"ds_read_b128 v[{r}:{r+3}], v{base} offset:{off}")
    k.label("kd_w2")
    k("v_bfe_u32 v5, v1, 2, 2")
    k("v_and_b32 v6, 3, v1")
    k("v_and_b32 v7, 1, v12")
    k("v_lshl_add_u32 v5, v7, 3, v5")
    k("v_lshrrev_b32 v7, 1, v6")
    k("v_lshl_add_u32 v5, v7, 2, v5")
    k("v_lshl_add_u32 v5, v6, 4, v5")
    k("v_lshlrev_b32 v5, 3, v5")
    k("v_lshrrev_b32 v7, 1, v12")
    k("v_lshl_add_u32 v5, v7, 9, v5")
    k(f"s_mul_i32 s24, s7, {2*22528}")
    k("v_add_u32 v5, s24, v5")
    k("v_xor_b32 v6, 32, v5")
    k("s_waitcnt vmcnt(6) lgkmcnt(0)")
    k("s_barrier")
    k.stamp(7)
    k("s_barrier")
    k.stamp(8)
    SETS = (8, 32, 248)
    EAC = 40

    def ureads(ph):
        S = SETS[ph % 3]
        return [f"ds_read_b64_tr_b16 v[{S+4*r+2*h}:{S+4*r+2*h+1}], v{5+h} offset:{r*22528 + ph*1024}" for r in range(2) for h in range(2)]

    for (a_, b_) in EGROUPS:
        k("s_barrier")
        for x in ureads(a_) + ureads(a_ + 1):
            k(x)
        for ph in range(a_, b_):
            nxt = ureads(ph + 2) if ph + 2 < b_ else []
            k(f"s_waitcnt lgkmcnt({4 if ph + 1 < b_ else 0})")
            S = SETS[ph % 3]
            i = 0
            for t in range(2):
                for r in range(2):
                    ac = EAC + (r * 2 + t) * 4
                    w = WR + (t * 22 + ph) * 4
                    c = "0" if ph == 0 else f"v[{ac}:{ac+3}]"
                    k(f"v_mfma_f32_16x16x32_bf16 v[{ac}:{ac+3}], v[{w}:{w+3}], v[{S+4*r}:{S+4*r+3}], {c}")
                    if i < len(nxt):
                        k(nxt[i])
                    i += 1
    k.stamp(9)
    k("s_waitcnt vmcnt(0)")
    items = [(EAC + (r * 2 + t) * 4 + 2 * h, 56 + 2 * ((r * 2 + t) * 2 + h), r, t, h) for r in range(2) for t in range(2) for h in range(2)]
    for (x, tm, r, t, h) in items:
        k(f"v_cvt_pk_bf16_f32 v{tm}, v{x}, v{x+1}")
    for (x, tm, r, t, h) in items:
        k(f"v_lshlrev_b32 v{x}, 16, v{tm}")
        k(f"v_and_b32 v{x+1}, 0xffff0000, v{tm}")
    for (x, tm, r, t, h) in items:
        k(f"v_pk_mul_f32 v[{x}:{x+1}], v[{x}:{x+1}], v[{GR+4*t+2*h}:{GR+4*t+2*h+1}]")
    for (x, tm, r, t, h) in items:
        k(f"v_cvt_pk_bf16_f32 v{tm}, v{x}, v{x+1}")
    for (x, tm, r, t, h) in items:
        k(f"v_lshlrev_b32 v{x}, 16, v{tm}")
        k(f"v_and_b32 v{x+1}, 0xffff0000, v{tm}")
    for (x, tm, r, t, h) in items:
        z = XR + 4 * r + 2 * t + h
        k(f"v_lshlrev_b32 v{tm}, 16, v{z}")
        k(f"v_and_b32 v{tm+1}, 0xffff0000, v{z}")
    for (x, tm, r, t, h) in items:
        k(f"v_pk_add_f32 v[{x}:{x+1}], v[{x}:{x+1}], v[{tm}:{tm+1}]")
    for (x, tm, r, t, h) in items:
        k(f"v_cvt_pk_bf16_f32 v{80+(r*2+t)*2+h}, v{x}, v{x+1}")
    for r in range(2):
        for t in range(2):
            o = 80 + (r * 2 + t) * 2
            k(f"buffer_store_dwordx2 v[{o}:{o+1}], v22, s[80:83], s{84+r} offen offset:{32*t}")
    k.label(L_end)
    k.endpgm()
    k.label("kd_oob")
    k("s_endpgm")
    return k
```

```python
import re

REG_RE = re.compile(r"^(-|abs\()?\s*([vas])(\d+)\)?$")
RNG_RE = re.compile(r"^(-|abs\()?\s*([vas])\[(\d+):(\d+)\]\)?$")

TRANS = ("v_exp_f32", "v_log_f32", "v_rcp_f32", "v_rsq_f32", "v_sqrt_f32", "v_sin_f32", "v_cos_f32",
         "v_rcp_iflag_f32", "v_exp_f16", "v_rcp_f16")


def parse_regs(op):
    op = op.strip()
    if op.startswith("|") and op.endswith("|"):
        op = op[1:-1]
    if op.startswith("-|") and op.endswith("|"):
        op = op[2:-1]
    m = REG_RE.match(op)
    if m:
        return [(m.group(2), int(m.group(3)))]
    m = RNG_RE.match(op)
    if m:
        return [(m.group(2), i) for i in range(int(m.group(3)), int(m.group(4)) + 1)]
    if op == "vcc":
        return [("s", 106), ("s", 107)]
    if op == "vcc_lo":
        return [("s", 106)]
    if op == "vcc_hi":
        return [("s", 107)]
    if op == "exec":
        return [("s", 126), ("s", 127)]
    if op == "m0":
        return [("s", 124)]
    return []


def split_ops(s):
    out, depth, cur = [], 0, ""
    for ch in s:
        if ch in "[(":
            depth += 1
        if ch in "])":
            depth -= 1
        if ch == "," and depth == 0:
            out.append(cur.strip())
            cur = ""
        else:
            cur += ch
    if cur.strip():
        out.append(cur.strip())
    return out


class Ins:
    __slots__ = ("text", "mn", "ops", "mods", "rd", "wr", "kind", "label", "target", "srcc", "srcab", "passes",
                 "dpp", "states", "store_data", "sdwa_dst")

    def __init__(self, text):
        self.text = text
        self.label = None
        self.target = None
        self.rd, self.wr = [], []
        self.srcc, self.srcab = [], []
        self.passes = 0
        self.dpp = False
        self.states = 1
        self.store_data = []
        self.sdwa_dst = False
        t = text.split(";")[0].strip()
        if t.endswith(":"):
            self.label = t[:-1]
            self.kind = "label"
            self.mn = ""
            self.states = 0
            return
        if t.startswith(".") or not t:
            self.kind = "dir"
            self.mn = ""
            self.states = 0
            return
        parts = t.split(None, 1)
        mn = parts[0]
        self.mn = mn
        rest = parts[1] if len(parts) > 1 else ""
        ops = split_ops(rest)
        mods = ""
        if ops:
            last = ops[-1]
            sp = last.split(None, 1)
            if len(sp) > 1 and not last.startswith("hwreg") and not mn.startswith("s_waitcnt"):
                ops[-1] = sp[0]
                mods = sp[1]
        self.ops, self.mods = ops, mods
        R = lambda i: parse_regs(ops[i]) if i < len(ops) else []
        allr = lambda a: [r for i in range(a, len(ops)) for r in R(i)]
        if mn.startswith("v_mfma") or mn.startswith("v_smfmac"):
            self.kind = "mfma"
            self.wr = R(0)
            self.srcab = R(1) + R(2)
            self.srcc = R(3)
            self.rd = self.srcab + self.srcc
            if "32x32x16" in mn or "32x32x8" in mn:
                self.passes = 8
            elif "16x16x32" in mn or "16x16x16" in mn:
                self.passes = 4
            elif "16x16x4_f32" in mn:
                self.passes = 8
            elif "32x32x2_f32" in mn:
                self.passes = 16
            else:
                raise ValueError("unknown mfma " + mn)
        elif mn.startswith("v_"):
            self.kind = "valu"
            base = mn
            for suf in ("_e32", "_e64", "_dpp", "_sdwa"):
                if base.endswith(suf):
                    base = base[: -len(suf)]
            if "_dpp" in mn or "row_" in mods or "quad_perm" in mods or "wave_" in mods:
                self.dpp = True
            if "dst_sel:WORD" in mods or "dst_sel:BYTE" in mods:
                self.sdwa_dst = True
            if base.startswith("v_cmpx"):
                self.wr = R(0) + parse_regs("exec")
                self.rd = allr(1)
            elif base.startswith("v_cmp"):
                self.wr = R(0)
                self.rd = allr(1)
            elif base in ("v_add_co_u32", "v_sub_co_u32", "v_subrev_co_u32", "v_addc_co_u32", "v_subb_co_u32",
                          "v_mad_u64_u32", "v_div_scale_f32"):
                self.wr = R(0) + R(1)
                self.rd = allr(2)
            elif base.startswith("v_permlane"):
                self.wr = R(0) + R(1)
                self.rd = R(0) + R(1)
            elif base in ("v_fmac_f32", "v_dot2c_f32_bf16", "v_dot2c_f32_f16", "v_pk_fmac_f16", "v_writelane_b32"):
                self.wr = R(0)
                self.rd = allr(0)
            elif base == "v_nop":
                pass
            else:
                self.wr = R(0)
                self.rd = allr(1)
                if self.dpp or self.sdwa_dst:
                    self.rd = self.rd + R(0)
                if base == "v_cndmask_b32" and len(ops) == 3:
                    self.rd += parse_regs("vcc")
            self.mn = base
        elif mn.startswith("buffer_") or mn.startswith("global_") or mn.startswith("flat_"):
            self.kind = "vmem"
            islds = " lds" in (" " + mods) or "_lds_" in mn
            if mn in ("buffer_wbl2", "buffer_inv"):
                pass
            elif islds:
                self.rd = allr(0) + parse_regs("m0")
            elif "store" in mn:
                self.rd = allr(0)
                data = R(0) if mn.startswith("buffer_") else R(1)
                if len(data) >= 3:
                    self.store_data = data
            elif "atomic" in mn:
                self.rd = allr(0)
                if "sc0" in mods:
                    self.wr = R(0)
            else:
                self.wr = R(0)
                self.rd = allr(1)
                if "d16" in mn:
                    self.rd += R(0)
        elif mn.startswith("ds_"):
            self.kind = "ds"
            if mn.startswith("ds_write") or mn.startswith("ds_add") or mn.startswith("ds_max") or mn.startswith("ds_min"):
                if "_rtn" in mn:
                    self.wr = R(0)
                    self.rd = allr(1)
                else:
                    self.rd = allr(0)
            else:
                self.wr = R(0)
                self.rd = allr(1)
                if "d16" in mn:
                    self.rd += R(0)
        elif mn.startswith("s_"):
            self.kind = "salu"
            if mn == "s_nop":
                self.states = int(ops[0], 0) + 1
            elif mn.startswith("s_cbranch") or mn == "s_branch":
                self.kind = "branch"
                self.target = ops[0]
                if "vcc" in mn:
                    self.rd = parse_regs("vcc")
                if "exec" in mn:
                    self.rd = parse_regs("exec")
            elif mn == "s_endpgm":
                self.kind = "end"
            elif mn.startswith("s_cmp") or mn.startswith("s_bitcmp") or mn in ("s_waitcnt", "s_barrier", "s_setprio", "s_sleep"):
                self.rd = allr(0)
            elif mn.startswith("s_load") or mn.startswith("s_buffer_load") or mn in ("s_memtime", "s_memrealtime"):
                self.kind = "smem"
                self.wr = R(0)
                self.rd = allr(1)
            elif "saveexec" in mn:
                self.wr = R(0) + parse_regs("exec")
                self.rd = allr(1) + parse_regs("exec")
            else:
                self.wr = R(0)
                self.rd = allr(1)
                if mn in ("s_addk_i32", "s_mulk_i32"):
                    self.rd += R(0)
        else:
            raise ValueError("cannot parse: " + text)


XDL_RAW = {2: 5, 4: 8, 8: 12, 16: 20}
XDL_OVL = {2: 4, 4: 6, 8: 10, 16: 18}
XDL_WAR = {2: 1, 4: 3, 8: 7, 16: 15}


def va(regs):
    return set(r for r in regs if r[0] in "va")


def sg(regs):
    return set(r for r in regs if r[0] == "s")


def required(p, c):
    need = 0
    pw_v, pw_s = va(p.wr), sg(p.wr)
    if p.kind == "valu":
        if c.kind == "mfma" and pw_v & va(c.rd):
            need = max(need, 2)
        if c.kind == "valu":
            if c.dpp and pw_v & va(c.rd):
                need = max(need, 2)
            if c.mn.startswith("v_permlane") and pw_v & va(c.rd):
                need = max(need, 2)
            if c.mn in ("v_readlane_b32", "v_readfirstlane_b32") and pw_v & va(c.rd):
                need = max(need, 1)
            if p.mn in TRANS and c.mn not in TRANS and pw_v & va(c.rd):
                need = max(need, 1)
            if p.mn in TRANS and pw_v & va(c.rd):
                need = max(need, 1)
            if p.sdwa_dst and pw_v & (va(c.rd) | va(c.wr)):
                need = max(need, 1)
            if pw_s & sg(c.rd):
                need = max(need, 4 if c.mn in ("v_readlane_b32", "v_writelane_b32", "v_div_fmas_f32") else 2)
            if (("s", 126) in pw_s):
                if c.dpp:
                    need = max(need, 5)
                if c.mn.startswith("v_permlane") or c.mn in ("v_readlane_b32", "v_readfirstlane_b32", "v_writelane_b32"):
                    need = max(need, 4)
            if p.mn.startswith("v_dot") and pw_v & (va(c.rd) | va(c.wr)):
                same = (c.mn == p.mn)
                if same and not (pw_v & va(parse_regs(c.ops[1]) + parse_regs(c.ops[2]))):
                    pass
                else:
                    need = max(need, 3)
        if p.mn.startswith("v_dot") and c.kind in ("mfma", "vmem", "ds") and pw_v & (va(c.rd) | va(c.wr)):
            need = max(need, 3)
        if p.mn in TRANS and c.kind in ("vmem", "ds", "mfma") and pw_v & va(c.rd):
            need = max(need, 2 if c.kind == "mfma" else 1)
        if c.kind == "vmem" and pw_s & sg(c.rd):
            need = max(need, 5)
        if c.kind in ("salu", "smem", "branch") and pw_s & sg(c.rd):
            need = max(need, 5 if c.kind == "branch" else 2)
        if c.kind == "mfma" and (("s", 126) in pw_s):
            need = max(need, 4)
    if p.kind == "salu":
        if ("s", 124) in pw_s and c.kind in ("vmem", "ds") and ("s", 124) in sg(c.rd):
            need = max(need, 1)
    if p.kind == "mfma":
        d = va(p.wr)
        if c.kind == "mfma":
            if d & va(c.srcab):
                need = max(need, XDL_RAW[p.passes])
            cc = va(c.srcc)
            if d & cc:
                if c.srcc == p.wr and c.passes == p.passes:
                    need = max(need, 2 if p.passes == 2 else 0)
                else:
                    need = max(need, XDL_OVL[p.passes])
            elif d & va(c.wr):
                need = max(need, XDL_OVL[p.passes])
        elif c.kind in ("valu", "vmem", "ds"):
            if d & (va(c.rd) | va(c.wr)):
                need = max(need, XDL_RAW[p.passes])
            if c.kind == "valu" and va(p.srcc) & va(c.wr):
                need = max(need, XDL_WAR[p.passes])
    if p.kind == "vmem" and p.store_data:
        if set(p.store_data) & va(c.wr):
            need = max(need, 2 if c.kind == "valu" else 1)
    if p.kind == "ds" and p.mn in ("ds_write_b128", "ds_write_b96", "ds_write2_b64"):
        if c.kind == "valu" and va(p.rd) & va(c.wr):
            need = max(need, 1)
    return need


MAXD = 20


PROF = False
DIAG = None
WS_PROF = 0x2000000


class Kernel:
    def __init__(self, name, kid=0, pv=None):
        self.name = name
        self.ins = []
        self.nlab = 0
        self.kid = kid
        self.pv = pv

    def stamp(self, idx, real=False):
        if not PROF:
            return
        self("s_memrealtime s[100:101]" if real else "s_memtime s[100:101]")
        self("s_waitcnt lgkmcnt(0)")
        self(f"v_writelane_b32 v{self.pv}, s100, {idx}")

    def start(self):
        if DIAG:
            self("s_memrealtime s[100:101]")
        if PROF:
            self(f"v_mov_b32 v{self.pv}, 0")
        self.stamp(0, True)
        self.stamp(1)
        if PROF:
            self(f"v_readfirstlane_b32 s101, v0")
            self(f"v_writelane_b32 v{self.pv}, s101, 13")

    def code_prefetch(self, vt, st, nwaves):
        self(f"s_getpc_b64 s[{st}:{st+1}]")
        self.label(f"{self.name}_pc")
        self(f"s_lshr_b32 s{st+2}, s2, 3")
        self(f"s_mul_i32 s{st+2}, s{st+2}, {nwaves*1024}")
        self(f"v_lshl_add_u32 v{vt}, v0, 4, s{st+2}")
        self(f"s_mov_b32 s{st+3}, all_code_end-{self.name}_pc-16")
        self(f"v_cmp_gt_u32 vcc, s{st+3}, v{vt}")
        self(f"v_min_u32 v{vt}, s{st+3}, v{vt}")
        self(f"s_cbranch_vccz {self.name}_npf")
        self(f"v_and_b32 v{vt}, -4, v{vt}")
        self(f"v_mov_b32 v{vt+1}, s{st+1}")
        self(f"v_add_co_u32 v{vt}, vcc, s{st}, v{vt}")
        self(f"v_addc_co_u32 v{vt+1}, vcc, 0, v{vt+1}, vcc")
        self(f"global_load_dwordx4 v[{vt+2}:{vt+5}], v[{vt}:{vt+1}], off")
        self.label(f"{self.name}_npf")

    def endpgm(self):
        if DIAG:
            L = self.newlabel("dg")
            self("s_cmp_lg_u32 s2, 0")
            self(f"s_cbranch_scc1 {L}")
            self("s_mov_b64 exec, 1")
            self.srd(96, 36, 4096, WS_PROF)
            self("v_mov_b32 v0, s100")
            self(f"v_mov_b32 v1, {self.kid*4}")
            self("buffer_store_dword v0, v1, s[96:99], 0 offen")
            self.label(L)
        if PROF:
            self("s_mov_b64 exec, -1")
            self("s_waitcnt vmcnt(0)")
            self.stamp(14)
            self.stamp(15, True)
            self.srd(96, 36, 0x1000000, WS_PROF)
            self(f"v_readlane_b32 s100, v{self.pv}, 13")
            self("s_lshr_b32 s100, s100, 6")
            self(f"s_lshl_b32 s101, s2, 3")
            self("s_add_u32 s100, s100, s101")
            self(f"s_add_u32 s100, s100, {self.kid*8192}")
            self("s_lshl_b32 s100, s100, 6")
            self("v_mbcnt_lo_u32_b32 v0, -1, 0")
            self("v_mbcnt_hi_u32_b32 v0, -1, v0")
            self("v_lshlrev_b32 v0, 2, v0")
            self("s_mov_b64 exec, 0xffff")
            self(f"buffer_store_dword v{self.pv}, v0, s[96:99], s100 offen")
        self("s_endpgm")

    def __call__(self, s):
        for l in s.strip("\n").split("\n"):
            l = l.strip()
            if l and not l.startswith(";"):
                self.ins.append(Ins(l))

    def label(self, name):
        self.ins.append(Ins(name + ":"))

    def newlabel(self, base="L"):
        self.nlab += 1
        return f"{self.name}_{base}{self.nlab}"

    def srd(self, d, base, nbytes, off=0):
        if off:
            self(f"s_add_u32 s{d}, s{base}, {off}")
            self(f"s_addc_u32 s{d+1}, s{base+1}, 0")
            self(f"s_and_b32 s{d+1}, s{d+1}, 0xffff")
        else:
            self(f"s_mov_b32 s{d}, s{base}")
            self(f"s_and_b32 s{d+1}, s{base+1}, 0xffff")
        self(f"s_mov_b32 s{d+2}, {nbytes}")
        self(f"s_mov_b32 s{d+3}, 0x00020000")

    def fix_hazards(self):
        total = 0
        while True:
            ins = self.ins
            labpos = {x.label: i for i, x in enumerate(ins) if x.label}
            srcs = {}
            for i, x in enumerate(ins):
                if x.kind == "branch":
                    srcs.setdefault(labpos[x.target], []).append(i)
            inserted = False
            for i, c in enumerate(ins):
                if c.kind in ("label", "dir"):
                    continue
                worst = 0
                stack = [(i - 1, 0)]
                seen = set()
                while stack:
                    j, dist = stack.pop()
                    while j >= 0 and dist < MAXD:
                        if (j, dist) in seen:
                            break
                        seen.add((j, dist))
                        p = ins[j]
                        if p.kind == "label":
                            for sidx in srcs.get(j, []):
                                stack.append((sidx, dist))
                            j -= 1
                            continue
                        if p.kind == "dir":
                            j -= 1
                            continue
                        if p.kind == "end" or (p.kind == "branch" and p.mn == "s_branch" and False):
                            break
                        need = required(p, c)
                        if need > dist:
                            worst = max(worst, need - dist)
                        dist += p.states
                        if j - 1 >= 0 and ins[j].kind == "label":
                            pass
                        j -= 1
                if worst:
                    n = worst
                    pads = []
                    while n > 0:
                        k = min(n, 16)
                        pads.append(Ins(f"s_nop {k-1}"))
                        n -= k
                    self.ins[i:i] = pads
                    total += worst
                    inserted = True
                    break
            if not inserted:
                break
        return total

    def fix_hazards_fast(self):
        total = 0
        i = 0
        while i < len(self.ins):
            ins = self.ins
            c = ins[i]
            if c.kind in ("label", "dir"):
                i += 1
                continue
            worst = self._worst(i)
            if worst:
                n = worst
                pads = []
                while n > 0:
                    k = min(n, 16)
                    pads.append(Ins(f"s_nop {k-1}"))
                    n -= k
                self.ins[i:i] = pads
                self._lab = None
                total += worst
                i += len(pads)
            i += 1
        return total

    _lab = None

    def _worst(self, i):
        ins = self.ins
        if self._lab is None:
            labpos = {x.label: k for k, x in enumerate(ins) if x.label}
            srcs = {}
            for k, x in enumerate(ins):
                if x.kind == "branch":
                    srcs.setdefault(labpos[x.target], []).append(k)
            self._lab = srcs
        srcs = self._lab
        c = ins[i]
        worst = 0
        stack = [(i - 1, 0, True)]
        seen = set()
        while stack:
            j, dist, fall = stack.pop()
            while j >= 0 and dist < MAXD:
                if (j, dist) in seen:
                    break
                seen.add((j, dist))
                p = ins[j]
                if p.kind == "label":
                    for sidx in srcs.get(j, []):
                        stack.append((sidx, dist, False))
                    j -= 1
                    fall = True
                    continue
                if p.kind == "dir":
                    j -= 1
                    continue
                if p.kind == "end":
                    break
                if p.kind == "branch" and p.mn == "s_branch" and fall:
                    break
                need = required(p, c)
                if need > dist:
                    worst = max(worst, need - dist)
                dist += p.states
                j -= 1
                fall = True
        return worst

    def maxregs(self):
        mv = ma = ms = -1
        for x in self.ins:
            for (k, i) in x.rd + x.wr:
                if k == "v":
                    mv = max(mv, i)
                elif k == "a":
                    ma = max(ma, i)
                elif k == "s" and i < 102:
                    ms = max(ms, i)
        return mv + 1, ma + 1, ms + 1


class Module:
    def __init__(self):
        self.kernels = []
        self.launches = []

    def add(self, k, grid, block, lds, min_vgpr=0):
        self.kernels.append((k, min_vgpr))
        self.launches.append(
            f"; @launch kernel={k.name} grid=({grid},1,1) block=({block},1,1) lds={lds}")

    def relaunch(self, k, grid, block, lds):
        self.launches.append(
            f"; @launch kernel={k.name} grid=({grid},1,1) block=({block},1,1) lds={lds}")

    def text(self, header=""):
        out = []
        if header:
            out.append(header.rstrip("\n"))
        out += self.launches
        out.append('.amdgcn_target "amdgcn-amd-amdhsa--gfx950"')
        out.append(".text")
        info = []
        for (k, minv) in self.kernels:
            n = k.fix_hazards_fast()
            n += k.fix_hazards_fast()
            out += [f".globl {k.name}", ".p2align 8", f".type {k.name},@function", f"{k.name}:"]
            for x in k.ins:
                out.append(x.text if x.kind == "label" else "    " + x.text)
            nv, na, ns = k.maxregs()
            nv = max(nv, minv, 4)
            acc = (nv + 3) // 4 * 4
            tot = acc + na if na > 0 else nv
            info.append((k.name, tot, max(ns, 8), min(acc, 256)))
            nsel = 0
            for x in k.ins:
                if x.kind == "valu" and x.mn.startswith("v_pk_") and x.mn.endswith("_f32"):
                    m_ = re.search(r"op_sel:\[([01,]+)\]", x.mods)
                    if m_:
                        for i_, b_ in enumerate(m_.group(1).split(",")):
                            if b_ == "1" and x.ops[1 + i_].startswith("v"):
                                nsel += 1
            if nsel:
                print(f"   WARNING {k.name}: {nsel} pk ops with op_sel=1 on a VGPR source")
            print(f"{k.name}: {len(k.ins)} instrs, vgpr {nv} agpr {na} sgpr {ns}, nop states inserted {n}")
        out.append("all_code_end:")
        out.append('.section .rodata,"a"')
        for (name, tot, ns, acc) in info:
            out += [".p2align 6", f".amdhsa_kernel {name}",
                    f"  .amdhsa_next_free_vgpr {tot}",
                    f"  .amdhsa_next_free_sgpr {ns}",
                    f"  .amdhsa_accum_offset {acc}",
                    "  .amdhsa_group_segment_fixed_size 0",
                    "  .amdhsa_kernarg_size 136",
                    "  .amdhsa_user_sgpr_count 2",
                    "  .amdhsa_user_sgpr_kernarg_segment_ptr 1",
                    "  .amdhsa_system_sgpr_workgroup_id_x 1",
                    "  .amdhsa_float_denorm_mode_32 3",
                    ".end_amdhsa_kernel"]
        return "\n".join(out) + "\n"
```

```python
from gfx import Kernel
from layout import *
from common import *
import os

AB_GRID = 256
AB_BLOCK = 512
CNT = 0
PAR = 64
KB = 128
HB = KB + 2 * KR_CH
XB = HB + 9216
RB = XB + 8192
REC = RB
T16 = RB + 12288
PT = RB + 16384
PTS = 3136
SJ = PT + 8 * PTS
AB_LDS = SJ
PF1 = int(os.environ.get('PF1', 32))
C_K1, C_K2, C_A, C_R, C_W, C_L, C_G, C_P, C_W2, C_X = 0, 4, 8, 12, 20, 24, 28, 32, 36, 40
LNP = SJ
SPIN = 0x100000
NTPF = int(os.environ.get('NTPF', 0))
NBAR = 1
RAW = 96
OUTR = 192
SBR, CBR = 176, 184
XCOL_FLAGS = os.environ.get("XCOL_FLAGS", "")


def lds_signal(k, addr_v, one_v):
    k("s_waitcnt lgkmcnt(0)")
    k("s_mov_b64 exec, 1")
    k(f"ds_add_u32 v{addr_v}, v{one_v}")
    k("s_mov_b64 exec, -1")


def lds_wait(k, addr_v, tmp_v, target, st="s90"):
    L = k.newlabel("w")
    k.label(L)
    k(f"ds_read_b32 v{tmp_v}, v{addr_v}")
    k("s_waitcnt lgkmcnt(0)")
    k(f"v_readfirstlane_b32 {st}, v{tmp_v}")
    k(f"s_cmp_lt_u32 {st}, {target}")
    k(f"s_cbranch_scc1 {L}")


def gpoll(k, name, b, sleep=2):
    k("s_mov_b32 s56, 0")
    k(f"s_mov_b32 s91, {b*16384}")
    k.label(name)
    k(f"s_sleep {sleep}")
    k("buffer_load_dword v87, v89, s[40:43], s91 offen sc1")
    k("s_add_u32 s56, s56, 1")
    k("s_waitcnt vmcnt(0)")
    k("v_cmp_gt_u32 vcc, 16, v87")
    k(f"s_cbranch_vccz {name}_ok")
    k(f"s_cmp_lt_u32 s56, {SPIN}")
    k(f"s_cbranch_scc1 {name}")
    k.label(name + "_ok")


def kernel_AB():
    k = Kernel("kab_kernel", 0, 250)
    L_end = "kab_end"
    k(f"s_cmp_ge_u32 s2, {AB_GRID}")
    k("s_cbranch_scc1 kab_oob")
    k.start()
    k("s_load_dwordx16 s[64:79], s[0:1], 0")
    k("s_load_dwordx8 s[80:87], s[0:1], 64")
    k("s_load_dwordx4 s[92:95], s[0:1], 96")
    k("s_load_dwordx4 s[32:35], s[0:1], 120")
    if not os.environ.get("NOCPF"):
        k.code_prefetch(240, 12, 8)
    k("v_and_b32 v1, 63, v0")
    k("v_lshrrev_b32 v2, 6, v0")
    k("v_readfirstlane_b32 s11, v2")
    k("s_and_b32 s4, s2, 7")
    k("s_lshl_b32 s4, s4, 5")
    k("s_lshr_b32 s5, s2, 3")
    k("s_add_u32 s4, s4, s5")
    k("s_and_b32 s3, s11, 3")
    k("s_lshr_b32 s88, s4, 1")
    k("s_lshl_b32 s88, s88, 2")
    k("s_and_b32 s89, s4, 1")
    k("s_add_u32 s88, s88, s89")
    k("v_lshlrev_b32 v3, 4, v1")
    k("v_mov_b32 v248, 1")
    k("s_cmp_ge_u32 s11, 4")
    k("s_cbranch_scc1 kab_h")

    k("v_and_b32 v4, 31, v0")
    k("v_bfe_u32 v5, v0, 5, 1")
    k("v_lshl_add_u32 v4, v2, 5, v4")
    k("v_lshlrev_b32 v4, 1, v4")
    k("v_lshl_add_u32 v4, v5, 9, v4")
    k("s_lshl_b32 s54, s88, 8")
    k("s_lshl_b32 s55, s88, 1")
    k("v_lshlrev_b32 v29, 2, v5")
    k("v_mov_b32 v110, 0")
    k("s_waitcnt lgkmcnt(0)")
    k.stamp(6)
    k("s_mov_b64 s[36:37], s[34:35]")
    k.srd(12, 74, 1024)
    k("buffer_load_ushort v10, v29, s[12:15], s55 offen")
    k.srd(16, 66, 131072)
    k("buffer_load_ushort v11, v4, s[16:19], s54 offen nt")
    k.srd(20, 68, 131072)
    k("buffer_load_ushort v12, v4, s[20:23], s54 offen nt")
    k.srd(24, 70, 131072)
    k("buffer_load_ushort v13, v4, s[24:27], s54 offen nt")
    k.srd(28, 72, 131072)
    k("buffer_load_ushort v14, v4, s[28:31], s54 offen nt")
    k.srd(12, 76, 1024)
    k("buffer_load_ushort v111, v29, s[12:15], s55 offen")
    k("s_barrier")
    k("v_and_b32 v6, 15, v1")
    k("v_lshrrev_b32 v7, 4, v1")
    k("v_lshrrev_b32 v8, 3, v6")
    k("v_and_b32 v9, 7, v6")
    k("v_lshl_add_u32 v8, v8, 7, v9")
    k("v_add_u32 v8, 1, v8")
    k("v_cvt_f32_u32 v20, v8")
    k("v_lshrrev_b32 v8, 2, v6")
    k("v_and_b32 v15, 3, v6")
    k("v_lshlrev_b32 v15, 1, v15")
    k("v_lshl_add_u32 v8, v8, 7, v15")
    k("v_add_u32 v8, 258, v8")
    k("v_lshrrev_b32 v15, 1, v9")
    k("v_and_b32 v16, 1, v6")
    k("v_lshlrev_b32 v16, 2, v16")
    k("v_lshl_add_u32 v15, v15, 7, v16")
    k("v_add_u32 v15, 516, v15")
    k("v_cmp_gt_u32 vcc, 8, v6")
    k("v_cndmask_b32 v8, v15, v8, vcc")
    k("v_cvt_f32_u32 v42, v8")
    k("v_lshlrev_b32 v8, 3, v6")
    k("v_cvt_f32_u32 v22, v8")
    k(f"v_mul_u32_u24 v24, {PTS}, v2")
    k(f"v_add_u32 v24, {PT}, v24")
    k("v_lshrrev_b32 v8, 1, v7")
    k("v_and_b32 v9, 1, v7")
    k("v_lshlrev_b32 v15, 7, v8")
    k("v_lshl_add_u32 v15, v9, 2, v15")
    k("v_lshl_add_u32 v15, v6, 3, v15")
    k("v_add_u32 v15, 4, v15")
    k("v_lshl_add_u32 v25, v15, 2, v24")
    k("v_lshl_add_u32 v15, v8, 4, v6")
    k("v_add_u32 v15, 516, v15")
    k("v_add_u32 v16, 660, v6")
    k("v_cmp_eq_u32 vcc, 1, v9")
    k("v_cndmask_b32 v15, v16, v15, vcc")
    k("v_lshl_add_u32 v28, v15, 2, v24")
    k("v_lshlrev_b32 v8, 6, v7")
    k("v_add_u32 v8, 260, v8")
    k("v_lshl_add_u32 v9, v6, 2, v8")
    k("v_lshl_add_u32 v15, v6, 1, v8")
    k("v_cmp_gt_u32 vcc, 2, v7")
    k("v_cndmask_b32 v8, v15, v9, vcc")
    k("v_lshl_add_u32 v26, v8, 2, v24")
    k("v_mov_b32 v9, 128")
    k("v_cndmask_b32 v9, v9, 8, vcc")
    k("v_add_u32 v27, v26, v9")
    k("v_add_u32 v8, 2, v7")
    k("v_lshl_add_u32 v9, v7, 1, 1")
    k("v_cndmask_b32 v8, v9, v8, vcc")
    k("v_lshl_add_u32 v8, v8, 4, v6")
    k("v_add_u32 v8, 516, v8")
    k("v_lshl_add_u32 v17, v8, 2, v24")
    k("v_lshl_add_u32 v8, v7, 5, v6")
    k("v_add_u32 v8, 516, v8")
    k("v_cndmask_b32 v8, v8, v16, vcc")
    k("v_lshl_add_u32 v18, v8, 2, v24")
    k(f"v_mul_u32_u24 v19, {4*PTS}, v5")
    k("v_add3_u32 v19, v19, v24, 12")
    k("v_lshlrev_b32 v8, 3, v0")
    k("v_sub_u32 v8, 2047, v8")
    k("s_movk_i32 s44, 0x80")
    k(f"s_mov_b32 s45, {17024}")
    for e in range(9):
        g = 30 + e
        if e:
            k("v_subrev_u32 v8, 1, v8")
        if e == 8:
            k("v_max_i32 v8, 0, v8")
        k("v_cvt_f32_u32 v9, v8")
        k("v_cvt_pk_bf16_f32 v9, v9, v9")
        k("v_lshrrev_b32 v9, 16, v9")
        k("v_subrev_u32 v9, s45, v9")
        k("v_med3_i32 v9, v9, v8, s44")
        k(f"v_lshlrev_b32 v{g}, 1, v9")
    k(f"s_mov_b32 s46, {f32(LOG2E_HI)}")
    k(f"s_mov_b32 s47, {f32(LOG2E_LO)}")
    k(f"s_mov_b32 s48, {f32(-LOG2E)}")
    k(f"s_mov_b32 s49, {f32(1.0/(2*math.pi))}")
    k(f"s_mov_b32 s58, {f32(1024.0)}")
    k("v_mul_u32_u24 v8, 3072, v2")
    k(f"v_add_u32 v8, {REC}, v8")
    k("v_mad_u32_u24 v40, v1, 48, v8")
    k("v_mul_u32_u24 v41, 384, v7")
    k("v_add_u32 v41, v41, v8")
    k.stamp(7)
    k("s_waitcnt vmcnt(5)")
    k("v_lshlrev_b32 v10, 16, v10")
    exp_precise(k, "v10", "v10", "v15", "v16", "s46", "s47")
    round_bf16(k, "v10", "v10")
    k("s_waitcnt vmcnt(4)")
    k("v_lshlrev_b32 v11, 16, v11")
    exp_precise(k, "v11", "v11", "v15", "v16", "s46", "s47")
    round_bf16(k, "v11", "v11")
    k("v_mul_f32 v11, v11, v10")
    k("v_mul_f32 v44, s48, v11")
    k("s_waitcnt vmcnt(3)")
    k("v_lshlrev_b32 v12, 16, v12")
    k("v_mul_f32 v12, v12, v10")
    k("v_mul_f32 v45, s49, v12")
    k("v_pk_mul_f32 v[52:53], v[44:45], s[58:59] op_sel_hi:[1,0]")
    k("v_fract_f32 v53, v53")
    k("v_exp_f32 v52, v52")
    k("v_cos_f32 v54, v53")
    k("v_sin_f32 v55, v53")
    k("v_pk_mul_f32 v[54:55], v[54:55], v[52:53] op_sel_hi:[1,0]")
    k("s_waitcnt vmcnt(0)")
    k.stamp(2)
    k("v_lshlrev_b32 v13, 16, v13")
    k("v_lshlrev_b32 v14, 16, v14")
    k("v_max_f32 v15, abs(v13), abs(v14)")
    k("v_add_f32_dpp v16, v13, v13 row_ror:8 row_mask:0xf bank_mask:0xf")
    for rot in (8, 4, 2, 1):
        k(f"v_max_f32_dpp v15, v15, v15 row_ror:{rot} row_mask:0xf bank_mask:0xf")
        if rot != 8:
            k(f"v_add_f32_dpp v16, v16, v16 row_ror:{rot} row_mask:0xf bank_mask:0xf")
    k("v_mov_b32 v8, v15")
    k("v_mov_b32 v9, v16")
    k("v_permlane16_swap_b32 v8, v15")
    k("v_permlane16_swap_b32 v9, v16")
    k("v_max_f32 v15, v15, v8")
    k("v_add_f32 v16, v16, v9")
    k("v_and_b32 v15, 0x7f800000, v15")
    k("v_max_u32 v15, 0x00800000, v15")
    k("v_min_u32 v15, 0x7e800000, v15")
    k("v_sub_u32 v8, 0x7f000000, v15")
    k("v_mul_f32 v46, v8, v13")
    k("v_mul_f32 v47, -v8, v14")
    k("v_add_f32 v10, v10, v10")
    k("v_mul_f32 v16, v16, v10")
    k("v_mul_f32 v15, v15, v10")
    k("v_mov_b32 v48, v47")
    k("v_sub_f32 v49, 0, v46")
    k("v_mul_f32 v50, v54, v46")
    k("v_fma_f32 v50, v55, v47, v50")
    k("v_mul_f32 v51, v54, v47")
    k("v_fma_f32 v51, -v55, v46, v51")
    k("v_mov_b32 v52, v51")
    k("v_sub_f32 v53, 0, v50")
    k("ds_write_b128 v40, v[44:47]")
    k("ds_write_b128 v40, v[48:51] offset:16")
    k("ds_write_b64 v40, v[52:53] offset:32")
    k("s_mov_b32 exec_lo, 1")
    k("s_mov_b32 exec_hi, 1")
    k("ds_write_b32 v19, v16")
    k("s_mov_b64 exec, -1")
    k("v_readlane_b32 s50, v15, 0")
    k("v_readlane_b32 s52, v15, 32")
    k.stamp(8)
    if NTPF:
        k.srd(28, 82, 2048 * 4096)
        k("s_lshl_b32 s60, s4, 15")
        k("s_lshl_b32 s61, s3, 7")
        k("s_add_u32 s60, s60, s61")
        k("s_mov_b32 s61, s60")
        k("v_lshrrev_b32 v112, 3, v1")
        k("v_lshlrev_b32 v112, 12, v112")
        k("v_and_b32 v113, 7, v1")
        k("v_lshl_add_u32 v112, v113, 4, v112")
    k("s_mov_b32 s53, 0")
    k("s_waitcnt lgkmcnt(0)")
    D0, PR, FR = 48, 128, 88
    TA_ = (104, 106, 108)
    TC_ = (120, 122, 124, 126)
    UP = (20, 42, 22)
    k.label("kab_kloop")
    for c in range(4):
        k(f"ds_read_b128 v[{PR+c*10}:{PR+c*10+3}], v41 offset:{c*48}")
        k(f"ds_read_b128 v[{PR+c*10+4}:{PR+c*10+7}], v41 offset:{c*48+16}")
        k(f"ds_read_b64 v[{PR+c*10+8}:{PR+c*10+9}], v41 offset:{c*48+32}")
    k("s_bitcmp1_b32 s53, 0")
    k("s_cbranch_scc1 kab_knz")
    for r in range(16):
        k(f"v_mov_b32 v{D0+r}, 0")
    k.label("kab_knz")
    for c in range(4):
        k(f"s_waitcnt lgkmcnt({9-3*c})")
        p = PR + c * 10
        for Ti in range(3):
            t = TA_[Ti]
            k(f"v_pk_mul_f32 v[{t}:{t+1}], v[{p}:{p+1}], v[{UP[Ti]}:{UP[Ti]+1}] op_sel_hi:[1,0]")
        for Ti in range(3):
            t = TA_[Ti]
            k(f"v_fract_f32 v{t+1}, v{t+1}")
            k(f"v_exp_f32 v{t}, v{t}")
        for Ti in range(3):
            k(f"v_cos_f32 v{TC_[Ti]}, v{TA_[Ti]+1}")
            k(f"v_sin_f32 v{TC_[Ti]+1 if Ti < 2 else TC_[3]}, v{TA_[Ti]+1}")
        for Ti in range(2):
            t, q = TA_[Ti], TC_[Ti]
            k(f"v_pk_mul_f32 v[{q}:{q+1}], v[{q}:{q+1}], v[{t}:{t+1}] op_sel_hi:[1,0]")
        k(f"v_mul_f32 v{TC_[2]}, v{TC_[2]}, v{TA_[2]}")
        k(f"v_mul_f32 v{TC_[3]}, v{TC_[3]}, v{TA_[2]}")
        for Ti in range(2):
            k(f"v_cvt_pk_f16_f32 v{FR+Ti*4+c}, v{TC_[Ti]}, v{TC_[Ti]+1}")
        for y in range(2):
            t = TA_[y]
            cc = p + 2 + 4 * y
            k(f"v_pk_mul_f32 v[{t}:{t+1}], v[{cc}:{cc+1}], v[{TC_[2]}:{TC_[2]+1}] op_sel_hi:[1,0]")
        for y in range(2):
            t = TA_[y]
            cc = p + 4 + 4 * y
            k(f"v_pk_fma_f32 v[{t}:{t+1}], v[{cc}:{cc+1}], v[{TC_[3]}:{TC_[3]+1}], v[{t}:{t+1}] op_sel_hi:[1,0,1]")
        for y in range(2):
            k(f"v_cvt_pk_f16_f32 v{FR+8+4*y+c}, v{TA_[y]}, v{TA_[y]+1}")
    for y in range(2):
        for x in range(2):
            d = D0 + (y * 2 + x) * 4
            k(f"v_mfma_f32_16x16x32_f16 v[{d}:{d+3}], v[{FR+4*x}:{FR+4*x+3}], v[{FR+8+4*y}:{FR+11+4*y}], v[{d}:{d+3}]")
    k("v_add_u32 v41, 192, v41")
    k("s_bitcmp1_b32 s53, 0")
    k("s_cbranch_scc0 kab_knf")
    for r in range(D0, D0 + 8, 2):
        k(f"v_pk_mul_f32 v[{r}:{r+1}], v[{r}:{r+1}], s[50:51] op_sel_hi:[1,0]")
    for r in (D0 + 11, D0 + 13, D0 + 15):
        k(f"v_mul_f32 v{r}, s50, v{r}")
    k(f"ds_write_b128 v25, v[{D0}:{D0+3}]")
    k(f"ds_write_b64 v26, v[{D0+4}:{D0+5}]")
    k(f"ds_write_b64 v27, v[{D0+6}:{D0+7}]")
    k(f"ds_write_b32 v28, v{D0+11}")
    k(f"ds_write_b32 v18, v{D0+13}")
    k(f"ds_write_b32 v17, v{D0+15}")
    for r in (25, 26, 27, 28, 17, 18):
        k(f"v_add_u32 v{r}, {4*PTS}, v{r}")
    k(f"v_add_u32 v41, {1536-384}, v41")
    k("s_mov_b32 s50, s52")
    k("s_waitcnt lgkmcnt(0)")
    k.label("kab_knf")
    if NTPF:
        k("s_waitcnt vmcnt(0)")
        for i in range(2):
            k(f"buffer_load_dwordx4 v[116:119], v112, s[28:31], s61 offen offset:{i*512}")
        for i in range(2):
            k(f"buffer_load_dwordx4 v[116:119], v112, s[28:31], s60 offen offset:{i*512} nt")
        k("s_mov_b32 s61, s60")
        k("s_add_u32 s60, s60, 1024")
    k("s_add_u32 s53, s53, 1")
    k("s_cmp_lt_u32 s53, 4")
    k("s_cbranch_scc1 kab_kloop")
    k.stamp(3)
    k(f"v_mov_b32 v10, {C_K1}")
    lds_signal(k, 10, 248)
    k("v_lshlrev_b32 v8, 2, v0")
    k("v_lshlrev_b32 v9, 1, v0")
    lds_wait(k, 10, 11, 4)
    k.stamp(4)
    for c in range(2):
        for e in range(3):
            for w in range(4):
                k(f"ds_read_b32 v{48+c*12+e*4+w}, v8 offset:{PT+12+(c*4+w)*PTS+e*1024}") if PT + 12 + (c*4+w)*PTS + e*1024 < 65536 else \
                    k(f"ds_read_b32 v{48+c*12+e*4+w}, v12 offset:{PT+12+(c*4+w)*PTS+e*1024-32768}")
        if c == 0:
            k("v_add_u32 v12, 32768, v8")
            k("s_waitcnt lgkmcnt(3)")
    for c in range(2):
        k(f"s_waitcnt lgkmcnt({12 if c == 0 else 3})")
        for e in range(3):
            b = 48 + c * 12 + e * 4
            k(f"v_add_f32 v{b}, v{b}, v{b+1}")
            k(f"v_add_f32 v{b+2}, v{b+2}, v{b+3}")
        for e in range(3):
            b = 48 + c * 12 + e * 4
            k(f"v_add_f32 v{b}, v{b}, v{b+2}")
        for e in range(3):
            b = 48 + c * 12 + e * 4
            k(f"v_cvt_pk_bf16_f32 v{b}, v{b}, v{b}")
        for e in range(3):
            k(f"ds_write_b16 v9, v{48+c*12+e*4} offset:{T16+c*1536+e*512}")
    k(f"v_mov_b32 v10, {C_K2}")
    lds_signal(k, 10, 248)
    k("s_lshr_b32 s40, s3, 1")
    k("s_and_b32 s41, s3, 1")
    k("v_and_b32 v12, 14, v6")
    k("v_lshlrev_b32 v12, 1, v12")
    k("v_lshlrev_b32 v13, 4, v7")
    k("v_sub_u32 v12, v13, v12")
    k("v_and_b32 v13, 1, v6")
    k(f"v_mul_u32_u24 v13, {KR_CP}, v13")
    k("v_sub_u32 v12, v12, v13")
    k(f"s_mul_i32 s42, s40, {KR_CH}")
    k("s_lshl_b32 s43, s41, 8")
    k("s_sub_u32 s42, s42, s43")
    k(f"s_add_u32 s42, s42, {KB + KR_CP + 4060 - 512}")
    k("v_add_u32 v20, s42, v12")
    for a_ in range(1, 4):
        k(f"v_subrev_u32 v{20+a_}, {1024*a_}, v20")
    k("v_lshlrev_b32 v12, 5, v6")
    k("v_lshl_add_u32 v12, v7, 4, v12")
    k("s_mul_i32 s42, s40, 4608")
    k("s_sub_u32 s42, s42, s43")
    k(f"s_add_u32 s42, s42, {HB + 512 - 32}")
    k("v_add_u32 v24, s42, v12")
    k("v_lshlrev_b32 v12, 5, v6")
    k("v_lshl_add_u32 v12, v7, 3, v12")
    k("s_lshl_b32 s43, s41, 11")
    k("s_mul_i32 s42, s40, 4608")
    k("s_add_u32 s42, s42, s43")
    k(f"s_add_u32 s42, s42, {HB + 512}")
    k("v_add_u32 v25, s42, v12")
    k("v_lshlrev_b32 v12, 6, v6")
    k("v_lshrrev_b32 v13, 1, v7")
    k("v_lshl_add_u32 v12, v13, 5, v12")
    k("v_and_b32 v13, 1, v7")
    k("v_lshl_add_u32 v12, v13, 3, v12")
    k("s_lshl_b32 s42, s40, 4")
    k("s_lshl_b32 s45, s41, 12")
    k("s_add_u32 s42, s42, s45")
    k(f"s_add_u32 s42, s42, {XB}")
    k("v_add_u32 v26, s42, v12")
    k("v_lshrrev_b32 v12, 1, v6")
    k("v_lshlrev_b32 v12, 3, v12")
    k("v_and_b32 v13, 1, v7")
    k("v_lshl_add_u32 v12, v13, 2, v12")
    k("v_and_b32 v13, 1, v6")
    k("v_lshl_add_u32 v12, v13, 1, v12")
    k("v_lshrrev_b32 v13, 1, v7")
    k("v_add_u32 v12, v12, v13")
    k("v_lshlrev_b32 v27, 3, v12")
    k("s_lshl_b32 s44, s40, 1")
    k("s_add_u32 s44, s44, s88")
    k("s_lshl_b32 s44, s44, 12")
    k("s_add_u32 s44, s44, s43")
    k("s_lshl_b32 s42, s3, 12")
    k(f"s_add_u32 s42, s42, {RB}")
    k("v_add_u32 v28, s42, v3")
    k("s_xor_b32 s42, s3, 1")
    k("s_lshl_b32 s42, s42, 12")
    k(f"s_add_u32 s42, s42, {RB}")
    k("v_add_u32 v29, s42, v3")
    k.srd(16, 36, 512 * 4096, WS_X1T)
    k("v_lshlrev_b32 v12, 16, v111")
    k("v_readlane_b32 s47, v12, 0")
    k("v_readlane_b32 s48, v12, 32")
    k("s_cmp_eq_u32 s40, 0")
    k("s_cselect_b32 s47, s47, s48")
    lds_wait(k, 10, 11, 4)
    k.stamp(5)
    for c in range(2):
        for e in range(9):
            k(f"ds_read_u16 v{48+c*10+e}, v{30+e} offset:{T16+c*1536}")
        if c == 0:
            k("s_waitcnt lgkmcnt(6)")
    k("v_lshlrev_b32 v8, 4, v0")
    for r in range(72, 76):
        k(f"v_mov_b32 v{r}, 0")
    k("v_cmp_eq_u32 vcc, 255, v0")
    for c in range(2):
        k(f"s_waitcnt lgkmcnt({9 if c == 0 else 2})")
        b = 48 + c * 10
        o = 80 + c * 8
        k(f"v_cndmask_b32 v{b+8}, v{b+8}, v72, vcc")
        for j in range(4):
            k(f"v_lshl_or_b32 v{o+j}, v{b+1+2*j}, 16, v{b+2*j}")
        k(f"ds_write_b128 v8, v[{o}:{o+3}] offset:{KB + c*KR_CH}")
        for j in range(4):
            k(f"v_lshl_or_b32 v{o+4+j}, v{b+2+2*j}, 16, v{b+1+2*j}")
        k(f"ds_write_b128 v8, v[{o+4}:{o+7}] offset:{KB + c*KR_CH + KR_CP}")
    for r in range(44, 76):
        k(f"v_mov_b32 v{r}, 0")
    k("s_waitcnt lgkmcnt(0)")
    k.stamp(9)
    if NTPF:
        k("s_waitcnt vmcnt(0)")
        for i in range(2):
            k(f"buffer_load_dwordx4 v[116:119], v112, s[28:31], s61 offen offset:{i*512}")
    k("s_barrier")
    k.stamp(10)

    FA = (76, 144)
    FB = (176, 208)

    def reads(s):
        out = []
        for m in range(8):
            a_ = m >> 1
            o = 0 if (m & 1) else 128
            x = FA[s] + 4 * m
            out.append(f"ds_read2_b32 v[{x}:{x+1}], v{20+a_} offset0:{o} offset1:{o+1}")
            out.append(f"ds_read2_b32 v[{x+2}:{x+3}], v{20+a_} offset0:{o+2} offset1:{o+3}")
            y = FB[s] + 4 * m
            out.append(f"ds_read_b128 v[{y}:{y+3}], v24 offset:{512*m}")
        return out

    def adv():
        return [f"v_subrev_u32 v{r}, 64, v{r}" for r in range(20, 25)]

    def mfmas(s):
        pairs = sorted([(m, t) for m in range(8) for t in range(8) if m + t <= 7], key=lambda p: (max(p), p[0] + p[1]))
        return [f"v_mfma_f32_16x16x32_bf16 v[{44+4*(m+t)}:{47+4*(m+t)}], v[{FA[s]+4*m}:{FA[s]+4*m+3}], v[{FB[s]+4*t}:{FB[s]+4*t+3}], v[{44+4*(m+t)}:{47+4*(m+t)}]"
                for (m, t) in pairs]

    k("s_lshl_b32 s42, s40, 2")
    k(f"v_mov_b32 v12, s42")
    k(f"ds_read_b32 v12, v12 offset:{PAR+16}")
    for r_ in reads(0):
        k(r_)
    for x in adv():
        k(x)
    k("s_mov_b32 s50, 0")
    k("s_waitcnt lgkmcnt(0)")
    k("v_readfirstlane_b32 s46, v12")
    k.label("kab_cloop")
    for s in range(2):
        k("s_waitcnt lgkmcnt(0)")
        rd = reads(1 - s)
        mf = mfmas(s)
        ad = adv()
        for idx, x in enumerate(mf):
            k(x)
            if idx < len(rd):
                k(rd[idx])
            elif idx - len(rd) < len(ad):
                k(ad[idx - len(rd)])
    k("s_add_u32 s50, s50, 1")
    k("s_cmp_lt_u32 s50, 2")
    k("s_cbranch_scc1 kab_cloop")
    k("s_waitcnt lgkmcnt(0)")
    k.stamp(11) if not os.environ.get("ZDBG") else None
    L1, L2 = k.newlabel(), k.newlabel()
    k("s_cmp_eq_u32 s41, 0")
    k(f"s_cbranch_scc0 {L1}")
    for kk in range(4):
        k(f"ds_write_b128 v28, v[{60+4*kk}:{63+4*kk}] offset:{1024*kk}")
    k(f"s_branch {L2}")
    k.label(L1)
    for kk in range(4):
        k(f"ds_write_b128 v28, v[{44+4*kk}:{47+4*kk}] offset:{1024*kk}")
    for r in range(0, 16, 2):
        k(f"v_pk_mov_b32 v[{44+r}:{45+r}], v[{60+r}:{61+r}], v[{60+r}:{61+r}] op_sel:[0,1]")
    k.label(L2)
    k("s_lshl_b32 s42, s40, 2")
    k(f"s_add_u32 s42, s42, {C_R}")
    k("v_mov_b32 v10, s42")
    lds_signal(k, 10, 248)
    for kk in range(4):
        k(f"ds_read_b64 v[{76+2*kk}:{77+2*kk}], v25 offset:{512*kk}")
        k(f"ds_read_b64 v[{84+2*kk}:{85+2*kk}], v26 offset:{1024*kk}")
    k("s_waitcnt lgkmcnt(0)")
    HD, XF = 144, 160
    for p in range(8):
        t = HD + 2 * p
        k(f"v_lshlrev_b32 v{t}, 16, v{76+p}")
        k(f"v_and_b32 v{t+1}, 0xffff0000, v{76+p}")
    for p in range(8):
        t = HD + 2 * p
        k(f"v_pk_mul_f32 v[{t}:{t+1}], v[{t}:{t+1}], s[46:47] op_sel:[0,1] op_sel_hi:[1,1]")
    for p in range(8):
        t = HD + 2 * p
        k(f"v_cvt_pk_bf16_f32 v{76+p}, v{t}, v{t+1}")
    lds_wait(k, 10, 11, 2)
    k.stamp(12) if not os.environ.get("ZDBG") else None
    for kk in range(4):
        k(f"ds_read_b128 v[{60+4*kk}:{63+4*kk}], v29 offset:{1024*kk}")
    for p in range(8):
        t = HD + 2 * p
        k(f"v_lshlrev_b32 v{t}, 16, v{76+p}")
        k(f"v_and_b32 v{t+1}, 0xffff0000, v{76+p}")
        u = XF + 2 * p
        k(f"v_lshlrev_b32 v{u}, 16, v{84+p}")
        k(f"v_and_b32 v{u+1}, 0xffff0000, v{84+p}")
    k("s_waitcnt lgkmcnt(0)")
    P8 = range(8)

    def rnd():
        for p in P8:
            k(f"v_cvt_pk_bf16_f32 v{76+p}, v{44+2*p}, v{45+2*p}")
        for p in P8:
            k(f"v_lshlrev_b32 v{44+2*p}, 16, v{76+p}")
            k(f"v_and_b32 v{45+2*p}, 0xffff0000, v{76+p}")

    for p in P8:
        k(f"v_pk_add_f32 v[{44+2*p}:{45+2*p}], v[{44+2*p}:{45+2*p}], v[{60+2*p}:{61+2*p}]")
    rnd()
    for p in P8:
        k(f"v_pk_add_f32 v[{44+2*p}:{45+2*p}], v[{44+2*p}:{45+2*p}], v[{HD+2*p}:{HD+2*p+1}]")
    rnd()
    for p in P8:
        k(f"v_pk_mul_f32 v[{44+2*p}:{45+2*p}], v[{44+2*p}:{45+2*p}], s[46:47] op_sel:[0,0] op_sel_hi:[1,0]")
    rnd()
    for p in P8:
        k(f"v_pk_add_f32 v[{44+2*p}:{45+2*p}], v[{44+2*p}:{45+2*p}], v[{XF+2*p}:{XF+2*p+1}]")
    for kk in range(4):
        for h in range(2):
            p = 2 * kk + h
            k(f"v_cvt_pk_bf16_f32 v{76+p}, v{44+2*p}, v{45+2*p}")
        k(f"buffer_store_dwordx2 v[{76+2*kk}:{77+2*kk}], v27, s[16:19], s44 offen offset:{512*kk} {os.environ.get('SCA', '')}")
    k.endpgm()

    k.label("kab_h")
    k("s_setprio 2")
    k("v_and_b32 v0, 255, v0")
    for r in range(8, 12):
        k(f"v_mov_b32 v{r}, 0")
    k("s_cmp_lg_u32 s3, 0")
    k("s_cbranch_scc1 kab_h0")
    k("v_lshrrev_b32 v7, 5, v1")
    k("v_mul_u32_u24 v7, 4608, v7")
    k("v_and_b32 v6, 31, v1")
    k("v_lshl_add_u32 v7, v6, 4, v7")
    k(f"ds_write_b128 v7, v[8:11] offset:{HB}")
    k("v_lshrrev_b32 v6, 2, v1")
    k(f"v_mul_u32_u24 v7, {KR_CP}, v6")
    k("v_and_b32 v6, 3, v1")
    k("v_lshl_add_u32 v7, v6, 4, v7")
    k(f"v_add_u32 v7, {KB + 4096}, v7")
    k("v_lshlrev_b32 v6, 4, v6")
    k("v_cmp_gt_u32 vcc, 16, v1")
    k("v_cndmask_b32 v7, v6, v7, vcc")
    k("ds_write_b128 v7, v[8:11]")
    k.label("kab_h0")
    k("s_lshl_b32 s10, s2, 13")
    k("s_add_u32 s38, s10, 4096")
    k("s_lshl_b32 s39, s3, 11")
    k("s_add_u32 s39, s39, s10")
    k("v_lshlrev_b32 v4, 2, v0")
    k("v_and_b32 v2, 3, v0")
    k("s_mul_i32 s24, s2, 3")
    k("s_add_u32 s24, s24, s3")
    k(f"s_mul_hi_u32 s25, s24, {(2**32 + 47)//48}")
    k("s_mul_i32 s26, s25, 48")
    k("s_sub_u32 s26, s24, s26")
    k("v_lshrrev_b32 v12, 3, v1")
    k("v_and_b32 v113, 7, v1")
    k(f"v_mul_u32_u24 v112, {4*6144}, v12")
    k("v_lshl_add_u32 v112, v113, 4, v112")
    k("v_lshlrev_b32 v13, 3, v12")
    k(f"s_mul_i32 s27, s25, {32*6144}")
    k("s_lshl_b32 s28, s26, 7")
    k("s_add_u32 s27, s27, s28")
    k("s_lshl_b32 s28, s25, 6")
    k("s_lshr_b32 s29, s2, 3")
    k("s_lshl_b32 s29, s29, 2")
    k("s_add_u32 s29, s29, s3")
    k("s_and_b32 s30, s2, 7")
    k("s_lshl_b32 s30, s30, 11")
    k("s_waitcnt lgkmcnt(0)")
    k("s_mov_b64 s[36:37], s[34:35]")
    k("s_cmp_lg_u32 s29, 67")
    k("s_cbranch_scc1 kab_nz")
    k.srd(40, 36, 65536, WS_BAR)
    k("buffer_store_dwordx4 v[8:11], v3, s[40:43], s30 offen sc1")
    k("buffer_store_dwordx4 v[8:11], v3, s[40:43], s30 offen offset:1024 sc1")
    k.srd(40, 36, 8192, WS_ST1)
    k("s_lshr_b32 s31, s30, 1")
    k("buffer_store_dwordx4 v[8:11], v3, s[40:43], s31 offen sc1")
    k.label("kab_nz")
    k("s_barrier")
    k.stamp(6)
    k.srd(12, 64, 2048 * 1024)
    k("buffer_load_dwordx4 v[16:19], v3, s[12:15], s39 offen nt")
    k("buffer_load_dwordx4 v[20:23], v3, s[12:15], s39 offen offset:1024 nt")
    for r in range(8):
        k(f"buffer_load_dword v{24+r}, v4, s[12:15], s{(10, 38)[r//4]} offen offset:{(r%4)*1024} nt")
    k.srd(72, 92, 1024)
    k.srd(76, 94, 512 * 6144)
    k("s_cmp_eq_u32 s3, 3")
    k("s_cselect_b32 s74, 0, s74")
    k("s_cselect_b32 s78, 0, s78")
    k("buffer_load_dwordx2 v[114:115], v13, s[72:75], s28 offen")
    for i in range(4):
        k(f"buffer_load_dwordx4 v[{128+4*i}:{131+4*i}], v112, s[76:79], s27 offen nt")
        if i < 3:
            k("s_add_u32 s27, s27, 6144")
    k("s_lshr_b32 s5, s2, 4")
    k("s_and_b32 s6, s2, 15")
    k("s_mul_i32 s6, s6, 11")
    k("s_min_u32 s6, s6, 161")
    k("v_lshrrev_b32 v92, 4, v1")
    k("v_and_b32 v95, 15, v1")
    k(f"v_mul_u32_u24 v93, {8*2752}, v92")
    k("v_lshl_add_u32 v93, v95, 4, v93")
    k("v_cmp_gt_u32 vcc, 11, v95")
    k("v_mov_b32 v94, 0x7fff0000")
    k("v_cndmask_b32 v93, v94, v93, vcc")
    k("s_lshl_b32 s8, s2, 13")
    k("v_add_u32 v94, s8, v3")
    k(f"s_mul_i32 s8, s5, {32*2752}")
    k("s_lshl_b32 s9, s6, 4")
    k("s_add_u32 s8, s8, s9")
    k("s_cmp_eq_u32 s3, 1")
    k("s_cselect_b64 vcc, -1, 0")
    k("s_cselect_b64 s[68:69], s[80:81], s[86:87]")
    k(f"s_mov_b32 s70, {688*1024}")
    k(f"s_cselect_b32 s70, {512*2752}, s70")
    k("s_cselect_b32 s8, s8, 0")
    k("s_movk_i32 s9, 1024")
    k("s_cselect_b32 s9, 2752, s9")
    k("v_cndmask_b32 v93, v94, v93, vcc")
    k("s_sub_u32 s7, s3, 1")
    k("s_cmp_lt_u32 s7, 2")
    k("s_cselect_b32 s70, s70, 0")
    k("s_and_b32 s69, s69, 0xffff")
    k("s_mov_b32 s71, 0x00020000")

    def raw_loads():
        for e in range(8):
            k(f"buffer_load_dwordx4 v[{RAW+e*4}:{RAW+3+e*4}], v93, s[68:71], s8 offen nt")
            if e < 7:
                k("s_add_u32 s8, s8, s9")

    k.srd(60, 32, 256)
    k.srd(40, 36, 65536, WS_BAR)
    k.srd(44, 36, (2 << 20) + 8192, WS_XT)
    k.srd(52, 36, 16 * 12288, WS_MP)
    k("v_and_b32 v84, 7, v1")
    k("v_lshlrev_b32 v84, 5, v84")
    k("s_mov_b32 s48, 0x05040100")
    k("s_mov_b32 s49, 0x07060302")
    k(f"s_mov_b32 s50, {f32(1.0/512)}")
    k(f"s_mov_b32 s51, {f32(1e-5)}")
    k("v_lshrrev_b32 v4, 1, v1")
    k("s_lshl_b32 s15, s3, 6")
    k("v_add_u32 v4, s15, v4")
    k("v_and_b32 v7, 1, v1")
    k("v_lshlrev_b32 v6, 13, v4")
    k("v_lshl_add_u32 v6, v7, 4, v6")
    k("v_mul_u32_u24 v9, 4608, v7")
    k(f"v_add_u32 v9, {HB+512}, v9")
    k("v_lshl_add_u32 v9, v4, 4, v9")
    k("v_lshlrev_b32 v10, 2, v7")
    k("v_lshlrev_b32 v11, 5, v4")
    k("v_lshl_add_u32 v14, v7, 4, v11")
    k(f"v_add_u32 v14, {XB}, v14")
    k(f"s_mov_b32 s19, {WS_ST1 - WS_XT}")
    k("s_lshl_b32 s20, s89, 12")
    k("s_lshr_b32 s21, s4, 1")
    k("s_lshl_b32 s21, s21, 5")
    k("s_add_u32 s20, s20, s21")
    k(f"s_add_u32 s21, s20, {32*8192}")
    k("s_lshr_b32 s15, s2, 3")
    k("s_and_b32 s15, s15, 15")
    k("s_lshl_b32 s15, s15, 7")
    k("v_lshl_add_u32 v88, v1, 11, s15")
    k("s_and_b32 s15, s2, 7")
    k("s_lshl_b32 s15, s15, 11")
    k("v_and_b32 v89, 15, v1")
    k("v_lshl_add_u32 v89, v89, 7, s15")
    k(f"v_mov_b32 v86, {C_A}")
    k(f"v_mov_b32 v90, {C_G}")
    k("v_and_b32 v82, 15, v1")
    k("v_lshrrev_b32 v83, 4, v1")
    k("v_mul_u32_u24 v82, 12288, v82")
    k("v_and_b32 v8, 1, v83")
    k("v_lshl_add_u32 v85, v8, 11, v82")
    k("v_add_u32 v85, 8192, v85")
    k("v_lshl_add_u32 v82, v83, 11, v82")
    k("s_lshl_b32 s58, s88, 2")
    k("v_lshlrev_b32 v5, 4, v0")
    k("v_bfe_u32 v15, v1, 3, 1")
    k("s_lshl_b32 s15, s3, 3")
    k("v_lshl_add_u32 v15, v15, 2, s15")
    k("s_lshl_b32 s14, s2, 5")
    k("s_add_u32 s14, s14, s19")
    k(f"v_mov_b32 v81, {C_L}")
    k("s_cmp_lg_u32 s29, 67")
    k("s_cbranch_scc1 kab_nr")
    k("s_lshr_b32 s31, s30, 6")
    k("v_mov_b32 v8, 0")
    k("s_waitcnt vmcnt(15)")
    k("s_mov_b64 exec, 1")
    k("buffer_store_dword v248, v8, s[60:63], s31 offen sc1")
    k("s_mov_b64 exec, -1")
    k.label("kab_nr")
    k("s_waitcnt vmcnt(5)")
    k.stamp(2)
    for q in range(4):
        k(f"v_perm_b32 v{68+q}, v{25+2*q}, v{24+2*q}, s48")
        k(f"v_perm_b32 v{76+q}, v{25+2*q}, v{24+2*q}, s49")
    k("buffer_store_dwordx4 v[68:71], v5, s[44:47], s10 offen sc1")
    k("buffer_store_dwordx4 v[76:79], v5, s[44:47], s38 offen sc1")
    for r in range(2):
        for j in range(4):
            k(f"v_lshlrev_b32 v{32+8*r+2*j}, 16, v{16+4*r+j}")
            k(f"v_and_b32 v{33+8*r+2*j}, 0xffff0000, v{16+4*r+j}")

    def wave_reduce2(a, b, d, t):
        k(f"v_add_f32_dpp v{d}, v{a}, v{a} row_ror:8 row_mask:0xf bank_mask:0x3")
        k(f"v_add_f32_dpp v{d}, v{b}, v{b} row_ror:8 row_mask:0xf bank_mask:0xc")
        k(f"v_add_f32_dpp v{d}, v{d}, v{d} row_half_mirror row_mask:0xf bank_mask:0xf")
        k(f"v_add_f32_dpp v{d}, v{d}, v{d} quad_perm:[2,3,0,1] row_mask:0xf bank_mask:0xf")
        k(f"v_add_f32_dpp v{d}, v{d}, v{d} quad_perm:[1,0,3,2] row_mask:0xf bank_mask:0xf")
        k(f"v_mov_b32 v{t}, v{d}")
        k(f"v_permlane16_swap_b32 v{t}, v{d}")
        k(f"v_add_f32 v{d}, v{d}, v{t}")
        k(f"v_mov_b32 v{t}, v{d}")
        k(f"v_permlane32_swap_b32 v{t}, v{d}")
        k(f"v_add_f32 v{d}, v{d}, v{t}")

    for r in range(2):
        x, t = 32 + 8 * r, 48 + 4 * r
        k(f"v_pk_add_f32 v[{t}:{t+1}], v[{x}:{x+1}], v[{x+2}:{x+3}]")
        k(f"v_pk_add_f32 v[{t+2}:{t+3}], v[{x+4}:{x+5}], v[{x+6}:{x+7}]")
    for r in range(2):
        t = 48 + 4 * r
        k(f"v_pk_add_f32 v[{t}:{t+1}], v[{t}:{t+1}], v[{t+2}:{t+3}]")
    for r in range(2):
        t = 48 + 4 * r
        k(f"v_add_f32 v{t}, v{t}, v{t+1}")
    wave_reduce2(48, 52, 56, 57)
    k("v_mul_f32 v56, s50, v56")
    k("v_readlane_b32 s16, v56, 0")
    k("v_readlane_b32 s17, v56, 8")
    for r in range(2):
        sel = "op_sel_hi:[1,0]" if r == 0 else "op_sel:[0,1] op_sel_hi:[1,1]"
        for j in range(4):
            x = 32 + 8 * r + 2 * j
            k(f"v_pk_add_f32 v[{x}:{x+1}], v[{x}:{x+1}], s[16:17] {sel} neg_lo:[0,1] neg_hi:[0,1]")
    for j in range(4):
        for r in range(2):
            x, t = 32 + 8 * r + 2 * j, 48 + 4 * r
            if j == 0:
                k(f"v_pk_mul_f32 v[{t}:{t+1}], v[{x}:{x+1}], v[{x}:{x+1}]")
            else:
                k(f"v_pk_fma_f32 v[{t}:{t+1}], v[{x}:{x+1}], v[{x}:{x+1}], v[{t}:{t+1}]")
    for r in range(2):
        t = 48 + 4 * r
        k(f"v_add_f32 v{t}, v{t}, v{t+1}")
    wave_reduce2(48, 52, 58, 57)
    k("v_mul_f32 v58, s50, v58")
    round_bf16(k, "v58", "v58")
    k("v_add_f32 v58, s51, v58")
    round_bf16(k, "v58", "v58")
    k("v_sqrt_f32 v58, v58")
    k("v_cvt_pk_bf16_f32 v58, v56, v58")
    k(f"ds_write_b32 v15, v58 offset:{PAR+32}")
    lds_signal(k, 81, 248)
    k.stamp(3)
    k("s_cmp_eq_u32 s3, 3")
    k("s_cbranch_scc1 kab_sync")
    k(f"s_mov_b32 s31, {f32(-LOG2E)}")
    k("s_waitcnt vmcnt(6)")
    for j in range(2):
        k(f"v_lshlrev_b32 v{44+2*j}, 16, v{114+j}")
        k(f"v_and_b32 v{45+2*j}, 0xffff0000, v{114+j}")
    for j in range(4):
        k(f"v_mul_f32 v{48+j}, s31, v{44+j}")
    for j in range(4):
        k(f"v_exp_f32 v{48+j}, v{48+j}")
    for j in range(4):
        k(f"v_add_f32 v{48+j}, 1.0, v{48+j}")
    for j in range(4):
        k(f"v_rcp_f32 v{48+j}, v{48+j}")
    for j in range(4):
        k(f"v_mul_f32 v{48+j}, v{44+j}, v{48+j}")
    for j in range(2):
        k(f"v_cvt_pk_bf16_f32 v{114+j}, v{48+2*j}, v{49+2*j}")
    for j in range(2):
        k(f"v_lshlrev_b32 v{44+4*j}, 16, v{114+j}")
        k(f"v_and_b32 v{46+4*j}, 0xffff0000, v{114+j}")
    for i in range(4):
        sp = 44 + 2 * i
        k(f"s_waitcnt vmcnt({5-i})")
        for j in range(4):
            w = 128 + 4 * i + j
            k(f"v_lshlrev_b32 v{60+2*j}, 16, v{w}")
            k(f"v_and_b32 v{61+2*j}, 0xffff0000, v{w}")
        for j in range(4):
            a_ = 52 + 2 * j
            if i == 0:
                k(f"v_pk_mul_f32 v[{a_}:{a_+1}], v[{60+2*j}:{61+2*j}], v[{sp}:{sp+1}] op_sel_hi:[1,0]")
            else:
                sel = "op_sel:[0,0,0] op_sel_hi:[1,0,1]"
                k(f"v_pk_fma_f32 v[{a_}:{a_+1}], v[{60+2*j}:{61+2*j}], v[{sp}:{sp+1}], v[{a_}:{a_+1}] {sel}")
    for q in range(4):
        k(f"v_add_f32_dpp v{60+q}, v{52+q}, v{52+q} row_ror:8 row_mask:0xf bank_mask:0x3")
        k(f"v_add_f32_dpp v{60+q}, v{56+q}, v{56+q} row_ror:8 row_mask:0xf bank_mask:0xc")
    k("v_bfe_u32 v64, v1, 3, 1")
    k("v_lshlrev_b32 v65, 5, v113")
    k("v_lshl_add_u32 v65, v64, 4, v65")
    k("v_permlane16_swap_b32 v60, v61")
    k("v_permlane16_swap_b32 v62, v63")
    k("v_bfe_u32 v64, v1, 5, 1")
    k("v_lshl_add_u32 v65, v64, 3, v65")
    k("v_add_f32 v60, v60, v61")
    k("v_add_f32 v62, v62, v63")
    k("v_bfe_u32 v64, v1, 4, 1")
    k("v_lshl_add_u32 v65, v64, 2, v65")
    k("v_permlane32_swap_b32 v60, v62")
    k("s_mul_i32 s56, s25, 12288")
    k("s_lshl_b32 s57, s26, 8")
    k("s_add_u32 s56, s56, s57")
    k("v_add_f32 v60, v60, v62")
    k("buffer_store_dword v60, v65, s[52:55], s56 offen sc1")
    k.stamp(8)
    k("s_waitcnt vmcnt(0)")
    k.stamp(4)
    lds_signal(k, 86, 248)
    k.label("kab_gs")
    k("s_sleep 1")
    k("ds_read_b32 v87, v90")
    k("s_waitcnt lgkmcnt(0)")
    k("v_readfirstlane_b32 s90, v87")
    k("s_cmp_eq_u32 s90, 0")
    k("s_cbranch_scc1 kab_gs")
    k("s_branch kab_go")
    k.label("kab_sync")
    k("s_mov_b32 s56, 0")
    lds_wait(k, 81, 87, 4)
    k("v_and_b32 v15, 1, v1")
    k("v_lshlrev_b32 v15, 4, v15")
    k(f"ds_read_b128 v[60:63], v15 offset:{PAR+32}")
    k.label("kab_rp")
    k("buffer_load_dword v91, v84, s[60:63], 0 offen sc1")
    k("s_add_u32 s56, s56, 1")
    k("s_waitcnt vmcnt(0) lgkmcnt(0)")
    k("v_cmp_eq_u32 vcc, 0, v91")
    k("s_cbranch_vccz kab_rg")
    k("s_sleep 4")
    k(f"s_cmp_lt_u32 s56, {SPIN}")
    k("s_cbranch_scc1 kab_rp")
    k.label("kab_rg")
    k("s_mov_b64 exec, 3")
    k("buffer_store_dwordx4 v[60:63], v15, s[44:47], s14 offen sc1")
    k("s_mov_b64 exec, -1")
    k.stamp(8)
    lds_wait(k, 86, 87, 3)
    k("s_mov_b64 exec, 0xff")
    k("buffer_atomic_add v248, v88, s[40:43], 0 offen sc1")
    k("s_mov_b64 exec, -1")
    k.stamp(4)
    if int(os.environ.get("SL0", 16)):
        k(f"s_sleep {int(os.environ.get('SL0', 16))}")
    gpoll(k, "kab_b1", 0, int(os.environ.get("SL1", 4)))
    k("s_mov_b64 exec, 1")
    k("ds_write_b32 v90, v248")
    k("s_mov_b64 exec, -1")
    k("buffer_load_dword v56, v82, s[52:55], s58 offen sc1")
    k("buffer_load_dword v57, v82, s[52:55], s58 offen offset:8 sc1")
    k("buffer_load_dword v58, v85, s[52:55], s58 offen sc1")
    k("buffer_load_dword v59, v85, s[52:55], s58 offen offset:8 sc1")
    k.label("kab_go")
    k.stamp(5)
    for i in range(2):
        k(f"buffer_load_dwordx4 v[{16+i*4}:{19+i*4}], v6, s[44:47], s{20+i} offen sc1")
    for i in range(2):
        for h in range(2):
            k(f"buffer_load_dwordx4 v[{128+i*8+h*4}:{131+i*8+h*4}], v11, s[44:47], s19 offen offset:{i*1024+h*16} sc1")
    k(f"v_mov_b32 v86, {C_P}")
    k("s_cmp_lg_u32 s3, 3")
    k("s_cbranch_scc1 kab_p0")
    k("s_waitcnt vmcnt(8)")
    for rot in (8, 4, 2, 1):
        for r in (56, 57):
            k(f"v_add_f32_dpp v{r}, v{r}, v{r} row_ror:{rot} row_mask:0xf bank_mask:0xf")
    for r in (56, 57):
        round_bf16(k, f"v{r}", f"v{r}")
    k("v_lshlrev_b32 v66, 3, v83")
    k("s_mov_b32 exec_lo, 0x00010001")
    k("s_mov_b32 exec_hi, 0x00010001")
    k(f"ds_write_b64 v66, v[56:57] offset:{PAR}")
    k("s_mov_b64 exec, -1")
    lds_signal(k, 86, 248)
    k.label("kab_p0")
    k("s_cmp_ge_u32 s7, 2")
    k("s_cbranch_scc1 kab_pv")
    raw_loads()
    k("v_mul_u32_u24 v8, 12288, v95")
    k("v_lshl_add_u32 v8, v92, 5, v8")
    k("s_lshl_b32 s22, s5, 7")
    k("s_add_u32 s22, s22, 6144")
    for j in range(2):
        k(f"buffer_load_dwordx4 v[{SBR+4*j}:{SBR+4*j+3}], v8, s[52:55], s22 offen offset:{16*j} sc1")
        k(f"buffer_load_dwordx4 v[{CBR+4*j}:{CBR+4*j+3}], v8, s[52:55], s22 offen offset:{2048+16*j} sc1")
    k("s_waitcnt vmcnt(12)")
    k("s_branch kab_pw")
    k.label("kab_pv")
    k("s_waitcnt vmcnt(0)")
    k.label("kab_pw")
    k("s_mov_b32 s56, 0")
    k.label("kab_sc")
    k("v_min3_u32 v24, v128, v129, v130")
    for j in range(131, 143, 2):
        k(f"v_min3_u32 v24, v24, v{j}, v{j+1}")
    k("v_min_u32 v24, v24, v143")
    k("v_cmp_eq_u32 vcc, 0, v24")
    k("s_cbranch_vccz kab_so")
    for i in range(2):
        for h in range(2):
            k(f"buffer_load_dwordx4 v[{128+i*8+h*4}:{131+i*8+h*4}], v11, s[44:47], s19 offen offset:{i*1024+h*16} sc1")
    k("s_add_u32 s56, s56, 1")
    k("s_waitcnt vmcnt(0)")
    k(f"s_cmp_lt_u32 s56, {SPIN}")
    k("s_cbranch_scc1 kab_sc")
    k.label("kab_so")
    k.stamp(7)
    for i in range(2):
        k(f"ds_write_b128 v14, v[{16+i*4}:{19+i*4}] offset:{i*1024}")
    M_, RS = 144, 160
    for j in range(16):
        k(f"v_lshlrev_b32 v{M_+j}, 16, v{128+j}")
        k(f"v_and_b32 v{RS+j}, 0xffff0000, v{128+j}")
    for j in range(16):
        k(f"v_rcp_f32 v{RS+j}, v{RS+j}")
    it = [(32 + 2 * j, 16 + j) for j in range(8)]
    for (t, w) in it:
        k(f"v_lshlrev_b32 v{t}, 16, v{w}")
        k(f"v_and_b32 v{t+1}, 0xffff0000, v{w}")
    for j, (t, w) in enumerate(it):
        k(f"v_pk_add_f32 v[{t}:{t+1}], v[{t}:{t+1}], v[{M_+2*j}:{M_+2*j+1}] neg_lo:[0,1] neg_hi:[0,1]")
    for (t, w) in it:
        k(f"v_cvt_pk_bf16_f32 v{w}, v{t}, v{t+1}")
    for (t, w) in it:
        k(f"v_lshlrev_b32 v{t}, 16, v{w}")
        k(f"v_and_b32 v{t+1}, 0xffff0000, v{w}")
    for j, (t, w) in enumerate(it):
        k(f"v_pk_mul_f32 v[{t}:{t+1}], v[{t}:{t+1}], v[{RS+2*j}:{RS+2*j+1}]")
    for (t, w) in it:
        k(f"v_cvt_pk_bf16_f32 v{w}, v{t}, v{t+1}")
    lds_wait(k, 86, 87, 1)
    k(f"ds_read_b32 v26, v10 offset:{PAR}")
    k(f"ds_read_b32 v12, v10 offset:{PAR+8}")
    for (t, w) in it:
        k(f"v_lshlrev_b32 v{t}, 16, v{w}")
        k(f"v_and_b32 v{t+1}, 0xffff0000, v{w}")
    k("s_waitcnt lgkmcnt(0)")
    k("v_add_f32 v12, 1.0, v12")
    round_bf16(k, "v12", "v12")
    for (t, w) in it:
        k(f"v_pk_mul_f32 v[{t}:{t+1}], v[{t}:{t+1}], v[12:13] op_sel:[0,0] op_sel_hi:[1,0]")
    for (t, w) in it:
        k(f"v_cvt_pk_bf16_f32 v{w}, v{t}, v{t+1}")
    for (t, w) in it:
        k(f"v_lshlrev_b32 v{t}, 16, v{w}")
        k(f"v_and_b32 v{t+1}, 0xffff0000, v{w}")
    for (t, w) in it:
        k(f"v_pk_add_f32 v[{t}:{t+1}], v[{t}:{t+1}], v[26:27] op_sel_hi:[1,0]")
    for (t, w) in it:
        k(f"v_cvt_pk_bf16_f32 v{w}, v{t}, v{t+1}")
    for i in range(2):
        k(f"ds_write_b128 v9, v[{16+i*4}:{19+i*4}] offset:{i*512}")
    k("s_waitcnt lgkmcnt(0)")
    k.stamp(9)
    k("s_barrier")
    k("s_setprio 0")
    k("s_cmp_lg_u32 s3, 3")
    k("s_cbranch_scc1 kab_nf")
    for rot in (8, 4, 2, 1):
        for r in (58, 59):
            k(f"v_add_f32_dpp v{r}, v{r}, v{r} row_ror:{rot} row_mask:0xf bank_mask:0xf")
    for r in (58, 59):
        round_bf16(k, f"v{r}", f"v{r}")
    k("v_lshrrev_b32 v65, 4, v1")
    k("v_lshlrev_b32 v65, 11, v65")
    k.srd(52, 36, 12288, WS_MOD)
    k("s_lshl_b32 s58, s88, 2")
    k("s_add_u32 s59, s58, 8192")
    k("s_mov_b32 exec_lo, 0x00010001")
    k("s_mov_b32 exec_hi, 0x00010001")
    k("buffer_store_dword v56, v65, s[52:55], s58 offen")
    k("buffer_store_dword v57, v65, s[52:55], s58 offen offset:8")
    k("s_mov_b32 exec_hi, 0")
    k("buffer_store_dword v58, v65, s[52:55], s59 offen")
    k("buffer_store_dword v59, v65, s[52:55], s59 offen offset:8")
    k("s_mov_b64 exec, -1")
    k("s_waitcnt lgkmcnt(0)")
    k.label("kab_nf")
    k("s_cmp_lg_u32 s3, 0")
    k("s_cbranch_scc1 kab_nx")
    k("v_mov_b32 v8, -1")
    k("v_mov_b32 v9, -1")
    k("v_lshlrev_b32 v7, 3, v1")
    k("s_lshl_b32 s58, s2, 9")
    k.srd(52, 36, 131072, WS_XST)
    k("buffer_store_dwordx2 v[8:9], v7, s[52:55], s58 offen")
    k.srd(52, 36, 16384 + 4096, WS_BAR + 0x4000)
    k("v_mov_b32 v8, 0")
    k("s_lshl_b32 s58, s2, 7")
    k("v_add_u32 v7, s58, v8")
    k("s_mov_b64 exec, 1")
    k("buffer_store_dword v8, v7, s[52:55], 0 offen")
    k("s_mov_b64 exec, -1")
    k.label("kab_nx")
    k("s_cmp_eq_u32 s3, 1")
    k("s_cbranch_scc1 kab_wpj")
    k("s_cmp_lg_u32 s3, 2")
    k("s_cbranch_scc1 kab_pf")
    k("s_cmp_ge_u32 s2, 88")
    k(f"s_cbranch_scc1 {L_end}")
    k.srd(16, 36, 32 * 22 * 1024, WS_WOF)
    k("v_lshrrev_b32 v94, 1, v1")
    k(f"v_mul_u32_u24 v94, {22*1024}, v94")
    k("v_and_b32 v7, 1, v1")
    k("v_lshl_add_u32 v94, v7, 7, v94")
    k("s_lshl_b32 s23, s2, 8")
    k("s_waitcnt vmcnt(0)")
    for cc in range(8):
        for q in range(4):
            j = cc >> 1
            k(f"v_perm_b32 v{OUTR+4*cc+q}, v{RAW+(2*q+1)*4+j}, v{RAW+2*q*4+j}, s{48 + (cc & 1)}")
        k(f"buffer_store_dwordx4 v[{OUTR+4*cc}:{OUTR+3+4*cc}], v94, s[16:19], s23 offen offset:{16*cc}")
    k(f"s_branch {L_end}")
    k.label("kab_pf")
    k.srd(28, 82, 2048 * 4096)
    k("s_lshl_b32 s22, s4, 15")
    k("s_lshr_b32 s23, s3, 1")
    k("s_lshl_b32 s23, s23, 7")
    k("s_add_u32 s22, s22, s23")
    k("v_lshrrev_b32 v8, 3, v1")
    k("v_lshlrev_b32 v8, 12, v8")
    k("v_and_b32 v9, 7, v1")
    k("v_lshl_add_u32 v8, v9, 4, v8")
    for i in range(0 if NTPF else PF1 // 2):
        k(f"buffer_load_dwordx4 v[244:247], v8, s[28:31], s22 offen offset:{i*256}")
    k(f"s_branch {L_end}")
    k.label("kab_wpj")
    k.srd(16, 36, 86 * 16384, WS_WPF)
    k.srd(24, 36, 2 * CSB_B, WS_CSB)
    k("v_add_u32 v4, s6, v95")
    k("v_lshrrev_b32 v7, 1, v4")
    k("v_lshlrev_b32 v7, 14, v7")
    k("v_lshl_add_u32 v7, v92, 8, v7")
    k("v_and_b32 v8, 1, v4")
    k("v_lshl_add_u32 v7, v8, 7, v7")
    k("v_cmp_gt_u32 vcc, 11, v95")
    k("v_mov_b32 v8, 0x7fff0000")
    k("v_cndmask_b32 v7, v8, v7, vcc")
    k("v_lshlrev_b32 v6, 9, v4")
    k("v_bfe_u32 v9, v1, 4, 1")
    k(f"v_mul_u32_u24 v9, {CSB_B}, v9")
    k("v_add_u32 v6, v6, v9")
    k("v_bfe_u32 v9, v1, 5, 1")
    k("v_lshl_add_u32 v6, v9, 8, v6")
    k("v_cndmask_b32 v6, v8, v6, vcc")
    k("s_lshl_b32 s23, s5, 10")
    k("s_lshl_b32 s21, s5, 2")
    k("s_mov_b32 s28, 0x3f803f80")
    for r in range(64, 80):
        k(f"v_mov_b32 v{r}, 0")
    k("s_waitcnt vmcnt(0)")
    k.stamp(10)
    for _ in range(int(os.environ.get("SHIFT", 0))):
        k("s_nop 0")
    if os.environ.get("DBG"):
        k.srd(56, 36, 1 << 20, 0x1800000)
        k("s_lshl_b32 s29, s2, 12")
        for j in range(4):
            k(f"buffer_store_dwordx4 v[{SBR+4*j}:{SBR+4*j+3}], v3, s[56:59], s29 offen offset:{j*1024}")
        k("s_nop 4")
    for rot in (8, 4, 2, 1):
        for r in range(SBR, SBR + 16):
            k(f"v_add_f32_dpp v{r}, v{r}, v{r} row_ror:{rot} row_mask:0xf bank_mask:0xf")
    for e in range(0, 16, 2):
        k(f"v_cvt_pk_bf16_f32 v8, v{SBR+e}, v{SBR+e+1}")
        k(f"v_lshlrev_b32 v{SBR+e}, 16, v8")
        k(f"v_and_b32 v{SBR+e+1}, 0xffff0000, v8")
    for e in range(0, 8, 2):
        k(f"v_pk_add_f32 v[{CBR+e}:{CBR+e+1}], v[{CBR+e}:{CBR+e+1}], 1.0 op_sel_hi:[1,0]")
    for e in range(0, 8, 2):
        k(f"v_cvt_pk_bf16_f32 v8, v{CBR+e}, v{CBR+e+1}")
        k(f"v_lshlrev_b32 v{CBR+e}, 16, v8")
        k(f"v_and_b32 v{CBR+e+1}, 0xffff0000, v8")
    for q in range(4):
        for h in range(2):
            e = 2 * q + h
            sel3 = "op_sel:[0,0,0] op_sel_hi:[1,0,1]" if h == 0 else "op_sel:[0,1,0] op_sel_hi:[1,1,1]"
            sel2 = "op_sel:[0,0] op_sel_hi:[1,0]" if h == 0 else "op_sel:[0,1] op_sel_hi:[1,1]"
            if h == 1:
                k(f"v_mov_b32 v{SBR+2*q}, v{SBR+2*q+1}")
                k(f"v_mov_b32 v{CBR+2*q}, v{CBR+2*q+1}")
                sel3 = sel2 = ""
            for j in range(4):
                t = 144 + h * 8 + 2 * j
                w = RAW + e * 4 + j
                k(f"v_lshlrev_b32 v{t}, 16, v{w}")
                k(f"v_and_b32 v{t+1}, 0xffff0000, v{w}")
            for j in range(4):
                t = 144 + h * 8 + 2 * j
                k(f"v_pk_fma_f32 v[{64+2*j}:{65+2*j}], v[{t}:{t+1}], v[{SBR+2*q}:{SBR+2*q+1}], v[{64+2*j}:{65+2*j}] {sel3}")
            for j in range(4):
                t = 144 + h * 8 + 2 * j
                k(f"v_pk_mul_f32 v[{t}:{t+1}], v[{t}:{t+1}], v[{CBR+2*q}:{CBR+2*q+1}] {sel2}")
        for cc in range(8):
            k(f"v_cvt_pk_bf16_f32 v{OUTR+4*cc+q}, v{144+cc}, v{152+cc}")
        for cc in range(8):
            k(f"v_dot2_f32_bf16 v{72+cc}, v{OUTR+4*cc+q}, s28, v{72+cc}")
    for cc in range(8):
        k(f"buffer_store_dwordx4 v[{OUTR+4*cc}:{OUTR+3+4*cc}], v7, s[16:19], s23 offen offset:{16*cc}")
    k.stamp(11)
    for cc in range(8):
        k(f"v_permlane16_swap_b32 v{72+cc}, v{64+cc}")
    for cc in range(8):
        k(f"v_add_f32 v{72+cc}, v{72+cc}, v{64+cc}")
    for cc in range(4):
        k(f"v_permlane32_swap_b32 v{72+cc}, v{76+cc}")
    for cc in range(4):
        k(f"v_add_f32 v{72+cc}, v{72+cc}, v{76+cc}")
    for cc in range(4):
        k(f"buffer_store_dword v{72+cc}, v6, s[24:27], s21 offen offset:{64*cc}")
    k.label(L_end)
    k.endpgm()
    k.label("kab_oob")
    k("s_endpgm")
    return k
```

```python
from gfx import Kernel
from layout import *
from common import f32, LOG2E
import math
from kab import PF1

import os
PF_FLAGS = os.environ.get('PF_FLAGS', 'nt')
CSAT = int(os.environ.get('CSAT', 6))
SC = os.environ.get('SCC', 'sc1')
C_GRID = 256
C_BLOCK = 512
SB = 0
ZB = 512
NB = ZB + 1024
CSL = NB + 512
AB = 4096
BB = AB + 65536
BSTG = 12288
NST = 7
C_LDS = BB + BSTG * NST

GC0 = -LOG2E * 2 * math.sqrt(2 / math.pi)
GC1 = GC0 * 0.044715

X, Y = 24, 44
ACC = 104
CSR = 228
R4 = 140
YK = 156
SS = 180
TP = 196
PK = 204


def ln_finalize(k, S, Q, t, inv_n, eps):
    k(f"v_mul_f32 v{S}, {inv_n}, v{S}")
    k(f"v_mul_f32 v{Q}, {inv_n}, v{Q}")
    k(f"v_fma_f32 v{Q}, -v{S}, v{S}, v{Q}")
    k(f"v_max_f32 v{Q}, 0, v{Q}")
    k(f"v_cvt_pk_bf16_f32 v{t}, v{S}, v{Q}")
    k(f"v_lshlrev_b32 v{S}, 16, v{t}")
    k(f"v_and_b32 v{Q}, 0xffff0000, v{t}")
    k(f"v_add_f32 v{Q}, {eps}, v{Q}")
    k(f"v_cvt_pk_bf16_f32 v{Q}, v{Q}, v{Q}")
    k(f"v_and_b32 v{Q}, 0xffff0000, v{Q}")
    k(f"v_sqrt_f32 v{Q}, v{Q}")
    k(f"v_cvt_pk_bf16_f32 v{Q}, v{Q}, v{Q}")
    k(f"v_and_b32 v{Q}, 0xffff0000, v{Q}")
    k(f"v_rcp_f32 v{Q}, v{Q}")


def gelu_batch(k, ps):
    for (x, t, p) in ps:
        k(f"v_pk_mul_f32 v[{t}:{t+1}], v[{x}:{x+1}], v[{x}:{x+1}]")
    for (x, t, p) in ps:
        k(f"v_pk_fma_f32 v[{t}:{t+1}], v[{t}:{t+1}], s[60:61], s[60:61] op_sel:[0,1,0] op_sel_hi:[1,1,0]")
    for (x, t, p) in ps:
        k(f"v_pk_mul_f32 v[{t}:{t+1}], v[{t}:{t+1}], v[{x}:{x+1}]")
    for (x, t, p) in ps:
        k(f"v_exp_f32 v{t}, v{t}")
        k(f"v_exp_f32 v{t+1}, v{t+1}")
    for (x, t, p) in ps:
        k(f"v_pk_add_f32 v[{t}:{t+1}], v[{t}:{t+1}], 1.0 op_sel_hi:[1,0]")
    for (x, t, p) in ps:
        k(f"v_rcp_f32 v{t}, v{t}")
        k(f"v_rcp_f32 v{t+1}, v{t+1}")
    for (x, t, p) in ps:
        k(f"v_pk_mul_f32 v[{x}:{x+1}], v[{x}:{x+1}], v[{t}:{t+1}]")
    for (x, t, p) in ps:
        k(f"v_cvt_pk_bf16_f32 v{p}, v{x}, v{x+1}")


def kernel_C():
    k = Kernel("kc_kernel", 2, 23)
    L_end = "kc_end"
    k(f"s_cmp_ge_u32 s2, {C_GRID}")
    k(f"s_cbranch_scc1 kc_oob")
    k.start()
    k("s_load_dwordx2 s[36:37], s[0:1], 128")
    k("s_load_dwordx2 s[38:39], s[0:1], 72")
    k("v_and_b32 v1, 63, v0")
    k("v_lshrrev_b32 v2, 6, v0")
    k("v_readfirstlane_b32 s11, v2")
    CB = int(os.environ.get("CMAP", 1))
    k("s_and_b32 s6, s2, 7")
    k("s_lshr_b32 s5, s2, 3")
    k(f"s_lshr_b32 s4, s6, {CB}")
    k(f"s_lshl_b32 s4, s4, {2+CB}")
    k(f"s_lshr_b32 s7, s5, {3-CB}")
    k("s_add_u32 s4, s4, s7")
    k(f"s_and_b32 s5, s5, {(8 >> CB) - 1}")
    k(f"s_and_b32 s6, s6, {(1 << CB) - 1}")
    k(f"s_lshl_b32 s6, s6, {3-CB}")
    k("s_add_u32 s5, s5, s6")
    k("v_lshlrev_b32 v4, 4, v1")
    k("s_and_b32 s3, s11, 3")
    k("s_lshr_b32 s7, s3, 1")
    k("s_and_b32 s8, s3, 1")
    k("s_mul_i32 s6, s5, 5")
    k("s_min_u32 s40, s5, 3")
    k("s_add_u32 s40, s40, s6")
    k("s_add_u32 s40, s40, 43")
    k("s_max_u32 s41, s5, 5")
    k("s_add_u32 s41, s41, s6")
    k("s_sub_u32 s41, s41, 5")
    k("s_cmp_lt_u32 s5, 3")
    k("s_cselect_b32 s42, 6, 5")
    k("s_cmp_ge_u32 s5, 5")
    k("s_cselect_b32 s43, 6, 5")
    k("v_and_b32 v3, 15, v1")
    k("v_lshrrev_b32 v9, 4, v1")
    k("v_bfe_u32 v15, v1, 2, 2")
    k("v_lshl_add_u32 v16, v9, 3, v15")
    k("v_lshlrev_b32 v16, 7, v16")
    k("v_and_b32 v17, 3, v1")
    k("v_lshl_add_u32 v16, v17, 3, v16")
    k(f"v_add_u32 v16, {AB}, v16")
    k("v_lshrrev_b32 v15, 1, v15")
    k("v_and_b32 v17, 1, v9")
    k("v_lshl_or_b32 v15, v17, 1, v15")
    k(f"s_mov_b32 s27, {f32(1e-5)}")
    k("s_cmp_lt_u32 s11, 4")
    k("s_cbranch_scc1 kc_comp")

    def mk_srd(d, offreg, nreg):
        k(f"s_add_u32 s{d}, s36, {offreg}")
        k(f"s_addc_u32 s{d+1}, s37, 0")
        k(f"s_and_b32 s{d+1}, s{d+1}, 0xffff")
        k(f"s_mov_b32 s{d+2}, {nreg}")
        k(f"s_mov_b32 s{d+3}, 0x00020000")

    k("v_lshrrev_b32 v10, 3, v1")
    k("v_and_b32 v8, 2, v10")
    k("s_lshl_b32 s16, s8, 2")
    k("v_or_b32 v8, s16, v8")
    k("v_and_b32 v11, 7, v1")
    k("v_xor_b32 v8, v8, v11")
    k("v_lshlrev_b32 v8, 4, v8")
    k("s_lshl_b32 s16, s3, 3")
    k("v_add_u32 v10, s16, v10")
    k("v_lshl_add_u32 v8, v10, 12, v8")
    k("s_mul_i32 s16, s8, 49152")
    k("v_add_u32 v5, s16, v4")
    k("v_add_u32 v6, 16384, v5")
    k("v_add_u32 v7, 32768, v5")
    k("s_lshl_b32 s21, s4, 7")
    k("s_lshl_b32 s22, s3, 10")
    k(f"s_add_u32 s22, s22, {AB}")
    k("s_mul_i32 s23, s3, 3072")
    k(f"s_add_u32 s23, s23, {BB}")
    k("s_lshl_b32 s24, s7, 10")
    k("s_waitcnt lgkmcnt(0)")
    k.srd(12, 36, 512 * 4096, WS_X1T)
    for p in range(2):
        k(f"s_lshl_b32 s16, s{40+p}, 14")
        k(f"s_add_u32 s16, s16, {WS_WPF}")
        k(f"s_lshl_b32 s17, s{42+p}, 14")
        mk_srd(64 + 4 * p, "s16", "s17")

    cnt = []

    def dma(s, fill=()):
        p, sl = s // 8, s % 8
        n = 0
        fill = list(fill)
        per = (len(fill) + (4 if p == 0 else 2)) // (5 if p == 0 else 3)

        def f_():
            for _ in range(per):
                if fill:
                    k(fill.pop(0))
        if p == 0:
            for kk in range(2):
                kap = 2 * sl + kk
                k(f"s_add_u32 m0, s22, {kap*4096}")
                k(f"s_add_u32 s25, s21, {kap*32*4096}")
                k("buffer_load_dwordx4 v8, s[12:15], s25 offen lds")
                f_()
                n += 1
        k(f"s_add_u32 s25, s24, {sl*2048}")
        for i in range(3):
            k(f"s_add_u32 m0, s23, {(s % NST)*BSTG + i*1024}")
            k("s_nop 0")
            k(f"buffer_load_dwordx4 v{5+i}, s[{64+4*p}:{67+4*p}], s25 offen lds")
            f_()
            n += 1
        assert not fill
        state["vm"] += n
        cnt.append(state["vm"])

    state = {"vm": 0}
    PRO = int(os.environ.get('PRO', 3))
    for s in range(PRO):
        dma(s)
    k.stamp(2)
    k("v_xor_b32 v17, s3, v15")
    k("v_lshl_add_u32 v14, v17, 5, v16")
    for r in (20, 21, 12, 13):
        k(f"v_mov_b32 v{r}, 0")
    k("s_mov_b32 s26, 0x3f803f80")
    k.srd(28, 36, 2048 * 1024, WS_X1N)
    k.srd(32, 36, 131072, WS_XST)
    k("s_lshl_b32 s44, s4, 12")
    k("s_lshl_b32 s45, s5, 9")
    k("s_add_u32 s45, s45, s44")
    k("v_lshlrev_b32 v18, 3, v1")
    k("s_cmp_eq_u32 s7, 0")
    k("s_cselect_b32 s16, s40, s41")
    k("s_cselect_b32 s17, s42, s43")
    k("s_lshl_b32 s16, s16, 10")
    k("s_lshl_b32 s17, s17, 10")
    k(f"s_mul_i32 s18, s8, {CSB_B}")
    k("s_add_u32 s16, s16, s18")
    k(f"s_add_u32 s16, s16, {WS_CSB}")
    mk_srd(72, "s16", "s17")
    k("v_lshlrev_b32 v10, 6, v3")
    k("v_lshl_add_u32 v10, v9, 4, v10")
    k("v_add_u32 v11, 4096, v10")
    k("s_mul_i32 s16, s3, 384")
    k("v_lshl_add_u32 v19, v3, 2, s16")

    def waitstage(s):
        k(f"s_waitcnt vmcnt({state['vm'] - cnt[s]})")

    def stats(s):
        for kk in range(2):
            for h in range(2):
                x = 24 + (s & 1) * 8 + kk * 4 + h * 2
                k(f"ds_read_b64_tr_b16 v[{x}:{x+1}], v14 offset:{(2*s+kk)*4096 + h*512}")

    def stats2(s):
        out = []
        for j in range(8):
            a_, b_ = ((20, 21), (12, 13))[j & 1]
            x = 24 + (s & 1) * 8 + j
            out.append(f"v_dot2_f32_bf16 v{a_}, v{x}, s26, v{a_}")
            out.append(f"v_dot2_f32_bf16 v{b_}, v{x}, v{x}, v{b_}")
        return out

    nxt_stage = PRO
    k("s_setprio 2") if not os.environ.get("NOPRIO") else None
    for j in range(9):
        waitstage(j)
        k("s_barrier")
        if j in (2, 4, 6, 7):
            k.stamp(4 + j)
        fill = ["s_waitcnt lgkmcnt(0)"] + stats2(j - 1) if j >= 1 else []
        if os.environ.get("NOSTAT"): fill = []
        todo = [nxt_stage] if nxt_stage <= 8 else []
        if j == 6:
            k(f"s_waitcnt vmcnt({state['vm'] - state['cs']})")
            R = [48 + 4 * t for t in range(6)]
            for r in R:
                fill.append(f"v_pk_add_f32 v[{r}:{r+1}], v[{r}:{r+1}], v[{r+2}:{r+3}]")
            for r in R:
                fill.append(f"v_add_f32 v{r}, v{r}, v{r+1}")
            for sw in ("16", "32"):
                for r in R:
                    fill.append(f"v_mov_b32 v{r+1}, v{r}")
                for r in R:
                    fill.append(f"v_permlane{sw}_swap_b32 v{r}, v{r+1}")
                for r in R:
                    fill.append(f"v_add_f32 v{r}, v{r}, v{r+1}")
            for t, r in enumerate(R):
                fill.append(f"ds_write_b32 v19, v{r} offset:{CSL + t*64}")
        if j == 8:
            for x in fill:
                k(x)
            fill = []
            k("v_add_f32 v20, v20, v12")
            k("v_add_f32 v21, v21, v13")
            for r in (20, 21):
                k(f"v_mov_b32 v17, v{r}")
                k(f"v_permlane16_swap_b32 v17, v{r}")
                k(f"v_add_f32 v{r}, v{r}, v17")
                k(f"v_mov_b32 v17, v{r}")
                k(f"v_permlane32_swap_b32 v17, v{r}")
                k(f"v_add_f32 v{r}, v{r}, v17")
            k(f"s_mov_b32 s46, {f32(1.0/512)}")
            ln_finalize(k, 20, 21, 17, "s46", "s27")
            k("v_mul_f32 v20, v20, v21")
            k("s_lshl_b32 s16, s3, 6")
            k("v_lshl_add_u32 v17, v3, 2, s16")
            k(f"ds_write_b32 v17, v21 offset:{SB}")
            k(f"ds_write_b32 v17, v20 offset:{SB+256}")
            k("s_waitcnt lgkmcnt(0)")
            k("s_barrier")
            k("s_setprio 0")
            todo = list(range(nxt_stage, 15))
        for t in todo:
            dma(t, fill)
            fill = []
            nxt_stage = t + 1
            if t == CSAT:
                for tt in range(6):
                    k(f"buffer_load_dwordx4 v[{48+4*tt}:{51+4*tt}], v{10 + tt//4}, s[72:75], 0 offen offset:{(tt%4)*1024}")
                state["vm"] += 6
                state["cs"] = state["vm"]
        for x in fill:
            k(x)
        if j < 8 and not os.environ.get("NOTR"):
            stats(j)
    NPF = (32 - PF1) // 4
    k.srd(72, 38, 2048 * 4096)
    k("s_and_b32 s16, s2, 7")
    k("s_lshl_b32 s16, s16, 20")
    k("s_lshr_b32 s17, s2, 3")
    k("s_lshl_b32 s17, s17, 15")
    k("s_add_u32 s16, s16, s17")
    k("s_lshl_b32 s17, s3, 7")
    k("s_add_u32 s16, s16, s17")
    k("v_lshrrev_b32 v10, 3, v1")
    k("v_lshlrev_b32 v10, 12, v10")
    k("v_and_b32 v11, 7, v1")
    k("v_lshl_add_u32 v10, v11, 4, v10")
    for i in range(NPF):
        k(f"buffer_load_dwordx4 v[72:75], v10, s[72:75], s16 offen offset:{PF1*128 + i*512}")
    state["vm"] += NPF
    k("s_lshl_b32 s25, s5, 13")
    k("v_add_u32 v17, s25, v14")
    for q in range(2):
        for h in range(2):
            x = 24 + q * 4 + h * 2
            k(f"ds_read_b64_tr_b16 v[{x}:{x+1}], v17 offset:{q*4096 + h*512}")
    k("v_lshrrev_b32 v10, 2, v3")
    k("v_lshlrev_b32 v10, 3, v10")
    k("v_and_b32 v11, 3, v3")
    k("v_add_u32 v10, v10, v11")
    k("v_lshlrev_b32 v10, 10, v10")
    k("v_lshl_add_u32 v10, v9, 4, v10")
    k("s_lshl_b32 s25, s7, 5")
    k("s_lshl_b32 s16, s8, 2")
    k("s_add_u32 s25, s25, s16")
    k("s_lshl_b32 s16, s4, 6")
    k("s_add_u32 s25, s25, s16")
    k("s_lshl_b32 s25, s25, 10")
    k("s_lshl_b32 s16, s5, 7")
    k("s_add_u32 s25, s25, s16")
    k("s_waitcnt lgkmcnt(0)")
    k(f"buffer_store_dwordx4 v[24:27], v10, s[28:31], s25 offen {SC}")
    k(f"buffer_store_dwordx4 v[28:31], v10, s[28:31], s25 offen offset:64 {SC}")
    state["vm"] += 2
    k("s_barrier")
    k.stamp(3)
    k("s_cmp_eq_u32 s3, 0")
    k("s_cselect_b32 s34, s34, 0")
    k(f"ds_read_b64 v[32:33], v18 offset:{ZB}")
    k(f"ds_read_b64 v[34:35], v18 offset:{ZB+512}")
    k("s_waitcnt lgkmcnt(0)")
    k("v_pk_add_f32 v[32:33], v[32:33], v[34:35]")
    k("buffer_store_dwordx2 v[32:33], v18, s[32:35], s45 offen sc1")
    state["vm"] += 1

    def poll_loads():
        for p in range(8):
            k(f"buffer_load_dwordx2 v[{32+2*p}:{33+2*p}], v18, s[32:35], s44 offen offset:{p*512} sc1")

    for s in range(8, 16):
        if s < 15:
            waitstage(s + 1)
        k("s_barrier")
        if s == 9:
            dma(15)
        if s == 12:
            poll_loads()
            state["vm"] += 8
    k("s_cmp_lg_u32 s3, 0")
    k("s_cbranch_scc1 kc_lfin")
    k("s_mov_b32 s47, 0")
    k.label("kc_poll")
    k("s_waitcnt vmcnt(0)")
    k("v_max3_u32 v48, v33, v35, v37")
    k("v_max3_u32 v49, v39, v41, v43")
    k("v_max3_u32 v48, v48, v45, v47")
    k("v_max_u32 v48, v48, v49")
    k("v_cmp_eq_u32 vcc, -1, v48")
    k("s_cbranch_vccz kc_got")
    k("s_add_u32 s47, s47, 1")
    k("s_cmp_ge_u32 s47, 0x40000")
    k("s_cbranch_scc1 kc_got")
    poll_loads()
    k("s_branch kc_poll")
    k.label("kc_got")
    k.stamp(4)
    for s_ in (4, 2, 1):
        for p in range(s_):
            k(f"v_pk_add_f32 v[{32+2*p}:{33+2*p}], v[{32+2*p}:{33+2*p}], v[{32+2*(p+s_)}:{33+2*(p+s_)}]")
    k(f"s_mov_b32 s46, {f32(1.0/688)}")
    ln_finalize(k, 32, 33, 48, "s46", "s27")
    k("v_mul_f32 v32, -v32, v33")
    k("v_lshlrev_b32 v17, 2, v1")
    k(f"ds_write_b32 v17, v33 offset:{NB}")
    k(f"ds_write_b32 v17, v32 offset:{NB+256}")
    k("s_waitcnt lgkmcnt(0)")
    k.label("kc_lfin")
    k("s_barrier")
    k.endpgm()

    k.label("kc_comp")
    k("s_mul_i32 s16, s8, 192")
    k("v_lshl_add_u32 v5, v3, 2, s16")
    k("s_mul_i32 s16, s8, 196608")
    k("v_add_u32 v6, s16, v4")
    k("v_add_u32 v7, 0x10000, v6")
    k("v_add_u32 v8, 0x20000, v6")
    k("s_lshl_b32 s29, s4, 1")
    k("s_add_u32 s29, s29, s7")
    k("s_lshl_b32 s29, s29, 10")
    k("s_waitcnt lgkmcnt(0)")
    for p in range(2):
        k(f"s_lshl_b32 s16, s{40+p}, 16")
        k(f"s_add_u32 s16, s16, {WS_ZF}")
        k(f"s_lshl_b32 s17, s{42+p}, 16")
        mk_srd(44 + 4 * p, "s16", "s17")
    for t in range(2):
        k(f"s_lshl_b32 s16, s7, 1")
        k(f"s_add_u32 s16, s16, {t}")
        k("v_xor_b32 v17, s16, v15")
        k(f"v_lshl_add_u32 v{10+t}, v17, 5, v16")
    k("s_mul_i32 s16, s8, 3072")
    k(f"s_add_u32 s16, s16, {BB}")
    k("v_add_u32 v12, s16, v4")
    k("v_mov_b32 v18, v10")
    k("v_mov_b32 v19, v11")
    k("v_mov_b32 v20, v12")
    for r in range(24):
        k(f"v_mov_b32 v{ACC+r}, 0")
    for r in range(16):
        k(f"v_mov_b32 v{SS+r}, 0")
    k(f"s_mov_b32 s60, {f32(GC0)}")
    k(f"s_mov_b32 s61, {f32(GC1)}")
    k("s_mov_b32 s70, 0")
    k("s_mov_b32 s71, 0")
    k("s_lshl_b32 s16, s7, 7")
    k("v_lshl_add_u32 v13, v9, 4, s16")

    def rd(S, kk):
        out = []
        for t in range(2):
            for h in range(2):
                out.append(f"ds_read_b64_tr_b16 v[{S+4*t+2*h}:{S+4*t+2*h+1}], v{18+t} offset:{kk*4096 + h*512}")
        for t in range(3):
            out.append(f"ds_read_b128 v[{S+8+4*t}:{S+11+4*t}], v20 offset:{kk*6144 + t*1024}")
        return out

    def mf(S):
        out = []
        for t in range(3):
            for r in range(2):
                a = ACC + (r * 3 + t) * 4
                out.append(f"v_mfma_f32_16x16x32_bf16 v[{a}:{a+3}], v[{S+4*r}:{S+4*r+3}], v[{S+8+4*t}:{S+11+4*t}], v[{a}:{a+3}]")
        return out

    def affine(p, dst):
        for t in range(3):
            c = CSR + 2 * (p * 6 + 2 * t)
            for r in range(2):
                for h in range(2):
                    w = dst + t * 8 + r * 4 + 2 * h
                    RM = R4 + 8 * r + 4 + 2 * h
                    k(f"v_pk_fma_f32 v[{w}:{w+1}], v[{RM}:{RM+1}], v[{c}:{c+1}], v[{c+2}:{c+3}] op_sel_hi:[1,0,0] neg_lo:[1,0,0] neg_hi:[1,0,0]")
        for t in range(3):
            for r in range(2):
                for h in range(2):
                    x = ACC + (r * 3 + t) * 4 + 2 * h
                    w = dst + t * 8 + r * 4 + 2 * h
                    R_ = R4 + 8 * r + 2 * h
                    k(f"v_pk_fma_f32 v[{w}:{w+1}], v[{x}:{x+1}], v[{R_}:{R_+1}], v[{w}:{w+1}]")

    k.stamp(2)
    k("s_barrier")
    k.stamp(3)
    for x in rd(X, 0) + rd(Y, 1):
        k(x)
    k("s_mov_b32 s28, 0")
    k("s_mov_b32 s70, 8192")
    k(f"s_mov_b32 s71, {BSTG}")
    k("v_add_u32 v18, s70, v10")
    k("v_add_u32 v19, s70, v11")
    k("v_add_u32 v20, s71, v12")
    k(".p2align 6")
    k.label("kc_loop")
    for par in range(2):
        cur, nxt = par * 40, (1 - par) * 40
        for (S, kk) in ((X, 0), (Y, 1)):
            k("s_waitcnt lgkmcnt(7)")
            if kk == 0:
                k("s_barrier")
            m = mf(S + cur)
            rr = rd(S + nxt, kk)
            r = [rr[0:2], rr[2:4]] + [[x] for x in rr[4:]] + [[]]
            if kk == 0:
                r[2] += ["s_add_u32 s70, s70, 8192"]
                r[3] += ["s_and_b32 s70, s70, 0xffff"]
                r[4] += [f"s_add_u32 s71, s71, {BSTG}"]
                r[5] += [f"s_cmp_eq_u32 s71, {BSTG*NST}", "s_cselect_b32 s71, 0, s71"]
            else:
                r[2] += ["v_add_u32 v18, s70, v10"]
                r[3] += ["v_add_u32 v19, s70, v11"]
                r[5] += ["v_add_u32 v20, s71, v12"]
            for i, x in enumerate(m):
                k(x)
                for y in r[i]:
                    k(y)
    k("s_add_u32 s28, s28, 2")
    k("s_cmp_eq_u32 s28, 16")
    k("s_cbranch_scc1 kc_last")
    k("s_cmp_lg_u32 s28, 8")
    k("s_cbranch_scc1 kc_loop")
    k("s_barrier")
    k.stamp(4)
    for r in range(2):
        k(f"ds_read_b128 v[{R4+8*r}:{R4+8*r+3}], v13 offset:{SB + r*64}")
        k(f"ds_read_b128 v[{R4+8*r+4}:{R4+8*r+7}], v13 offset:{SB + 256 + r*64}")
    k("s_waitcnt lgkmcnt(3)")
    for p in range(2):
        for t in range(3):
            for cb in range(2):
                k(f"ds_read_b32 v{CSR+2*(p*6+2*t+cb)}, v5 offset:{CSL + (2*p+cb)*384 + t*64}")
    k("s_waitcnt lgkmcnt(0)")
    affine(0, YK)
    for r in range(24):
        k(f"v_mov_b32 v{ACC+r}, 0")
    for t in range(3):
        ps = [(YK + 8 * t + 2 * q, TP + 2 * q, PK + q) for q in range(4)]
        for (x, tm, p) in ps:
            k(f"v_cvt_pk_bf16_f32 v{tm}, v{x}, v{x+1}")
        for (x, tm, p) in ps:
            k(f"v_lshlrev_b32 v{x}, 16, v{tm}")
            k(f"v_and_b32 v{x+1}, 0xffff0000, v{tm}")
        gelu_batch(k, ps)
        for (x, tm, p) in ps:
            k(f"v_lshlrev_b32 v{x}, 16, v{p}")
            k(f"v_and_b32 v{x+1}, 0xffff0000, v{p}")
        for q, (x, tm, p) in enumerate(ps):
            ss = SS + 2 * q
            k(f"v_pk_add_f32 v[{ss}:{ss+1}], v[{ss}:{ss+1}], v[{x}:{x+1}]")
            k(f"v_pk_fma_f32 v[{ss+8}:{ss+9}], v[{x}:{x+1}], v[{x}:{x+1}], v[{ss+8}:{ss+9}]")
    src = lambda r, e, b: SS + 8 * b + 4 * r + e
    for e in range(4):
        for b in range(2):
            d = TP + e * 2 + b
            k(f"v_add_f32_dpp v{d}, v{src(0,e,b)}, v{src(0,e,b)} row_ror:8 row_mask:0xf bank_mask:0x3")
            k(f"v_add_f32_dpp v{d}, v{src(1,e,b)}, v{src(1,e,b)} row_ror:8 row_mask:0xf bank_mask:0xc")
    for m in range(4):
        k(f"v_add_f32_dpp v{SS+m}, v{TP+m}, v{TP+m} row_half_mirror row_mask:0xf bank_mask:0x5")
        k(f"v_add_f32_dpp v{SS+m}, v{TP+4+m}, v{TP+4+m} row_half_mirror row_mask:0xf bank_mask:0xa")
    for m in range(4):
        k(f"v_add_f32_dpp v{SS+m}, v{SS+m}, v{SS+m} quad_perm:[2,3,0,1] row_mask:0xf bank_mask:0xf")
    for m in range(4):
        k(f"v_add_f32_dpp v{SS+m}, v{SS+m}, v{SS+m} quad_perm:[1,0,3,2] row_mask:0xf bank_mask:0xf")
    k("v_bfe_u32 v17, v1, 3, 1")
    k("v_lshlrev_b32 v17, 7, v17")
    k("v_lshl_add_u32 v17, v9, 5, v17")
    k("v_bfe_u32 v14, v1, 2, 1")
    k("v_lshl_add_u32 v17, v14, 4, v17")
    k("s_lshl_b32 s16, s7, 8")
    k("s_lshl_b32 s17, s8, 9")
    k("s_add_u32 s16, s16, s17")
    k("v_add_u32 v17, s16, v17")
    k(f"ds_write_b128 v17, v[{SS}:{SS+3}] offset:{ZB}")
    k("s_waitcnt lgkmcnt(0)")
    k("s_barrier")
    k.stamp(5)
    k("s_branch kc_loop")
    k.label("kc_last")
    k("s_waitcnt lgkmcnt(0)")
    k.stamp(6)
    W1 = X
    W1 = X + 40
    affine(1, W1)
    for t in range(3):
        for q in range(4):
            x = W1 + 8 * t + 2 * q
            k(f"v_cvt_pk_bf16_f32 v{PK+4*t+q}, v{x}, v{x+1}")
        k(f"buffer_store_dwordx4 v[{PK+4*t}:{PK+4*t+3}], v{6+t}, s[48:51], s29 offen {SC}")
    k.stamp(7)
    k("s_barrier")
    k.stamp(8)
    for r in range(2):
        k(f"ds_read_b128 v[{R4+8*r}:{R4+8*r+3}], v13 offset:{NB + r*64}")
        k(f"ds_read_b128 v[{R4+8*r+4}:{R4+8*r+7}], v13 offset:{NB + 256 + r*64}")
    k("s_waitcnt lgkmcnt(0)")
    for t in range(3):
        for r in range(2):
            for h in range(2):
                x = YK + t * 8 + r * 4 + 2 * h
                R_ = R4 + 8 * r + 2 * h
                k(f"v_pk_fma_f32 v[{x}:{x+1}], v[{x}:{x+1}], v[{R_}:{R_+1}], v[{R_+4}:{R_+5}]")
        for q in range(4):
            x = YK + 8 * t + 2 * q
            k(f"v_cvt_pk_bf16_f32 v{X+4*t+q}, v{x}, v{x+1}")
        k(f"buffer_store_dwordx4 v[{X+4*t}:{X+4*t+3}], v{6+t}, s[44:47], s29 offen {SC}")
    k.label(L_end)
    k.endpgm()
    k.label("kc_oob")
    k("s_endpgm")
    return k
```

```python
from gfx import Kernel
from layout import *
from common import f32, LOG2E
from kc import ln_finalize, gelu_batch, GC0, GC1
import os

GRID = 256
BLOCK = 512
SPIN = 0x100000
SB = 0
ZB = 512
NB = ZB + 1024
CSL = NB + 512
AB = 4096
BB = AB + 65536
BSTG = 12288
NST = 7
LDS = BB + BSTG * NST
DB = 4096
STG = 20480
NSTAGES = 32
NREG = int(os.environ.get("NREG", 6))
AR = 80
EGROUPS = [(0, 4), (4, 8), (8, 13), (13, 18), (18, 22)]
ELOOK = 8
PRO = 3
ROT = int(os.environ.get('ROT', 0))
A1 = int(os.environ.get('A1', 12))
A2 = int(os.environ.get('A2', 0))
ZF_FLAGS = os.environ.get('ZFF', 'sc1')
SL2 = int(os.environ.get('SL2', 16))
CSAT = 6
X, Y = 24, 44
ACC = 104
R4 = 128
YK = 144
SS = 168
TP = 184
PK = 192
CSR = 204
XR = 232
GR = 240
BR = 228
Z1 = 144
BS = 168


def kernel_CD():
    k = Kernel("kcd_kernel", 2, 23)
    L_end = "kcd_end"
    k(f"s_cmp_ge_u32 s2, {GRID}")
    k("s_cbranch_scc1 kcd_oob")
    k.start()
    k("s_load_dwordx2 s[36:37], s[0:1], 128")
    k("s_load_dwordx4 s[84:87], s[0:1], 72")
    k("s_load_dwordx2 s[38:39], s[0:1], 112")
    k("v_and_b32 v1, 63, v0")
    k("v_lshrrev_b32 v2, 6, v0")
    k("v_readfirstlane_b32 s11, v2")
    CB = int(os.environ.get("CMAP", 1))
    k("s_and_b32 s6, s2, 7")
    k("s_lshr_b32 s5, s2, 3")
    k(f"s_lshr_b32 s4, s6, {CB}")
    k(f"s_lshl_b32 s4, s4, {2+CB}")
    k(f"s_lshr_b32 s7, s5, {3-CB}")
    k("s_add_u32 s4, s4, s7")
    k(f"s_and_b32 s5, s5, {(8 >> CB) - 1}")
    k(f"s_and_b32 s6, s6, {(1 << CB) - 1}")
    k(f"s_lshl_b32 s6, s6, {3-CB}")
    k("s_add_u32 s5, s5, s6")
    k("v_lshlrev_b32 v4, 4, v1")
    k("s_and_b32 s3, s11, 3")
    k("s_lshr_b32 s7, s3, 1")
    k("s_and_b32 s8, s3, 1")
    k("s_mul_i32 s6, s5, 5")
    k("s_max_u32 s40, s5, 5")
    k("s_add_u32 s40, s40, s6")
    k("s_add_u32 s40, s40, 38")
    k("s_cmp_ge_u32 s5, 5")
    k("s_cselect_b32 s42, 6, 5")
    k("s_mul_i32 s41, s5, 6")
    k("s_sub_u32 s43, 43, s41")
    k("s_min_u32 s43, s43, 6")
    k("v_and_b32 v3, 15, v1")
    k("v_lshrrev_b32 v9, 4, v1")
    k("v_bfe_u32 v15, v1, 2, 2")
    k("v_lshl_add_u32 v16, v9, 3, v15")
    k("v_lshlrev_b32 v16, 7, v16")
    k("v_and_b32 v17, 3, v1")
    k("v_lshl_add_u32 v16, v17, 3, v16")
    k(f"v_add_u32 v16, {AB}, v16")
    k("v_lshrrev_b32 v15, 1, v15")
    k("v_and_b32 v17, 1, v9")
    k("v_lshl_or_b32 v15, v17, 1, v15")
    k(f"s_mov_b32 s27, {f32(1e-5)}")
    k("s_cmp_lt_u32 s11, 4")
    k("s_cbranch_scc1 kcd_comp")

    def mk_srd(d, offreg, nreg):
        k(f"s_add_u32 s{d}, s36, {offreg}")
        k(f"s_addc_u32 s{d+1}, s37, 0")
        k(f"s_and_b32 s{d+1}, s{d+1}, 0xffff")
        k(f"s_mov_b32 s{d+2}, {nreg}")
        k(f"s_mov_b32 s{d+3}, 0x00020000")

    k("v_lshrrev_b32 v10, 3, v1")
    k("v_and_b32 v8, 2, v10")
    k("s_lshl_b32 s16, s8, 2")
    k("v_or_b32 v8, s16, v8")
    k("v_and_b32 v11, 7, v1")
    k("v_xor_b32 v8, v8, v11")
    k("v_lshlrev_b32 v8, 4, v8")
    k("s_lshl_b32 s16, s3, 3")
    k("v_add_u32 v10, s16, v10")
    k("v_lshl_add_u32 v8, v10, 12, v8")
    k("s_mul_i32 s16, s8, 49152")
    k("v_add_u32 v5, s16, v4")
    k("v_add_u32 v6, 16384, v5")
    k("v_add_u32 v7, 32768, v5")
    k("s_lshl_b32 s21, s4, 7")
    k("s_lshl_b32 s22, s3, 10")
    k(f"s_add_u32 s22, s22, {AB}")
    k("s_mul_i32 s23, s3, 3072")
    k(f"s_add_u32 s23, s23, {BB}")
    k("s_lshl_b32 s24, s7, 10")
    k("s_waitcnt lgkmcnt(0)")
    k.srd(12, 36, 512 * 4096, WS_X1T)
    for p in range(2):
        k(f"s_lshl_b32 s16, s{40+p}, 14")
        k(f"s_add_u32 s16, s16, {WS_WPF}")
        k(f"s_lshl_b32 s17, s{42+p}, 14")
        mk_srd(64 + 4 * p, "s16", "s17")

    cnt = []
    state = {"vm": 0}

    def dma(s, fill=()):
        p, sl = s // 8, s % 8
        n = 0
        fill = list(fill)
        per = (len(fill) + (4 if p == 0 else 2)) // (5 if p == 0 else 3)

        def f_():
            for _ in range(per):
                if fill:
                    k(fill.pop(0))
        if p == 0:
            for kk in range(2):
                kap = 2 * sl + kk
                k(f"s_add_u32 m0, s22, {kap*4096}")
                k(f"s_add_u32 s25, s21, {kap*32*4096}")
                k("buffer_load_dwordx4 v8, s[12:15], s25 offen lds")
                f_()
                n += 1
        k(f"s_add_u32 s25, s24, {sl*2048}")
        for i in range(3):
            k(f"s_add_u32 m0, s23, {(s % NST)*BSTG + i*1024}")
            k("s_nop 0")
            k(f"buffer_load_dwordx4 v{5+i}, s[{64+4*p}:{67+4*p}], s25 offen lds")
            f_()
            n += 1
        assert not fill
        state["vm"] += n
        cnt.append(state["vm"])

    for s in range(PRO):
        dma(s)
    k.stamp(2)
    k("v_xor_b32 v17, s3, v15")
    k("v_lshl_add_u32 v14, v17, 5, v16")
    for r in (20, 21, 12, 13):
        k(f"v_mov_b32 v{r}, 0")
    k("s_mov_b32 s26, 0x3f803f80")
    k.srd(32, 36, 131072, WS_XST)
    k("s_lshl_b32 s44, s4, 12")
    k("s_lshl_b32 s45, s5, 9")
    k("s_add_u32 s45, s45, s44")
    k("v_lshlrev_b32 v18, 3, v1")
    k("s_cmp_eq_u32 s7, 0")
    k("s_cselect_b32 s16, s40, s41")
    k("s_cselect_b32 s17, s42, s43")
    k("s_lshl_b32 s16, s16, 10")
    k("s_lshl_b32 s17, s17, 10")
    k(f"s_mul_i32 s18, s8, {CSB_B}")
    k("s_add_u32 s16, s16, s18")
    k(f"s_add_u32 s16, s16, {WS_CSB}")
    mk_srd(72, "s16", "s17")
    k("v_lshlrev_b32 v10, 6, v3")
    k("v_lshl_add_u32 v10, v9, 4, v10")
    k("v_add_u32 v11, 4096, v10")
    k("s_mul_i32 s16, s3, 384")
    k("v_lshl_add_u32 v19, v3, 2, s16")

    def waitstage(s):
        k(f"s_waitcnt vmcnt({min(63, state['vm'] - cnt[s])})")

    def stats(s):
        for kk in range(2):
            for h in range(2):
                x = 24 + (s & 1) * 8 + kk * 4 + h * 2
                k(f"ds_read_b64_tr_b16 v[{x}:{x+1}], v14 offset:{(2*s+kk)*4096 + h*512}")

    def stats2(s):
        out = []
        for j in range(8):
            a_, b_ = ((20, 21), (12, 13))[j & 1]
            x = 24 + (s & 1) * 8 + j
            out.append(f"v_dot2_f32_bf16 v{a_}, v{x}, s26, v{a_}")
            out.append(f"v_dot2_f32_bf16 v{b_}, v{x}, v{x}, v{b_}")
        return out

    nxt_stage = PRO
    k("s_setprio 2")
    for j in range(9):
        waitstage(j)
        k("s_barrier")
        fill = ["s_waitcnt lgkmcnt(0)"] + stats2(j - 1) if j >= 1 else []
        todo = [nxt_stage] if nxt_stage <= 8 else []
        if j == 6:
            k(f"s_waitcnt vmcnt({state['vm'] - state['cs']})")
            R = [48 + 4 * t for t in range(6)]
            for r in R:
                fill.append(f"v_pk_add_f32 v[{r}:{r+1}], v[{r}:{r+1}], v[{r+2}:{r+3}]")
            for r in R:
                fill.append(f"v_add_f32 v{r}, v{r}, v{r+1}")
            for sw in ("16", "32"):
                for r in R:
                    fill.append(f"v_mov_b32 v{r+1}, v{r}")
                for r in R:
                    fill.append(f"v_permlane{sw}_swap_b32 v{r}, v{r+1}")
                for r in R:
                    fill.append(f"v_add_f32 v{r}, v{r}, v{r+1}")
            for t, r in enumerate(R):
                fill.append(f"ds_write_b32 v19, v{r} offset:{CSL + t*64}")
        if j == 8:
            for x in fill:
                k(x)
            fill = []
            k("v_add_f32 v20, v20, v12")
            k("v_add_f32 v21, v21, v13")
            for r in (20, 21):
                k(f"v_mov_b32 v17, v{r}")
                k(f"v_permlane16_swap_b32 v17, v{r}")
                k(f"v_add_f32 v{r}, v{r}, v17")
                k(f"v_mov_b32 v17, v{r}")
                k(f"v_permlane32_swap_b32 v17, v{r}")
                k(f"v_add_f32 v{r}, v{r}, v17")
            k(f"s_mov_b32 s46, {f32(1.0/512)}")
            ln_finalize(k, 20, 21, 17, "s46", "s27")
            k("v_mul_f32 v20, v20, v21")
            k("s_lshl_b32 s16, s3, 6")
            k("v_lshl_add_u32 v17, v3, 2, s16")
            k(f"ds_write_b32 v17, v21 offset:{SB}")
            k(f"ds_write_b32 v17, v20 offset:{SB+256}")
            k("s_waitcnt lgkmcnt(0)")
            k("s_barrier")
            k("s_setprio 0")
            todo = list(range(nxt_stage, 15))
        for t in todo:
            dma(t, fill)
            fill = []
            nxt_stage = t + 1
            if t == CSAT:
                for tt in range(6):
                    k(f"buffer_load_dwordx4 v[{48+4*tt}:{51+4*tt}], v{10 + tt//4}, s[72:75], 0 offen offset:{(tt%4)*1024}")
                state["vm"] += 6
                state["cs"] = state["vm"]
        for x in fill:
            k(x)
        if j < 8:
            stats(j)
    k("v_lshrrev_b32 v12, 3, v1")
    k("v_lshrrev_b32 v13, 2, v12")
    k("v_lshlrev_b32 v13, 3, v13")
    k("v_and_b32 v14, 3, v12")
    k("v_add_u32 v13, v13, v14")
    k("v_lshlrev_b32 v13, 12, v13")
    k("v_lshrrev_b32 v12, 1, v12")
    k("v_and_b32 v14, 7, v1")
    k("v_xor_b32 v12, v12, v14")
    k("v_lshl_add_u32 v10, v12, 4, v13")
    k("v_xor_b32 v12, 4, v12")
    k("v_lshl_add_u32 v11, v12, 4, v13")
    k(f"v_add_u32 v11, {16*4096}, v11")
    k("s_lshl_b32 s16, s4, 18")
    k("s_lshl_b32 s17, s7, 17")
    k("s_add_u32 s16, s16, s17")
    k("s_lshl_b32 s17, s8, 14")
    k("s_add_u32 s50, s16, s17")
    k.srd(52, 84, 2048 * 4096)
    k("s_and_b32 s51, s2, 7")
    k(f"s_mul_i32 s51, s51, {ROT*128}")
    areg = {"n": 0}

    def aload(n):
        for _ in range(n):
            i = areg["n"]
            if i >= 2 * NREG:
                return
            st, p = i // 2, i % 2
            r = AR + 4 * i
            k(f"s_add_u32 s48, s51, {st*128}")
            k("s_and_b32 s48, s48, 0xfff")
            k("s_add_u32 s48, s48, s50")
            k(f"buffer_load_dwordx4 v[{r}:{r+3}], v{10+p}, s[52:55], s48 offen")
            areg["n"] += 1
            state["vm"] += 1

    aload(A1)
    k("s_barrier")
    k.stamp(3)
    k("s_cmp_eq_u32 s3, 0")
    k("s_cselect_b32 s34, s34, 0")
    k(f"ds_read_b64 v[32:33], v18 offset:{ZB}")
    k(f"ds_read_b64 v[34:35], v18 offset:{ZB+512}")
    k("s_waitcnt lgkmcnt(0)")
    k("v_pk_add_f32 v[32:33], v[32:33], v[34:35]")
    k("buffer_store_dwordx2 v[32:33], v18, s[32:35], s45 offen sc1")
    state["vm"] += 1

    def poll_loads():
        for p in range(8):
            k(f"buffer_load_dwordx2 v[{32+2*p}:{33+2*p}], v18, s[32:35], s44 offen offset:{p*512} sc1")

    for s in range(8, 16):
        if s < 15:
            waitstage(s + 1)
        k("s_barrier")
        if s == 9:
            dma(15)
        if s == 12:
            poll_loads()
            state["vm"] += 8
            state["poll"] = state["vm"]
        if s != 9:
            aload(A2)
    k("s_cmp_lg_u32 s3, 0")
    k("s_cbranch_scc1 kcd_lfin")
    k("s_mov_b32 s47, 0")
    k(f"s_waitcnt vmcnt({state['vm'] - state['poll']})")
    k.label("kcd_poll")
    k("v_max3_u32 v48, v33, v35, v37")
    k("v_max3_u32 v49, v39, v41, v43")
    k("v_max3_u32 v48, v48, v45, v47")
    k("v_max_u32 v48, v48, v49")
    k("v_cmp_eq_u32 vcc, -1, v48")
    k("s_cbranch_vccz kcd_got")
    k("s_add_u32 s47, s47, 1")
    k(f"s_cmp_ge_u32 s47, {SPIN}")
    k("s_cbranch_scc1 kcd_got")
    poll_loads()
    k("s_waitcnt vmcnt(0)")
    k("s_branch kcd_poll")
    k.label("kcd_got")
    k.stamp(4)
    for s_ in (4, 2, 1):
        for p in range(s_):
            k(f"v_pk_add_f32 v[{32+2*p}:{33+2*p}], v[{32+2*p}:{33+2*p}], v[{32+2*(p+s_)}:{33+2*(p+s_)}]")
    k(f"s_mov_b32 s46, {f32(1.0/688)}")
    ln_finalize(k, 32, 33, 48, "s46", "s27")
    k("v_mul_f32 v32, -v32, v33")
    k("v_lshlrev_b32 v17, 2, v1")
    k(f"ds_write_b32 v17, v33 offset:{NB}")
    k(f"ds_write_b32 v17, v32 offset:{NB+256}")
    k("s_waitcnt lgkmcnt(0)")
    k.label("kcd_lfin")
    k("s_barrier")
    k("s_mul_i32 s16, s8, 196608")
    k("v_add_u32 v5, s16, v4")
    k("v_add_u32 v6, 0x10000, v5")
    k("v_add_u32 v7, 0x20000, v5")
    k("s_lshl_b32 s16, s41, 16")
    k(f"s_add_u32 s16, s16, {WS_ZF + 43*65536}")
    k("s_lshl_b32 s17, s43, 16")
    mk_srd(56, "s16", "s17")
    k("s_lshl_b32 s60, s3, 11")
    k(f"s_add_u32 s60, s60, {DB}")
    k("s_mul_i32 s61, s3, 3072")
    k(f"s_add_u32 s61, s61, {DB + 8192}")
    k("v_add_u32 v12, s60, v4")
    k(f"v_add_u32 v13, {3*STG}, v12")
    k(f"v_add_u32 v14, {6*STG}, v12")
    k.srd(76, 36, 65536, WS_BAR)
    k("s_lshr_b32 s16, s2, 3")
    k("s_and_b32 s16, s16, 15")
    k("s_lshl_b32 s16, s16, 7")
    k("v_lshl_add_u32 v16, v1, 11, s16")
    k("s_and_b32 s16, s2, 7")
    k("s_lshl_b32 s16, s16, 11")
    k("v_lshl_add_u32 v17, v3, 7, s16")
    k("v_mov_b32 v19, 1")
    k("s_movk_i32 s62, 16384")

    def awrite(st):
        slot = st % NST
        base, off = (12, slot * STG) if slot < 3 else ((13, (slot - 3) * STG) if slot < 6 else (14, 0))
        for p in range(2):
            r = AR + 4 * (2 * st + p)
            k(f"ds_write_b128 v{base}, v[{r}:{r+3}] offset:{off + p*1024}")

    aload(99)
    k("s_waitcnt vmcnt(0)")
    for st in range(NST - 1):
        awrite(st)
    k("s_barrier")
    k.stamp(5)
    k("s_cmp_lg_u32 s3, 0")
    k("s_cbranch_scc1 kcd_na")
    k("s_mov_b64 exec, 0xff")
    k("buffer_atomic_add v19, v16, s[76:79], s62 offen sc1")
    k("s_mov_b64 exec, -1")
    k.label("kcd_na")
    k("s_cmp_lg_u32 s3, 0")
    k("s_cbranch_scc1 kcd_ng")
    k("s_mov_b32 s47, 0")
    k(f"s_sleep {SL2}")
    k.label("kcd_gp")
    k("buffer_load_dword v20, v17, s[76:79], s62 offen sc1")
    k("s_add_u32 s47, s47, 1")
    k("s_waitcnt vmcnt(0)")
    k("v_cmp_gt_u32 vcc, 16, v20")
    k("s_cbranch_vccz kcd_ng")
    k("s_sleep 4")
    k(f"s_cmp_lt_u32 s47, {SPIN}")
    k("s_cbranch_scc1 kcd_gp")
    k.label("kcd_ng")
    k("s_waitcnt vmcnt(0)")
    k("s_barrier")
    k.stamp(6)
    dcnt = []
    dstate = {"vm": 0}

    def ddma(st, awr=True):
        slot = st % NST
        k(f"s_add_u32 s48, s51, {st*128}")
        k("s_and_b32 s48, s48, 0xfff")
        if st >= NREG:
            for p in range(2):
                k(f"s_add_u32 m0, s60, {slot*STG + p*1024}")
                k("s_add_u32 s25, s50, s48")
                k(f"buffer_load_dwordx4 v{10+p}, s[52:55], s25 offen lds")
                dstate["vm"] += 1
        k("s_lshl_b32 s25, s48, 4")
        k("s_add_u32 s25, s25, s24")
        for i in range(3):
            k(f"s_add_u32 m0, s61, {slot*STG + i*1024}")
            k("s_nop 0")
            k(f"buffer_load_dwordx4 v{5+i}, s[56:59], s25 offen {ZF_FLAGS} lds")
            dstate["vm"] += 1
        if st < NREG and awr:
            awrite(st)
        dcnt.append(dstate["vm"])

    for st in range(NST - 1):
        ddma(st, False)
    k(f"s_mul_i32 s16, s5, {4*22528}")
    k(f"s_add_u32 s16, s16, {WS_WOF}")
    mk_srd(64, "s16", 4 * 22528)
    k("s_mul_i32 s63, s3, 5120")
    k("v_add_u32 v15, s63, v4")
    k(f"s_add_u32 s63, s63, {DB}")
    k("s_lshl_b32 s16, s4, 2")
    k("s_add_u32 s16, s16, s3")
    k("s_mul_i32 s16, s16, 22528")
    k(f"s_add_u32 s16, s16, {WS_UT}")
    mk_srd(68, "s16", 22528)
    k("s_lshl_b32 s16, s4, 7")
    k("s_add_u32 s16, s16, 0x8000")
    k("v_mov_b32 v21, s16")
    k("s_mul_i32 s26, s3, 22528")
    k(f"s_add_u32 s26, s26, {DB}")
    for j in range(NSTAGES + 1):
        if j < NSTAGES:
            lg = 0 if (j == 0 or j + NST - 3 >= NREG + 1) else 4
            k(f"s_waitcnt vmcnt({dstate['vm'] - dcnt[j]}) lgkmcnt({lg})")
        k("s_barrier")
        st = j + NST - 2
        if j >= 1 and st < NSTAGES:
            ddma(st)
        elif st >= NSTAGES and st - NSTAGES < 5:
            i = st - NSTAGES
            slot = st % NST
            for jj in range(5):
                if jj % 4 == 0:
                    k(f"s_add_u32 m0, s63, {slot*STG + jj*1024}")
                    k(f"v_add_u32 v22, {i*20480 + jj*1024}, v15")
                k(f"buffer_load_dwordx4 v22, s[64:67], 0 offen offset:{(jj%4)*1024} lds")
                dstate["vm"] += 1
    k("s_waitcnt vmcnt(0)")
    k("s_barrier")
    k("s_barrier")
    k.stamp(7)
    k("s_cmp_lg_u32 s3, 0")
    k("s_cbranch_scc1 kcd_pg")
    k("s_mov_b64 exec, 1")
    k("buffer_atomic_add v19, v21, s[76:79], 0 offen sc1")
    k("s_mov_b32 s28, 0")
    k.label("kcd_pl")
    k("buffer_load_dword v20, v21, s[76:79], 0 offen sc1")
    k("s_add_u32 s28, s28, 1")
    k("s_waitcnt vmcnt(0)")
    k("v_readfirstlane_b32 s29, v20")
    k("s_cmp_ge_u32 s29, 8")
    k("s_cbranch_scc1 kcd_po")
    k("s_sleep 1")
    k(f"s_cmp_lt_u32 s28, {SPIN}")
    k("s_cbranch_scc1 kcd_pl")
    k.label("kcd_po")
    k("s_mov_b64 exec, -1")
    k.label("kcd_pg")
    k("s_barrier")
    k.stamp(8)

    def udma(lo, hi):
        for ph in range(lo, hi):
            if ph % 4 == 0 or ph == lo:
                k(f"s_add_u32 m0, s26, {(ph & ~3)*1024}")
                k(f"s_mov_b32 s27, {(ph & ~3)*1024}")
            k(f"buffer_load_dwordx4 v4, s[68:71], s27 offen offset:{(ph%4)*1024} sc1 lds")

    issued = 0
    for (a_, b_) in EGROUPS:
        tgt = min(22, b_ + ELOOK)
        udma(issued, tgt)
        issued = tgt
        k(f"s_waitcnt vmcnt({issued - b_})")
        k("s_barrier")
    k.endpgm()

    k.label("kcd_comp")
    k("s_mul_i32 s16, s8, 192")
    k("v_lshl_add_u32 v5, v3, 2, s16")
    k("s_mul_i32 s16, s8, 196608")
    k("v_add_u32 v6, s16, v4")
    k("v_add_u32 v7, 0x10000, v6")
    k("v_add_u32 v8, 0x20000, v6")
    k("s_lshl_b32 s30, s4, 1")
    k("s_add_u32 s30, s30, s7")
    k("s_lshl_b32 s29, s30, 10")
    k("v_lshlrev_b32 v21, 4, v9")
    k("s_lshl_b32 s18, s30, 6")
    k("s_lshl_b32 s19, s5, 8")
    k("s_lshl_b32 s16, s8, 7")
    k("s_add_u32 s19, s19, s16")
    k(f"s_add_u32 s19, s19, {5*2048}")
    k("s_waitcnt lgkmcnt(0)")
    k.srd(52, 86, 4096)
    k(f"buffer_load_dwordx4 v[{BR}:{BR+3}], v21, s[52:55], s18 offen")
    k.srd(52, 36, 12288, WS_MOD)
    for t in range(2):
        k(f"buffer_load_dwordx4 v[{GR+4*t}:{GR+4*t+3}], v21, s[52:55], s19 offen offset:{64*t}")
    k("s_lshl_b32 s16, s40, 16")
    k(f"s_add_u32 s16, s16, {WS_ZF}")
    k("s_lshl_b32 s17, s42, 16")
    mk_srd(44, "s16", "s17")
    for t in range(2):
        k("s_lshl_b32 s16, s7, 1")
        k(f"s_add_u32 s16, s16, {t}")
        k("v_xor_b32 v17, s16, v15")
        k(f"v_lshl_add_u32 v{10+t}, v17, 5, v16")
    k("s_mul_i32 s16, s8, 3072")
    k(f"s_add_u32 s16, s16, {BB}")
    k("v_add_u32 v12, s16, v4")
    k("v_mov_b32 v18, v10")
    k("v_mov_b32 v19, v11")
    k("v_mov_b32 v20, v12")
    for r in range(24):
        k(f"v_mov_b32 v{ACC+r}, 0")
    for r in range(16):
        k(f"v_mov_b32 v{SS+r}, 0")
    k(f"s_mov_b32 s60, {f32(GC0)}")
    k(f"s_mov_b32 s61, {f32(GC1)}")
    k("s_lshl_b32 s16, s7, 7")
    k("v_lshl_add_u32 v13, v9, 4, s16")
    k("s_mul_i32 s24, s30, 88")
    k("s_mul_i32 s25, s8, 3")
    k("s_add_u32 s25, s25, s41")
    k("s_add_u32 s24, s24, s25")
    k("s_lshl_b32 s24, s24, 9")
    k(f"s_add_u32 s24, s24, {WS_UT}")
    k("s_sub_i32 s26, 44, s25")
    k("s_max_i32 s26, s26, 0")
    k("s_min_u32 s26, s26, 3")
    k("s_lshl_b32 s26, s26, 9")
    mk_srd(48, "s24", "s26")
    k(f"s_add_u32 s24, s24, {44*512}")
    mk_srd(56, "s24", "s26")
    k.srd(80, 38, 2048 * 1024)
    k("v_lshrrev_b32 v22, 2, v3")
    k("v_lshlrev_b32 v22, 3, v22")
    k("v_and_b32 v17, 3, v3")
    k("v_add_u32 v22, v22, v17")
    k("v_lshlrev_b32 v22, 10, v22")
    k("v_lshl_add_u32 v22, v9, 3, v22")
    k("s_lshl_b32 s64, s30, 15")
    k("s_lshl_b32 s65, s5, 7")
    k("s_add_u32 s64, s64, s65")
    k("s_lshl_b32 s65, s8, 6")
    k("s_add_u32 s64, s64, s65")
    k("s_add_u32 s65, s64, 4096")
    k("v_lshrrev_b32 v21, 1, v9")
    k("v_lshlrev_b32 v21, 2, v21")
    k("v_xor_b32 v21, v21, v1")
    k("v_lshlrev_b32 v21, 3, v21")
    k("v_bfe_u32 v14, v1, 2, 2")
    k("v_lshl_add_u32 v17, v9, 2, v14")
    k("v_lshlrev_b32 v17, 7, v17")
    k("v_and_b32 v2, 3, v1")
    k("v_lshl_add_u32 v17, v2, 3, v17")
    k("s_lshl_b32 s16, s5, 13")
    k("s_lshl_b32 s17, s8, 12")
    k("s_add_u32 s16, s16, s17")
    k(f"s_add_u32 s16, s16, {AB}")
    k("v_add_u32 v17, s16, v17")
    k("v_lshrrev_b32 v14, 1, v14")
    k("v_and_b32 v2, 2, v9")
    k("v_or_b32 v14, v14, v2")
    k("s_lshl_b32 s16, s7, 1")
    k("v_xor_b32 v14, s16, v14")
    k("v_lshl_add_u32 v2, v14, 5, v17")
    k("v_xor_b32 v14, 32, v2")

    def rd(S, kk):
        out = []
        for t in range(2):
            for h in range(2):
                out.append(f"ds_read_b64_tr_b16 v[{S+4*t+2*h}:{S+4*t+2*h+1}], v{18+t} offset:{kk*4096 + h*512}")
        for t in range(3):
            out.append(f"ds_read_b128 v[{S+8+4*t}:{S+11+4*t}], v20 offset:{kk*6144 + t*1024}")
        return out

    def mf(S):
        out = []
        for t in range(3):
            for r in range(2):
                a = ACC + (r * 3 + t) * 4
                out.append(f"v_mfma_f32_16x16x32_bf16 v[{a}:{a+3}], v[{S+4*r}:{S+4*r+3}], v[{S+8+4*t}:{S+11+4*t}], v[{a}:{a+3}]")
        return out

    def affine(p, dst):
        for t in range(3):
            c = CSR + 2 * (p * 6 + 2 * t)
            for r in range(2):
                for h in range(2):
                    w = dst + t * 8 + r * 4 + 2 * h
                    RM = R4 + 8 * r + 4 + 2 * h
                    k(f"v_pk_fma_f32 v[{w}:{w+1}], v[{RM}:{RM+1}], v[{c}:{c+1}], v[{c+2}:{c+3}] op_sel_hi:[1,0,0] neg_lo:[1,0,0] neg_hi:[1,0,0]")
        for t in range(3):
            for r in range(2):
                for h in range(2):
                    x = ACC + (r * 3 + t) * 4 + 2 * h
                    w = dst + t * 8 + r * 4 + 2 * h
                    R_ = R4 + 8 * r + 2 * h
                    k(f"v_pk_fma_f32 v[{w}:{w+1}], v[{x}:{x+1}], v[{R_}:{R_+1}], v[{w}:{w+1}]")

    k.stamp(2)
    k("s_barrier")
    k.stamp(3)
    for x in rd(X, 0) + rd(Y, 1):
        k(x)
    k("s_mov_b32 s28, 0")
    k("s_mov_b32 s70, 8192")
    k(f"s_mov_b32 s71, {BSTG}")
    k("v_add_u32 v18, s70, v10")
    k("v_add_u32 v19, s70, v11")
    k("v_add_u32 v20, s71, v12")
    k(".p2align 6")
    k.label("kcd_cloop")
    for par in range(2):
        cur, nxt = par * 40, (1 - par) * 40
        for (S, kk) in ((X, 0), (Y, 1)):
            k("s_waitcnt lgkmcnt(7)")
            if kk == 0:
                k("s_barrier")
            m = mf(S + cur)
            rr = rd(S + nxt, kk)
            r = [rr[0:2], rr[2:4]] + [[x] for x in rr[4:]] + [[]]
            if kk == 0:
                r[2] += ["s_add_u32 s70, s70, 8192"]
                r[3] += ["s_and_b32 s70, s70, 0xffff"]
                r[4] += [f"s_add_u32 s71, s71, {BSTG}"]
                r[5] += [f"s_cmp_eq_u32 s71, {BSTG*NST}", "s_cselect_b32 s71, 0, s71"]
            else:
                r[2] += ["v_add_u32 v18, s70, v10"]
                r[3] += ["v_add_u32 v19, s70, v11"]
                r[5] += ["v_add_u32 v20, s71, v12"]
            for i, x in enumerate(m):
                k(x)
                for y in r[i]:
                    k(y)
    k("s_add_u32 s28, s28, 2")
    k("s_cmp_eq_u32 s28, 16")
    k("s_cbranch_scc1 kcd_last")
    k("s_cmp_lg_u32 s28, 8")
    k("s_cbranch_scc1 kcd_cloop")
    k("s_barrier")
    k.stamp(4)
    for r in range(2):
        k(f"ds_read_b128 v[{R4+8*r}:{R4+8*r+3}], v13 offset:{SB + r*64}")
        k(f"ds_read_b128 v[{R4+8*r+4}:{R4+8*r+7}], v13 offset:{SB + 256 + r*64}")
    k("s_waitcnt lgkmcnt(3)")
    for p in range(2):
        for t in range(3):
            for cb in range(2):
                k(f"ds_read_b32 v{CSR+2*(p*6+2*t+cb)}, v5 offset:{CSL + (2*p+cb)*384 + t*64}")
    k("s_waitcnt lgkmcnt(0)")
    for r in range(2):
        for t in range(2):
            k(f"ds_read_b64_tr_b16 v[{XR+4*r+2*t}:{XR+4*r+2*t+1}], v{(2, 14)[r]} offset:{t*2048}")
    affine(0, YK)
    for r in range(24):
        k(f"v_mov_b32 v{ACC+r}, 0")
    for t in range(3):
        ps = [(YK + 8 * t + 2 * q, TP + 2 * q, PK + q) for q in range(4)]
        for (x, tm, p) in ps:
            k(f"v_cvt_pk_bf16_f32 v{tm}, v{x}, v{x+1}")
        for (x, tm, p) in ps:
            k(f"v_lshlrev_b32 v{x}, 16, v{tm}")
            k(f"v_and_b32 v{x+1}, 0xffff0000, v{tm}")
        gelu_batch(k, ps)
        for (x, tm, p) in ps:
            k(f"v_lshlrev_b32 v{x}, 16, v{p}")
            k(f"v_and_b32 v{x+1}, 0xffff0000, v{p}")
        for q, (x, tm, p) in enumerate(ps):
            ss = SS + 2 * q
            k(f"v_pk_add_f32 v[{ss}:{ss+1}], v[{ss}:{ss+1}], v[{x}:{x+1}]")
            k(f"v_pk_fma_f32 v[{ss+8}:{ss+9}], v[{x}:{x+1}], v[{x}:{x+1}], v[{ss+8}:{ss+9}]")
    src = lambda r, e, b: SS + 8 * b + 4 * r + e
    for e in range(4):
        for b in range(2):
            d = TP + e * 2 + b
            k(f"v_add_f32_dpp v{d}, v{src(0,e,b)}, v{src(0,e,b)} row_ror:8 row_mask:0xf bank_mask:0x3")
            k(f"v_add_f32_dpp v{d}, v{src(1,e,b)}, v{src(1,e,b)} row_ror:8 row_mask:0xf bank_mask:0xc")
    for m in range(4):
        k(f"v_add_f32_dpp v{SS+m}, v{TP+m}, v{TP+m} row_half_mirror row_mask:0xf bank_mask:0x5")
        k(f"v_add_f32_dpp v{SS+m}, v{TP+4+m}, v{TP+4+m} row_half_mirror row_mask:0xf bank_mask:0xa")
    for m in range(4):
        k(f"v_add_f32_dpp v{SS+m}, v{SS+m}, v{SS+m} quad_perm:[2,3,0,1] row_mask:0xf bank_mask:0xf")
    for m in range(4):
        k(f"v_add_f32_dpp v{SS+m}, v{SS+m}, v{SS+m} quad_perm:[1,0,3,2] row_mask:0xf bank_mask:0xf")
    k("v_bfe_u32 v17, v1, 3, 1")
    k("v_lshlrev_b32 v17, 7, v17")
    k("v_lshl_add_u32 v17, v9, 5, v17")
    k("v_bfe_u32 v14, v1, 2, 1")
    k("v_lshl_add_u32 v17, v14, 4, v17")
    k("s_lshl_b32 s16, s7, 8")
    k("s_lshl_b32 s17, s8, 9")
    k("s_add_u32 s16, s16, s17")
    k("v_add_u32 v17, s16, v17")
    k(f"ds_write_b128 v17, v[{SS}:{SS+3}] offset:{ZB}")
    k("s_waitcnt lgkmcnt(0)")
    k("s_barrier")
    k.stamp(5)
    k("s_branch kcd_cloop")
    k.label("kcd_last")
    k("s_waitcnt lgkmcnt(0)")
    k.stamp(6)
    W1 = X + 40
    affine(1, W1)
    for q in range(12):
        k(f"v_cvt_pk_bf16_f32 v{PK+q}, v{W1+2*q}, v{W1+2*q+1}")
    k("s_barrier")
    k.stamp(7)
    for r in range(2):
        k(f"ds_read_b128 v[{R4+8*r}:{R4+8*r+3}], v13 offset:{NB + r*64}")
        k(f"ds_read_b128 v[{R4+8*r+4}:{R4+8*r+7}], v13 offset:{NB + 256 + r*64}")
    k("s_waitcnt lgkmcnt(0)")
    for t in range(3):
        for r in range(2):
            for h in range(2):
                x = YK + t * 8 + r * 4 + 2 * h
                R_ = R4 + 8 * r + 2 * h
                k(f"v_pk_fma_f32 v[{x}:{x+1}], v[{x}:{x+1}], v[{R_}:{R_+1}], v[{R_+4}:{R_+5}]")
        for q in range(4):
            x = YK + 8 * t + 2 * q
            k(f"v_cvt_pk_bf16_f32 v{X+4*t+q}, v{x}, v{x+1}")
        k(f"buffer_store_dwordx4 v[{X+4*t}:{X+4*t+3}], v{6+t}, s[44:47], s29 offen sc1")

    def gelu_z1(t):
        ps = [(Z1 + 8 * t + 2 * q, TP + 2 * q, 64 + q) for q in range(4)]
        for q, (x, tm, p) in enumerate(ps):
            k(f"v_lshlrev_b32 v{x}, 16, v{PK+4*t+q}")
            k(f"v_and_b32 v{x+1}, 0xffff0000, v{PK+4*t+q}")
        gelu_batch(k, ps)
        for (x, tm, p) in ps:
            k(f"v_lshlrev_b32 v{x}, 16, v{p}")
            k(f"v_and_b32 v{x+1}, 0xffff0000, v{p}")

    gelu_z1(0)
    gelu_z1(1)
    k("s_waitcnt vmcnt(0)")
    k("s_barrier")
    k.stamp(8)
    gelu_z1(2)
    for q in range(4):
        k(f"v_lshlrev_b32 v{BS+2*q}, 16, v{BR+q}")
        k(f"v_and_b32 v{BS+2*q+1}, 0xffff0000, v{BR+q}")
    k("v_lshrrev_b32 v13, 1, v3")
    k("v_xor_b32 v13, v13, v9")
    k("v_lshlrev_b32 v14, 7, v3")
    k("s_lshl_b32 s24, s7, 12")
    k(f"s_add_u32 s24, s24, {DB}")
    k("v_add_u32 v14, s24, v14")
    k("v_lshl_add_u32 v15, v13, 4, v14")
    k("v_xor_b32 v13, 4, v13")
    k("v_lshl_add_u32 v16, v13, 4, v14")
    k("s_mul_i32 s24, s8, 3072")
    k(f"s_add_u32 s24, s24, {DB + 8192}")
    k("v_add_u32 v17, s24, v4")
    k("v_mov_b32 v18, v15")
    k("v_mov_b32 v19, v16")
    k("v_mov_b32 v20, v17")
    for r in range(24):
        k(f"v_mov_b32 v{ACC+r}, 0")

    def drd(S, kk):
        out = []
        for t in range(2):
            out.append(f"ds_read_b128 v[{S+4*t}:{S+4*t+3}], v{18+kk} offset:{t*2048}")
        for t in range(3):
            out.append(f"ds_read_b128 v[{S+8+4*t}:{S+11+4*t}], v20 offset:{kk*6144 + t*1024}")
        return out

    k("s_barrier")
    k.stamp(9)
    k("s_barrier")
    k.stamp(10)
    for x in drd(X, 0) + drd(Y, 1):
        k(x)
    k("s_mov_b32 s28, 0")
    k(f"s_mov_b32 s71, {STG}")
    k("v_add_u32 v18, s71, v15")
    k("v_add_u32 v19, s71, v16")
    k("v_add_u32 v20, s71, v17")
    k(".p2align 6")
    k.label("kcd_dloop")
    for par in range(2):
        cur, nxt = par * 40, (1 - par) * 40
        for (S, kk) in ((X, 0), (Y, 1)):
            k("s_waitcnt lgkmcnt(5)")
            if kk == 0:
                k("s_barrier")
            m = mf(S + cur)
            r = [[x] for x in drd(S + nxt, kk)]
            if kk == 1:
                r[0] += [f"s_add_u32 s71, s71, {STG}"]
                r[1] += [f"s_cmp_eq_u32 s71, {STG*NST}"]
                r[2] += ["s_cselect_b32 s71, 0, s71"]
                r[3] += ["v_add_u32 v18, s71, v15"]
                r[4] += ["v_add_u32 v19, s71, v16"]
                r.append(["v_add_u32 v20, s71, v17"])
            for i, x in enumerate(m):
                k(x)
                if i < len(r):
                    for y in r[i]:
                        k(y)
    k("s_add_u32 s28, s28, 2")
    k(f"s_cmp_lt_u32 s28, {NSTAGES}")
    k("s_cbranch_scc1 kcd_dloop")
    k("s_waitcnt lgkmcnt(0)")
    k.stamp(11)
    for t in range(3):
        items = [(ACC + (r * 3 + t) * 4 + 2 * h, X + 2 * r + h, 2 * r + h) for r in range(2) for h in range(2)]
        for (x, tm, q) in items:
            k(f"v_cvt_pk_bf16_f32 v{tm}, v{x}, v{x+1}")
        for (x, tm, q) in items:
            k(f"v_lshlrev_b32 v{x}, 16, v{tm}")
            k(f"v_and_b32 v{x+1}, 0xffff0000, v{tm}")
        for (x, tm, q) in items:
            k(f"v_pk_add_f32 v[{x}:{x+1}], v[{x}:{x+1}], v[{BS+2*q}:{BS+2*q+1}]")
        for (x, tm, q) in items:
            k(f"v_cvt_pk_bf16_f32 v{tm}, v{x}, v{x+1}")
        for (x, tm, q) in items:
            k(f"v_lshlrev_b32 v{x}, 16, v{tm}")
            k(f"v_and_b32 v{x+1}, 0xffff0000, v{tm}")
        for (x, tm, q) in items:
            z = Z1 + 8 * t + 2 * q
            k(f"v_pk_mul_f32 v[{x}:{x+1}], v[{x}:{x+1}], v[{z}:{z+1}]")
        for (x, tm, q) in items:
            k(f"v_cvt_pk_bf16_f32 v{Y+4*t+q}, v{x}, v{x+1}")
        for r in range(2):
            k(f"buffer_store_dwordx2 v[{Y+4*t+2*r}:{Y+4*t+2*r+1}], v21, s[{48+8*r}:{51+8*r}], 0 offen offset:{t*512} sc1")
    WR = 56
    k("s_barrier")
    k(f"v_add_u32 v5, {DB}, v4")
    k(f"v_add_u32 v6, {DB + 3*STG}, v4")
    k(f"v_add_u32 v7, {DB + 6*STG}, v4")
    k("s_cmp_eq_u32 s8, 1")
    k("s_cbranch_scc1 kcd_w1")
    for bb in range(2):
        if bb == 1:
            k("s_branch kcd_w2")
            k.label("kcd_w1")
        for t in range(2):
            for ph in range(22):
                w = (2 * bb + t) * 22 + ph
                addr = ((NSTAGES + w // 20) % NST) * STG + (w % 20) * 1024
                base, off = (5, addr) if addr < 3 * STG else ((6, addr - 3 * STG) if addr < 6 * STG else (7, addr - 6 * STG))
                r = WR + (t * 22 + ph) * 4
                k(f"ds_read_b128 v[{r}:{r+3}], v{base} offset:{off}")
    k.label("kcd_w2")
    k("v_bfe_u32 v18, v1, 2, 2")
    k("v_and_b32 v19, 3, v1")
    k("v_and_b32 v20, 1, v9")
    k("v_lshl_add_u32 v18, v20, 3, v18")
    k("v_lshrrev_b32 v20, 1, v19")
    k("v_lshl_add_u32 v18, v20, 2, v18")
    k("v_lshl_add_u32 v18, v19, 4, v18")
    k("v_lshlrev_b32 v18, 3, v18")
    k("v_lshrrev_b32 v20, 1, v9")
    k("v_lshl_add_u32 v18, v20, 9, v18")
    k(f"s_mul_i32 s24, s7, {2*22528}")
    k(f"s_add_u32 s24, s24, {DB}")
    k("v_add_u32 v18, s24, v18")
    k("v_xor_b32 v19, 32, v18")
    k("s_waitcnt vmcnt(0) lgkmcnt(0)")
    k("s_barrier")
    k("s_barrier")
    k.stamp(12)
    SETS = (24, 32, 248)
    EAC = 40

    def ureads(ph):
        S = SETS[ph % 3]
        return [f"ds_read_b64_tr_b16 v[{S+4*r+2*h}:{S+4*r+2*h+1}], v{18+h} offset:{r*22528 + ph*1024}" for r in range(2) for h in range(2)]

    for (a_, b_) in EGROUPS:
        k("s_barrier")
        for x in ureads(a_) + ureads(a_ + 1):
            k(x)
        for ph in range(a_, b_):
            nxt = ureads(ph + 2) if ph + 2 < b_ else []
            k(f"s_waitcnt lgkmcnt({4 if ph + 1 < b_ else 0})")
            S = SETS[ph % 3]
            i = 0
            for t in range(2):
                for r in range(2):
                    ac = EAC + (r * 2 + t) * 4
                    w = WR + (t * 22 + ph) * 4
                    c = "0" if ph == 0 else f"v[{ac}:{ac+3}]"
                    k(f"v_mfma_f32_16x16x32_bf16 v[{ac}:{ac+3}], v[{w}:{w+3}], v[{S+4*r}:{S+4*r+3}], {c}")
                    if i < len(nxt):
                        k(nxt[i])
                    i += 1
    items = [(EAC + (r * 2 + t) * 4 + 2 * h, 56 + 2 * ((r * 2 + t) * 2 + h), r, t, h) for r in range(2) for t in range(2) for h in range(2)]
    for (x, tm, r, t, h) in items:
        k(f"v_cvt_pk_bf16_f32 v{tm}, v{x}, v{x+1}")
    for (x, tm, r, t, h) in items:
        k(f"v_lshlrev_b32 v{x}, 16, v{tm}")
        k(f"v_and_b32 v{x+1}, 0xffff0000, v{tm}")
    for (x, tm, r, t, h) in items:
        k(f"v_pk_mul_f32 v[{x}:{x+1}], v[{x}:{x+1}], v[{GR+4*t+2*h}:{GR+4*t+2*h+1}]")
    for (x, tm, r, t, h) in items:
        k(f"v_cvt_pk_bf16_f32 v{tm}, v{x}, v{x+1}")
    for (x, tm, r, t, h) in items:
        k(f"v_lshlrev_b32 v{x}, 16, v{tm}")
        k(f"v_and_b32 v{x+1}, 0xffff0000, v{tm}")
    for (x, tm, r, t, h) in items:
        z = XR + 4 * r + 2 * t + h
        k(f"v_lshlrev_b32 v{tm}, 16, v{z}")
        k(f"v_and_b32 v{tm+1}, 0xffff0000, v{z}")
    for (x, tm, r, t, h) in items:
        k(f"v_pk_add_f32 v[{x}:{x+1}], v[{x}:{x+1}], v[{tm}:{tm+1}]")
    for (x, tm, r, t, h) in items:
        k(f"v_cvt_pk_bf16_f32 v{80+(r*2+t)*2+h}, v{x}, v{x+1}")
    for r in range(2):
        for t in range(2):
            o = 80 + (r * 2 + t) * 2
            k(f"buffer_store_dwordx2 v[{o}:{o+1}], v22, s[80:83], s{64+r} offen offset:{32*t}")
    k.label(L_end)
    k.endpgm()
    k.label("kcd_oob")
    k("s_endpgm")
    return k
```

```python
import sys, os
import gfx
gfx.PROF = bool(os.environ.get('PROF'))
gfx.DIAG = os.environ.get('DIAG')
from gfx import Module, Kernel
HEADER = open("adaLN_cond__ssm_conv_s4d__mixer_gmlp__prompt.s.ref").read().split("; Override launch")[0]
def build(path, upto=99):
    m = Module()
    import kab
    m.add(kab.kernel_AB(), kab.AB_GRID, kab.AB_BLOCK, kab.AB_LDS)
    if upto >= 2:
        import kcd
        m.add(kcd.kernel_CD(), kcd.GRID, kcd.BLOCK, kcd.LDS)
    if gfx.DIAG:
        a, b = gfx.DIAG.split(",")
        k = Kernel("diag_kernel")
        k("s_cmp_ge_u32 s2, 1")
        k("s_cbranch_scc1 diag_end")
        k("s_memrealtime s[20:21]")
        k("s_load_dwordx2 s[36:37], s[0:1], 128")
        k("s_waitcnt lgkmcnt(0)")
        k(f"s_add_u32 s36, s36, {gfx.WS_PROF}")
        k("s_addc_u32 s37, s37, 0")
        k("s_load_dwordx4 s[16:19], s[36:37], 0")
        k("s_waitcnt lgkmcnt(0)")
        k(f"s_sub_u32 s24, s{16+int(b)}, s{16+int(a)}")
        k("s_min_u32 s24, s24, 20000")
        k.label("diag_l")
        k("s_memrealtime s[22:23]")
        k("s_waitcnt lgkmcnt(0)")
        k("s_sub_u32 s25, s22, s20")
        k("s_cmp_lt_u32 s25, s24")
        k("s_cbranch_scc1 diag_l")
        k.label("diag_end")
        k("s_endpgm")
        m.add(k, 1, 64, 0)
    if os.environ.get("TWICE"):
        tw = os.environ["TWICE"]
        m.launches = [l for l in m.launches for _ in range(2 if any(("kernel=k%s_" % c) in l for c in tw.split(",")) else 1)]
    open(path, "w").write(m.text(HEADER))
if __name__ == "__main__":
    upto = int(sys.argv[1]) if len(sys.argv) > 1 else 99
    build(sys.argv[2] if len(sys.argv) > 2 else "k.s", upto)
```

```python
import re

REG_RE = re.compile(r"^(-|abs\()?\s*([vas])(\d+)\)?$")
RNG_RE = re.compile(r"^(-|abs\()?\s*([vas])\[(\d+):(\d+)\]\)?$")

TRANS = ("v_exp_f32", "v_log_f32", "v_rcp_f32", "v_rsq_f32", "v_sqrt_f32", "v_sin_f32", "v_cos_f32",
         "v_rcp_iflag_f32", "v_exp_f16", "v_rcp_f16")


def parse_regs(op):
    op = op.strip()
    if op.startswith("|") and op.endswith("|"):
        op = op[1:-1]
    if op.startswith("-|") and op.endswith("|"):
        op = op[2:-1]
    m = REG_RE.match(op)
    if m:
        return [(m.group(2), int(m.group(3)))]
    m = RNG_RE.match(op)
    if m:
        return [(m.group(2), i) for i in range(int(m.group(3)), int(m.group(4)) + 1)]
    if op == "vcc":
        return [("s", 106), ("s", 107)]
    if op == "vcc_lo":
        return [("s", 106)]
    if op == "vcc_hi":
        return [("s", 107)]
    if op == "exec":
        return [("s", 126), ("s", 127)]
    if op == "m0":
        return [("s", 124)]
    return []


def split_ops(s):
    out, depth, cur = [], 0, ""
    for ch in s:
        if ch in "[(":
            depth += 1
        if ch in "])":
            depth -= 1
        if ch == "," and depth == 0:
            out.append(cur.strip())
            cur = ""
        else:
            cur += ch
    if cur.strip():
        out.append(cur.strip())
    return out


class Ins:
    __slots__ = ("text", "mn", "ops", "mods", "rd", "wr", "kind", "label", "target", "srcc", "srcab", "passes",
                 "dpp", "states", "store_data", "sdwa_dst")

    def __init__(self, text):
        self.text = text
        self.label = None
        self.target = None
        self.rd, self.wr = [], []
        self.srcc, self.srcab = [], []
        self.passes = 0
        self.dpp = False
        self.states = 1
        self.store_data = []
        self.sdwa_dst = False
        t = text.split(";")[0].strip()
        if t.endswith(":"):
            self.label = t[:-1]
            self.kind = "label"
            self.mn = ""
            self.states = 0
            return
        if t.startswith(".") or not t:
            self.kind = "dir"
            self.mn = ""
            self.states = 0
            return
        parts = t.split(None, 1)
        mn = parts[0]
        self.mn = mn
        rest = parts[1] if len(parts) > 1 else ""
        ops = split_ops(rest)
        mods = ""
        if ops:
            last = ops[-1]
            sp = last.split(None, 1)
            if len(sp) > 1 and not last.startswith("hwreg") and not mn.startswith("s_waitcnt"):
                ops[-1] = sp[0]
                mods = sp[1]
        self.ops, self.mods = ops, mods
        R = lambda i: parse_regs(ops[i]) if i < len(ops) else []
        allr = lambda a: [r for i in range(a, len(ops)) for r in R(i)]
        if mn.startswith("v_mfma") or mn.startswith("v_smfmac"):
            self.kind = "mfma"
            self.wr = R(0)
            self.srcab = R(1) + R(2)
            self.srcc = R(3)
            self.rd = self.srcab + self.srcc
            if "32x32x16" in mn or "32x32x8" in mn:
                self.passes = 8
            elif "16x16x32" in mn or "16x16x16" in mn:
                self.passes = 4
            elif "16x16x4_f32" in mn:
                self.passes = 8
            elif "32x32x2_f32" in mn:
                self.passes = 16
            else:
                raise ValueError("unknown mfma " + mn)
        elif mn.startswith("v_"):
            self.kind = "valu"
            base = mn
            for suf in ("_e32", "_e64", "_dpp", "_sdwa"):
                if base.endswith(suf):
                    base = base[: -len(suf)]
            if "_dpp" in mn or "row_" in mods or "quad_perm" in mods or "wave_" in mods:
                self.dpp = True
            if "dst_sel:WORD" in mods or "dst_sel:BYTE" in mods:
                self.sdwa_dst = True
            if base.startswith("v_cmpx"):
                self.wr = R(0) + parse_regs("exec")
                self.rd = allr(1)
            elif base.startswith("v_cmp"):
                self.wr = R(0)
                self.rd = allr(1)
            elif base in ("v_add_co_u32", "v_sub_co_u32", "v_subrev_co_u32", "v_addc_co_u32", "v_subb_co_u32",
                          "v_mad_u64_u32", "v_div_scale_f32"):
                self.wr = R(0) + R(1)
                self.rd = allr(2)
            elif base.startswith("v_permlane"):
                self.wr = R(0) + R(1)
                self.rd = R(0) + R(1)
            elif base in ("v_fmac_f32", "v_dot2c_f32_bf16", "v_dot2c_f32_f16", "v_pk_fmac_f16", "v_writelane_b32"):
                self.wr = R(0)
                self.rd = allr(0)
            elif base == "v_nop":
                pass
            else:
                self.wr = R(0)
                self.rd = allr(1)
                if self.dpp or self.sdwa_dst:
                    self.rd = self.rd + R(0)
                if base == "v_cndmask_b32" and len(ops) == 3:
                    self.rd += parse_regs("vcc")
            self.mn = base
        elif mn.startswith("buffer_") or mn.startswith("global_") or mn.startswith("flat_"):
            self.kind = "vmem"
            islds = " lds" in (" " + mods) or "_lds_" in mn
            if mn in ("buffer_wbl2", "buffer_inv"):
                pass
            elif islds:
                self.rd = allr(0) + parse_regs("m0")
            elif "store" in mn:
                self.rd = allr(0)
                data = R(0) if mn.startswith("buffer_") else R(1)
                if len(data) >= 3:
                    self.store_data = data
            elif "atomic" in mn:
                self.rd = allr(0)
                if "sc0" in mods:
                    self.wr = R(0)
            else:
                self.wr = R(0)
                self.rd = allr(1)
                if "d16" in mn:
                    self.rd += R(0)
        elif mn.startswith("ds_"):
            self.kind = "ds"
            if mn.startswith("ds_write") or mn.startswith("ds_add") or mn.startswith("ds_max") or mn.startswith("ds_min"):
                if "_rtn" in mn:
                    self.wr = R(0)
                    self.rd = allr(1)
                else:
                    self.rd = allr(0)
            else:
                self.wr = R(0)
                self.rd = allr(1)
                if "d16" in mn:
                    self.rd += R(0)
        elif mn.startswith("s_"):
            self.kind = "salu"
            if mn == "s_nop":
                self.states = int(ops[0], 0) + 1
            elif mn.startswith("s_cbranch") or mn == "s_branch":
                self.kind = "branch"
                self.target = ops[0]
                if "vcc" in mn:
                    self.rd = parse_regs("vcc")
                if "exec" in mn:
                    self.rd = parse_regs("exec")
            elif mn == "s_endpgm":
                self.kind = "end"
            elif mn.startswith("s_cmp") or mn.startswith("s_bitcmp") or mn in ("s_waitcnt", "s_barrier", "s_setprio", "s_sleep"):
                self.rd = allr(0)
            elif mn.startswith("s_load") or mn.startswith("s_buffer_load") or mn in ("s_memtime", "s_memrealtime"):
                self.kind = "smem"
                self.wr = R(0)
                self.rd = allr(1)
            elif "saveexec" in mn:
                self.wr = R(0) + parse_regs("exec")
                self.rd = allr(1) + parse_regs("exec")
            else:
                self.wr = R(0)
                self.rd = allr(1)
                if mn in ("s_addk_i32", "s_mulk_i32"):
                    self.rd += R(0)
        else:
            raise ValueError("cannot parse: " + text)


XDL_RAW = {2: 5, 4: 8, 8: 12, 16: 20}
XDL_OVL = {2: 4, 4: 6, 8: 10, 16: 18}
XDL_WAR = {2: 1, 4: 3, 8: 7, 16: 15}


def va(regs):
    return set(r for r in regs if r[0] in "va")


def sg(regs):
    return set(r for r in regs if r[0] == "s")


def required(p, c):
    need = 0
    pw_v, pw_s = va(p.wr), sg(p.wr)
    if p.kind == "valu":
        if c.kind == "mfma" and pw_v & va(c.rd):
            need = max(need, 2)
        if c.kind == "valu":
            if c.dpp and pw_v & va(c.rd):
                need = max(need, 2)
            if c.mn.startswith("v_permlane") and pw_v & va(c.rd):
                need = max(need, 2)
            if c.mn in ("v_readlane_b32", "v_readfirstlane_b32") and pw_v & va(c.rd):
                need = max(need, 1)
            if p.mn in TRANS and c.mn not in TRANS and pw_v & va(c.rd):
                need = max(need, 1)
            if p.mn in TRANS and pw_v & va(c.rd):
                need = max(need, 1)
            if p.sdwa_dst and pw_v & (va(c.rd) | va(c.wr)):
                need = max(need, 1)
            if pw_s & sg(c.rd):
                need = max(need, 4 if c.mn in ("v_readlane_b32", "v_writelane_b32", "v_div_fmas_f32") else 2)
            if (("s", 126) in pw_s):
                if c.dpp:
                    need = max(need, 5)
                if c.mn.startswith("v_permlane") or c.mn in ("v_readlane_b32", "v_readfirstlane_b32", "v_writelane_b32"):
                    need = max(need, 4)
            if p.mn.startswith("v_dot") and pw_v & (va(c.rd) | va(c.wr)):
                same = (c.mn == p.mn)
                if same and not (pw_v & va(parse_regs(c.ops[1]) + parse_regs(c.ops[2]))):
                    pass
                else:
                    need = max(need, 3)
        if p.mn.startswith("v_dot") and c.kind in ("mfma", "vmem", "ds") and pw_v & (va(c.rd) | va(c.wr)):
            need = max(need, 3)
        if p.mn in TRANS and c.kind in ("vmem", "ds", "mfma") and pw_v & va(c.rd):
            need = max(need, 2 if c.kind == "mfma" else 1)
        if c.kind == "vmem" and pw_s & sg(c.rd):
            need = max(need, 5)
        if c.kind in ("salu", "smem", "branch") and pw_s & sg(c.rd):
            need = max(need, 5 if c.kind == "branch" else 2)
        if c.kind == "mfma" and (("s", 126) in pw_s):
            need = max(need, 4)
    if p.kind == "salu":
        if ("s", 124) in pw_s and c.kind in ("vmem", "ds") and ("s", 124) in sg(c.rd):
            need = max(need, 1)
    if p.kind == "mfma":
        d = va(p.wr)
        if c.kind == "mfma":
            if d & va(c.srcab):
                need = max(need, XDL_RAW[p.passes])
            cc = va(c.srcc)
            if d & cc:
                if c.srcc == p.wr and c.passes == p.passes:
                    need = max(need, 2 if p.passes == 2 else 0)
                else:
                    need = max(need, XDL_OVL[p.passes])
            elif d & va(c.wr):
                need = max(need, XDL_OVL[p.passes])
        elif c.kind in ("valu", "vmem", "ds"):
            if d & (va(c.rd) | va(c.wr)):
                need = max(need, XDL_RAW[p.passes])
            if c.kind == "valu" and va(p.srcc) & va(c.wr):
                need = max(need, XDL_WAR[p.passes])
    if p.kind == "vmem" and p.store_data:
        if set(p.store_data) & va(c.wr):
            need = max(need, 2 if c.kind == "valu" else 1)
    if p.kind == "ds" and p.mn in ("ds_write_b128", "ds_write_b96", "ds_write2_b64"):
        if c.kind == "valu" and va(p.rd) & va(c.wr):
            need = max(need, 1)
    return need


MAXD = 20


PROF = False
DIAG = None
WS_PROF = 0x2000000


class Kernel:
    def __init__(self, name, kid=0, pv=None):
        self.name = name
        self.ins = []
        self.nlab = 0
        self.kid = kid
        self.pv = pv

    def stamp(self, idx, real=False):
        if not PROF:
            return
        self("s_memrealtime s[100:101]" if real else "s_memtime s[100:101]")
        self("s_waitcnt lgkmcnt(0)")
        self(f"v_writelane_b32 v{self.pv}, s100, {idx}")

    def start(self):
        if DIAG:
            self("s_memrealtime s[100:101]")
        if PROF:
            self(f"v_mov_b32 v{self.pv}, 0")
        self.stamp(0, True)
        self.stamp(1)
        if PROF:
            self(f"v_readfirstlane_b32 s101, v0")
            self(f"v_writelane_b32 v{self.pv}, s101, 13")

    def restamp(self, kid, pv):
        if PROF:
            self._flush_prof(False)
            old = self.pv
            self(f"v_readlane_b32 s101, v{old}, 13")
            self(f"v_mov_b32 v{pv}, 0")
            self(f"v_writelane_b32 v{pv}, s101, 13")
            self.kid, self.pv = kid, pv
            self.stamp(0, True)
            self.stamp(1)

    def _flush_prof(self, wait):
        self("s_mov_b64 exec, -1")
        if wait:
            self("s_waitcnt vmcnt(0)")
        self.stamp(14)
        self.stamp(15, True)
        self.srd(96, 36, 0x1000000, WS_PROF)
        self(f"v_readlane_b32 s100, v{self.pv}, 13")
        self("s_lshr_b32 s100, s100, 6")
        self(f"s_lshl_b32 s101, s2, 3")
        self("s_add_u32 s100, s100, s101")
        self(f"s_add_u32 s100, s100, {self.kid*8192}")
        self("s_lshl_b32 s100, s100, 6")
        self("v_mbcnt_lo_u32_b32 v0, -1, 0")
        self("v_mbcnt_hi_u32_b32 v0, -1, v0")
        self("v_lshlrev_b32 v0, 2, v0")
        self("s_mov_b64 exec, 0xffff")
        self(f"buffer_store_dword v{self.pv}, v0, s[96:99], s100 offen")
        self("s_mov_b64 exec, -1")

    def code_prefetch(self, vt, st, nwaves):
        self(f"s_getpc_b64 s[{st}:{st+1}]")
        self.label(f"{self.name}_pc")
        self(f"s_lshr_b32 s{st+2}, s2, 3")
        self(f"s_mul_i32 s{st+2}, s{st+2}, {nwaves*1024}")
        self(f"v_lshl_add_u32 v{vt}, v0, 4, s{st+2}")
        self(f"s_mov_b32 s{st+3}, all_code_end-{self.name}_pc-16")
        self(f"v_cmp_gt_u32 vcc, s{st+3}, v{vt}")
        self(f"v_min_u32 v{vt}, s{st+3}, v{vt}")
        self(f"s_cbranch_vccz {self.name}_npf")
        self(f"v_and_b32 v{vt}, -4, v{vt}")
        self(f"v_mov_b32 v{vt+1}, s{st+1}")
        self(f"v_add_co_u32 v{vt}, vcc, s{st}, v{vt}")
        self(f"v_addc_co_u32 v{vt+1}, vcc, 0, v{vt+1}, vcc")
        self(f"global_load_dwordx4 v[{vt+2}:{vt+5}], v[{vt}:{vt+1}], off")
        self.label(f"{self.name}_npf")

    def endpgm(self):
        if DIAG:
            L = self.newlabel("dg")
            self("s_cmp_lg_u32 s2, 0")
            self(f"s_cbranch_scc1 {L}")
            self("s_mov_b64 exec, 1")
            self.srd(96, 36, 4096, WS_PROF)
            self("v_mov_b32 v0, s100")
            self(f"v_mov_b32 v1, {self.kid*4}")
            self("buffer_store_dword v0, v1, s[96:99], 0 offen")
            self.label(L)
        if PROF:
            self._flush_prof(True)
        self("s_endpgm")

    def __call__(self, s):
        for l in s.strip("\n").split("\n"):
            l = l.strip()
            if l and not l.startswith(";"):
                self.ins.append(Ins(l))

    def label(self, name):
        self.ins.append(Ins(name + ":"))

    def newlabel(self, base="L"):
        self.nlab += 1
        return f"{self.name}_{base}{self.nlab}"

    def srd(self, d, base, nbytes, off=0):
        if off:
            self(f"s_add_u32 s{d}, s{base}, {off}")
            self(f"s_addc_u32 s{d+1}, s{base+1}, 0")
            self(f"s_and_b32 s{d+1}, s{d+1}, 0xffff")
        else:
            self(f"s_mov_b32 s{d}, s{base}")
            self(f"s_and_b32 s{d+1}, s{base+1}, 0xffff")
        self(f"s_mov_b32 s{d+2}, {nbytes}")
        self(f"s_mov_b32 s{d+3}, 0x00020000")

    def fix_hazards(self):
        total = 0
        while True:
            ins = self.ins
            labpos = {x.label: i for i, x in enumerate(ins) if x.label}
            srcs = {}
            for i, x in enumerate(ins):
                if x.kind == "branch":
                    srcs.setdefault(labpos[x.target], []).append(i)
            inserted = False
            for i, c in enumerate(ins):
                if c.kind in ("label", "dir"):
                    continue
                worst = 0
                stack = [(i - 1, 0)]
                seen = set()
                while stack:
                    j, dist = stack.pop()
                    while j >= 0 and dist < MAXD:
                        if (j, dist) in seen:
                            break
                        seen.add((j, dist))
                        p = ins[j]
                        if p.kind == "label":
                            for sidx in srcs.get(j, []):
                                stack.append((sidx, dist))
                            j -= 1
                            continue
                        if p.kind == "dir":
                            j -= 1
                            continue
                        if p.kind == "end" or (p.kind == "branch" and p.mn == "s_branch" and False):
                            break
                        need = required(p, c)
                        if need > dist:
                            worst = max(worst, need - dist)
                        dist += p.states
                        if j - 1 >= 0 and ins[j].kind == "label":
                            pass
                        j -= 1
                if worst:
                    n = worst
                    pads = []
                    while n > 0:
                        k = min(n, 16)
                        pads.append(Ins(f"s_nop {k-1}"))
                        n -= k
                    self.ins[i:i] = pads
                    total += worst
                    inserted = True
                    break
            if not inserted:
                break
        return total

    def fix_hazards_fast(self):
        total = 0
        i = 0
        while i < len(self.ins):
            ins = self.ins
            c = ins[i]
            if c.kind in ("label", "dir"):
                i += 1
                continue
            worst = self._worst(i)
            if worst:
                n = worst
                pads = []
                while n > 0:
                    k = min(n, 16)
                    pads.append(Ins(f"s_nop {k-1}"))
                    n -= k
                self.ins[i:i] = pads
                self._lab = None
                total += worst
                i += len(pads)
            i += 1
        return total

    _lab = None

    def _worst(self, i):
        ins = self.ins
        if self._lab is None:
            labpos = {x.label: k for k, x in enumerate(ins) if x.label}
            srcs = {}
            for k, x in enumerate(ins):
                if x.kind == "branch":
                    srcs.setdefault(labpos[x.target], []).append(k)
            self._lab = srcs
        srcs = self._lab
        c = ins[i]
        worst = 0
        stack = [(i - 1, 0, True)]
        seen = set()
        while stack:
            j, dist, fall = stack.pop()
            while j >= 0 and dist < MAXD:
                if (j, dist) in seen:
                    break
                seen.add((j, dist))
                p = ins[j]
                if p.kind == "label":
                    for sidx in srcs.get(j, []):
                        stack.append((sidx, dist, False))
                    j -= 1
                    fall = True
                    continue
                if p.kind == "dir":
                    j -= 1
                    continue
                if p.kind == "end":
                    break
                if p.kind == "branch" and p.mn == "s_branch" and fall:
                    break
                need = required(p, c)
                if need > dist:
                    worst = max(worst, need - dist)
                dist += p.states
                j -= 1
                fall = True
        return worst

    def maxregs(self):
        mv = ma = ms = -1
        for x in self.ins:
            for (k, i) in x.rd + x.wr:
                if k == "v":
                    mv = max(mv, i)
                elif k == "a":
                    ma = max(ma, i)
                elif k == "s" and i < 102:
                    ms = max(ms, i)
        return mv + 1, ma + 1, ms + 1


class Module:
    def __init__(self):
        self.kernels = []
        self.launches = []

    def add(self, k, grid, block, lds, min_vgpr=0):
        self.kernels.append((k, min_vgpr))
        self.launches.append(
            f"; @launch kernel={k.name} grid=({grid},1,1) block=({block},1,1) lds={lds}")

    def add_single(self, k, grid, block, lds):
        self.kernels.append((k, 0))
        self.launches.append(f"; @launch grid=({grid},1,1) block=({block},1,1) lds={lds}")

    def relaunch(self, k, grid, block, lds):
        self.launches.append(
            f"; @launch kernel={k.name} grid=({grid},1,1) block=({block},1,1) lds={lds}")

    def text(self, header=""):
        out = []
        if header:
            out.append(header.rstrip("\n"))
        out += self.launches
        out.append('.amdgcn_target "amdgcn-amd-amdhsa--gfx950"')
        out.append(".text")
        info = []
        for (k, minv) in self.kernels:
            n = k.fix_hazards_fast()
            n += k.fix_hazards_fast()
            out += [f".globl {k.name}", ".p2align 8", f".type {k.name},@function", f"{k.name}:"]
            for x in k.ins:
                out.append(x.text if x.kind == "label" else "    " + x.text)
            nv, na, ns = k.maxregs()
            nv = max(nv, minv, 4)
            acc = (nv + 3) // 4 * 4
            tot = acc + na if na > 0 else nv
            info.append((k.name, tot, max(ns, 8), min(acc, 256)))
            nsel = 0
            for x in k.ins:
                if x.kind == "valu" and x.mn.startswith("v_pk_") and x.mn.endswith("_f32"):
                    m_ = re.search(r"op_sel:\[([01,]+)\]", x.mods)
                    if m_:
                        for i_, b_ in enumerate(m_.group(1).split(",")):
                            if b_ == "1" and x.ops[1 + i_].startswith("v"):
                                nsel += 1
            if nsel:
                print(f"   WARNING {k.name}: {nsel} pk ops with op_sel=1 on a VGPR source")
            print(f"{k.name}: {len(k.ins)} instrs, vgpr {nv} agpr {na} sgpr {ns}, nop states inserted {n}")
        out.append("all_code_end:")
        out.append('.section .rodata,"a"')
        for (name, tot, ns, acc) in info:
            out += [".p2align 6", f".amdhsa_kernel {name}",
                    f"  .amdhsa_next_free_vgpr {tot}",
                    f"  .amdhsa_next_free_sgpr {ns}",
                    f"  .amdhsa_accum_offset {acc}",
                    "  .amdhsa_group_segment_fixed_size 0",
                    "  .amdhsa_kernarg_size 136",
                    "  .amdhsa_user_sgpr_count 2",
                    "  .amdhsa_user_sgpr_kernarg_segment_ptr 1",
                    "  .amdhsa_system_sgpr_workgroup_id_x 1",
                    "  .amdhsa_float_denorm_mode_32 3",
                    ".end_amdhsa_kernel"]
        return "\n".join(out) + "\n"
```

```python
from gfx import Kernel
from layout import *
from common import *
import os

AB_GRID = 256
AB_BLOCK = 512
CNT = 0
PAR = 64
KB = 128
HB = KB + 2 * KR_CH
XB = HB + 9216
RB = XB + 8192
REC = RB
T16 = RB + 12288
PT = RB + 16384
PTS = 3136
SJ = PT + 8 * PTS
AB_LDS = SJ
PF1 = int(os.environ.get('PF1', 32))
C_K1, C_K2, C_A, C_R, C_W, C_L, C_G, C_P, C_W2, C_X = 0, 4, 8, 12, 20, 24, 28, 32, 36, 40
LNP = SJ
SPIN = 0x100000
NTPF = int(os.environ.get('NTPF', 0))
NBAR = 1
RAW = 96
OUTR = 192
SBR, CBR = 176, 184
XCOL_FLAGS = os.environ.get("XCOL_FLAGS", "")


def lds_signal(k, addr_v, one_v):
    k("s_waitcnt lgkmcnt(0)")
    k("s_mov_b64 exec, 1")
    k(f"ds_add_u32 v{addr_v}, v{one_v}")
    k("s_mov_b64 exec, -1")


def lds_wait(k, addr_v, tmp_v, target, st="s90"):
    L = k.newlabel("w")
    k.label(L)
    k(f"ds_read_b32 v{tmp_v}, v{addr_v}")
    k("s_waitcnt lgkmcnt(0)")
    k(f"v_readfirstlane_b32 {st}, v{tmp_v}")
    k(f"s_cmp_lt_u32 {st}, {target}")
    k(f"s_cbranch_scc1 {L}")


def gpoll(k, name, b, sleep=2):
    k("s_mov_b32 s56, 0")
    k(f"s_mov_b32 s91, {b*16384}")
    k.label(name)
    k(f"s_sleep {sleep}")
    k("buffer_load_dword v87, v89, s[40:43], s91 offen sc1")
    k("s_add_u32 s56, s56, 1")
    k("s_waitcnt vmcnt(0)")
    k("v_cmp_gt_u32 vcc, 16, v87")
    k(f"s_cbranch_vccz {name}_ok")
    k(f"s_cmp_lt_u32 s56, {SPIN}")
    k(f"s_cbranch_scc1 {name}")
    k.label(name + "_ok")


GBL = 155648
STA = PT


def emit_AB(k, cg_emit):
    L_end = "kab_end"
    k(f"s_cmp_ge_u32 s2, {AB_GRID}")
    k("s_cbranch_scc1 kab_oob")
    k.start()
    k("s_load_dwordx16 s[64:79], s[0:1], 0")
    k("s_load_dwordx8 s[80:87], s[0:1], 64")
    k("s_load_dwordx4 s[92:95], s[0:1], 96")
    k("s_load_dwordx4 s[32:35], s[0:1], 120")
    if not os.environ.get("NOCPF"):
        k.code_prefetch(240, 12, 8)
    k("v_and_b32 v1, 63, v0")
    k("v_lshrrev_b32 v2, 6, v0")
    k("v_readfirstlane_b32 s11, v2")
    k("s_and_b32 s4, s2, 7")
    k("s_lshl_b32 s4, s4, 5")
    k("s_lshr_b32 s5, s2, 3")
    k("s_add_u32 s4, s4, s5")
    k("s_and_b32 s3, s11, 3")
    k("s_lshr_b32 s88, s4, 1")
    k("s_lshl_b32 s88, s88, 2")
    k("s_and_b32 s89, s4, 1")
    k("s_add_u32 s88, s88, s89")
    k("v_lshlrev_b32 v3, 4, v1")
    k("v_mov_b32 v248, 1")
    k("s_cmp_ge_u32 s11, 4")
    k("s_cbranch_scc1 kab_h")

    k("v_and_b32 v4, 31, v0")
    k("v_bfe_u32 v5, v0, 5, 1")
    k("v_lshl_add_u32 v4, v2, 5, v4")
    k("v_lshlrev_b32 v4, 1, v4")
    k("v_lshl_add_u32 v4, v5, 9, v4")
    k("s_lshl_b32 s54, s88, 8")
    k("s_lshl_b32 s55, s88, 1")
    k("v_lshlrev_b32 v29, 2, v5")
    k("v_mov_b32 v110, 0")
    k("s_waitcnt lgkmcnt(0)")
    k.stamp(6)
    k("s_mov_b64 s[36:37], s[34:35]")
    k.srd(12, 74, 1024)
    k("buffer_load_ushort v10, v29, s[12:15], s55 offen")
    k.srd(16, 66, 131072)
    k("buffer_load_ushort v11, v4, s[16:19], s54 offen nt")
    k.srd(20, 68, 131072)
    k("buffer_load_ushort v12, v4, s[20:23], s54 offen nt")
    k.srd(24, 70, 131072)
    k("buffer_load_ushort v13, v4, s[24:27], s54 offen nt")
    k.srd(28, 72, 131072)
    k("buffer_load_ushort v14, v4, s[28:31], s54 offen nt")
    k.srd(12, 76, 1024)
    k("buffer_load_ushort v111, v29, s[12:15], s55 offen")
    k("s_barrier")
    k("v_and_b32 v6, 15, v1")
    k("v_lshrrev_b32 v7, 4, v1")
    k("v_lshrrev_b32 v8, 3, v6")
    k("v_and_b32 v9, 7, v6")
    k("v_lshl_add_u32 v8, v8, 7, v9")
    k("v_add_u32 v8, 1, v8")
    k("v_cvt_f32_u32 v20, v8")
    k("v_lshrrev_b32 v8, 2, v6")
    k("v_and_b32 v15, 3, v6")
    k("v_lshlrev_b32 v15, 1, v15")
    k("v_lshl_add_u32 v8, v8, 7, v15")
    k("v_add_u32 v8, 258, v8")
    k("v_lshrrev_b32 v15, 1, v9")
    k("v_and_b32 v16, 1, v6")
    k("v_lshlrev_b32 v16, 2, v16")
    k("v_lshl_add_u32 v15, v15, 7, v16")
    k("v_add_u32 v15, 516, v15")
    k("v_cmp_gt_u32 vcc, 8, v6")
    k("v_cndmask_b32 v8, v15, v8, vcc")
    k("v_cvt_f32_u32 v42, v8")
    k("v_lshlrev_b32 v8, 3, v6")
    k("v_cvt_f32_u32 v22, v8")
    k(f"v_mul_u32_u24 v24, {PTS}, v2")
    k(f"v_add_u32 v24, {PT}, v24")
    k("v_lshrrev_b32 v8, 1, v7")
    k("v_and_b32 v9, 1, v7")
    k("v_lshlrev_b32 v15, 7, v8")
    k("v_lshl_add_u32 v15, v9, 2, v15")
    k("v_lshl_add_u32 v15, v6, 3, v15")
    k("v_add_u32 v15, 4, v15")
    k("v_lshl_add_u32 v25, v15, 2, v24")
    k("v_lshl_add_u32 v15, v8, 4, v6")
    k("v_add_u32 v15, 516, v15")
    k("v_add_u32 v16, 660, v6")
    k("v_cmp_eq_u32 vcc, 1, v9")
    k("v_cndmask_b32 v15, v16, v15, vcc")
    k("v_lshl_add_u32 v28, v15, 2, v24")
    k("v_lshlrev_b32 v8, 6, v7")
    k("v_add_u32 v8, 260, v8")
    k("v_lshl_add_u32 v9, v6, 2, v8")
    k("v_lshl_add_u32 v15, v6, 1, v8")
    k("v_cmp_gt_u32 vcc, 2, v7")
    k("v_cndmask_b32 v8, v15, v9, vcc")
    k("v_lshl_add_u32 v26, v8, 2, v24")
    k("v_mov_b32 v9, 128")
    k("v_cndmask_b32 v9, v9, 8, vcc")
    k("v_add_u32 v27, v26, v9")
    k("v_add_u32 v8, 2, v7")
    k("v_lshl_add_u32 v9, v7, 1, 1")
    k("v_cndmask_b32 v8, v9, v8, vcc")
    k("v_lshl_add_u32 v8, v8, 4, v6")
    k("v_add_u32 v8, 516, v8")
    k("v_lshl_add_u32 v17, v8, 2, v24")
    k("v_lshl_add_u32 v8, v7, 5, v6")
    k("v_add_u32 v8, 516, v8")
    k("v_cndmask_b32 v8, v8, v16, vcc")
    k("v_lshl_add_u32 v18, v8, 2, v24")
    k(f"v_mul_u32_u24 v19, {4*PTS}, v5")
    k("v_add3_u32 v19, v19, v24, 12")
    k("v_lshlrev_b32 v8, 3, v0")
    k("v_sub_u32 v8, 2047, v8")
    k("s_movk_i32 s44, 0x80")
    k(f"s_mov_b32 s45, {17024}")
    for e in range(9):
        g = 30 + e
        if e:
            k("v_subrev_u32 v8, 1, v8")
        if e == 8:
            k("v_max_i32 v8, 0, v8")
        k("v_cvt_f32_u32 v9, v8")
        k("v_cvt_pk_bf16_f32 v9, v9, v9")
        k("v_lshrrev_b32 v9, 16, v9")
        k("v_subrev_u32 v9, s45, v9")
        k("v_med3_i32 v9, v9, v8, s44")
        k(f"v_lshlrev_b32 v{g}, 1, v9")
    k(f"s_mov_b32 s46, {f32(LOG2E_HI)}")
    k(f"s_mov_b32 s47, {f32(LOG2E_LO)}")
    k(f"s_mov_b32 s48, {f32(-LOG2E)}")
    k(f"s_mov_b32 s49, {f32(1.0/(2*math.pi))}")
    k(f"s_mov_b32 s58, {f32(1024.0)}")
    k("v_mul_u32_u24 v8, 3072, v2")
    k(f"v_add_u32 v8, {REC}, v8")
    k("v_mad_u32_u24 v40, v1, 48, v8")
    k("v_mul_u32_u24 v41, 384, v7")
    k("v_add_u32 v41, v41, v8")
    k.stamp(7)
    k("s_waitcnt vmcnt(5)")
    k("v_lshlrev_b32 v10, 16, v10")
    exp_precise(k, "v10", "v10", "v15", "v16", "s46", "s47")
    round_bf16(k, "v10", "v10")
    k("s_waitcnt vmcnt(4)")
    k("v_lshlrev_b32 v11, 16, v11")
    exp_precise(k, "v11", "v11", "v15", "v16", "s46", "s47")
    round_bf16(k, "v11", "v11")
    k("v_mul_f32 v11, v11, v10")
    k("v_mul_f32 v44, s48, v11")
    k("s_waitcnt vmcnt(3)")
    k("v_lshlrev_b32 v12, 16, v12")
    k("v_mul_f32 v12, v12, v10")
    k("v_mul_f32 v45, s49, v12")
    k("v_pk_mul_f32 v[52:53], v[44:45], s[58:59] op_sel_hi:[1,0]")
    k("v_fract_f32 v53, v53")
    k("v_exp_f32 v52, v52")
    k("v_cos_f32 v54, v53")
    k("v_sin_f32 v55, v53")
    k("v_pk_mul_f32 v[54:55], v[54:55], v[52:53] op_sel_hi:[1,0]")
    k("s_waitcnt vmcnt(0)")
    k.stamp(2)
    k("v_lshlrev_b32 v13, 16, v13")
    k("v_lshlrev_b32 v14, 16, v14")
    k("v_max_f32 v15, abs(v13), abs(v14)")
    k("v_add_f32_dpp v16, v13, v13 row_ror:8 row_mask:0xf bank_mask:0xf")
    for rot in (8, 4, 2, 1):
        k(f"v_max_f32_dpp v15, v15, v15 row_ror:{rot} row_mask:0xf bank_mask:0xf")
        if rot != 8:
            k(f"v_add_f32_dpp v16, v16, v16 row_ror:{rot} row_mask:0xf bank_mask:0xf")
    k("v_mov_b32 v8, v15")
    k("v_mov_b32 v9, v16")
    k("v_permlane16_swap_b32 v8, v15")
    k("v_permlane16_swap_b32 v9, v16")
    k("v_max_f32 v15, v15, v8")
    k("v_add_f32 v16, v16, v9")
    k("v_and_b32 v15, 0x7f800000, v15")
    k("v_max_u32 v15, 0x00800000, v15")
    k("v_min_u32 v15, 0x7e800000, v15")
    k("v_sub_u32 v8, 0x7f000000, v15")
    k("v_mul_f32 v46, v8, v13")
    k("v_mul_f32 v47, -v8, v14")
    k("v_add_f32 v10, v10, v10")
    k("v_mul_f32 v16, v16, v10")
    k("v_mul_f32 v15, v15, v10")
    k("v_mov_b32 v48, v47")
    k("v_sub_f32 v49, 0, v46")
    k("v_mul_f32 v50, v54, v46")
    k("v_fma_f32 v50, v55, v47, v50")
    k("v_mul_f32 v51, v54, v47")
    k("v_fma_f32 v51, -v55, v46, v51")
    k("v_mov_b32 v52, v51")
    k("v_sub_f32 v53, 0, v50")
    k("ds_write_b128 v40, v[44:47]")
    k("ds_write_b128 v40, v[48:51] offset:16")
    k("ds_write_b64 v40, v[52:53] offset:32")
    k("s_mov_b32 exec_lo, 1")
    k("s_mov_b32 exec_hi, 1")
    k("ds_write_b32 v19, v16")
    k("s_mov_b64 exec, -1")
    k("v_readlane_b32 s50, v15, 0")
    k("v_readlane_b32 s52, v15, 32")
    k.stamp(8)
    if NTPF:
        k.srd(28, 82, 2048 * 4096)
        k("s_lshl_b32 s60, s4, 15")
        k("s_lshl_b32 s61, s3, 7")
        k("s_add_u32 s60, s60, s61")
        k("s_mov_b32 s61, s60")
        k("v_lshrrev_b32 v112, 3, v1")
        k("v_lshlrev_b32 v112, 12, v112")
        k("v_and_b32 v113, 7, v1")
        k("v_lshl_add_u32 v112, v113, 4, v112")
    k("s_mov_b32 s53, 0")
    k("s_waitcnt lgkmcnt(0)")
    D0, PR, FR = 48, 128, 88
    TA_ = (104, 106, 108)
    TC_ = (120, 122, 124, 126)
    UP = (20, 42, 22)
    k.label("kab_kloop")
    for c in range(4):
        k(f"ds_read_b128 v[{PR+c*10}:{PR+c*10+3}], v41 offset:{c*48}")
        k(f"ds_read_b128 v[{PR+c*10+4}:{PR+c*10+7}], v41 offset:{c*48+16}")
        k(f"ds_read_b64 v[{PR+c*10+8}:{PR+c*10+9}], v41 offset:{c*48+32}")
    k("s_bitcmp1_b32 s53, 0")
    k("s_cbranch_scc1 kab_knz")
    for r in range(16):
        k(f"v_mov_b32 v{D0+r}, 0")
    k.label("kab_knz")
    for c in range(4):
        k(f"s_waitcnt lgkmcnt({9-3*c})")
        p = PR + c * 10
        for Ti in range(3):
            t = TA_[Ti]
            k(f"v_pk_mul_f32 v[{t}:{t+1}], v[{p}:{p+1}], v[{UP[Ti]}:{UP[Ti]+1}] op_sel_hi:[1,0]")
        for Ti in range(3):
            t = TA_[Ti]
            k(f"v_fract_f32 v{t+1}, v{t+1}")
            k(f"v_exp_f32 v{t}, v{t}")
        for Ti in range(3):
            k(f"v_cos_f32 v{TC_[Ti]}, v{TA_[Ti]+1}")
            k(f"v_sin_f32 v{TC_[Ti]+1 if Ti < 2 else TC_[3]}, v{TA_[Ti]+1}")
        for Ti in range(2):
            t, q = TA_[Ti], TC_[Ti]
            k(f"v_pk_mul_f32 v[{q}:{q+1}], v[{q}:{q+1}], v[{t}:{t+1}] op_sel_hi:[1,0]")
        k(f"v_mul_f32 v{TC_[2]}, v{TC_[2]}, v{TA_[2]}")
        k(f"v_mul_f32 v{TC_[3]}, v{TC_[3]}, v{TA_[2]}")
        for Ti in range(2):
            k(f"v_cvt_pk_f16_f32 v{FR+Ti*4+c}, v{TC_[Ti]}, v{TC_[Ti]+1}")
        for y in range(2):
            t = TA_[y]
            cc = p + 2 + 4 * y
            k(f"v_pk_mul_f32 v[{t}:{t+1}], v[{cc}:{cc+1}], v[{TC_[2]}:{TC_[2]+1}] op_sel_hi:[1,0]")
        for y in range(2):
            t = TA_[y]
            cc = p + 4 + 4 * y
            k(f"v_pk_fma_f32 v[{t}:{t+1}], v[{cc}:{cc+1}], v[{TC_[3]}:{TC_[3]+1}], v[{t}:{t+1}] op_sel_hi:[1,0,1]")
        for y in range(2):
            k(f"v_cvt_pk_f16_f32 v{FR+8+4*y+c}, v{TA_[y]}, v{TA_[y]+1}")
    for y in range(2):
        for x in range(2):
            d = D0 + (y * 2 + x) * 4
            k(f"v_mfma_f32_16x16x32_f16 v[{d}:{d+3}], v[{FR+4*x}:{FR+4*x+3}], v[{FR+8+4*y}:{FR+11+4*y}], v[{d}:{d+3}]")
    k("v_add_u32 v41, 192, v41")
    k("s_bitcmp1_b32 s53, 0")
    k("s_cbranch_scc0 kab_knf")
    for r in range(D0, D0 + 8, 2):
        k(f"v_pk_mul_f32 v[{r}:{r+1}], v[{r}:{r+1}], s[50:51] op_sel_hi:[1,0]")
    for r in (D0 + 11, D0 + 13, D0 + 15):
        k(f"v_mul_f32 v{r}, s50, v{r}")
    k(f"ds_write_b128 v25, v[{D0}:{D0+3}]")
    k(f"ds_write_b64 v26, v[{D0+4}:{D0+5}]")
    k(f"ds_write_b64 v27, v[{D0+6}:{D0+7}]")
    k(f"ds_write_b32 v28, v{D0+11}")
    k(f"ds_write_b32 v18, v{D0+13}")
    k(f"ds_write_b32 v17, v{D0+15}")
    for r in (25, 26, 27, 28, 17, 18):
        k(f"v_add_u32 v{r}, {4*PTS}, v{r}")
    k(f"v_add_u32 v41, {1536-384}, v41")
    k("s_mov_b32 s50, s52")
    k("s_waitcnt lgkmcnt(0)")
    k.label("kab_knf")
    if NTPF:
        k("s_waitcnt vmcnt(0)")
        for i in range(2):
            k(f"buffer_load_dwordx4 v[116:119], v112, s[28:31], s61 offen offset:{i*512}")
        for i in range(2):
            k(f"buffer_load_dwordx4 v[116:119], v112, s[28:31], s60 offen offset:{i*512} nt")
        k("s_mov_b32 s61, s60")
        k("s_add_u32 s60, s60, 1024")
    k("s_add_u32 s53, s53, 1")
    k("s_cmp_lt_u32 s53, 4")
    k("s_cbranch_scc1 kab_kloop")
    k.stamp(3)
    k(f"v_mov_b32 v10, {C_K1}")
    lds_signal(k, 10, 248)
    k("v_lshlrev_b32 v8, 2, v0")
    k("v_lshlrev_b32 v9, 1, v0")
    lds_wait(k, 10, 11, 4)
    k.stamp(4)
    for c in range(2):
        for e in range(3):
            for w in range(4):
                k(f"ds_read_b32 v{48+c*12+e*4+w}, v8 offset:{PT+12+(c*4+w)*PTS+e*1024}") if PT + 12 + (c*4+w)*PTS + e*1024 < 65536 else \
                    k(f"ds_read_b32 v{48+c*12+e*4+w}, v12 offset:{PT+12+(c*4+w)*PTS+e*1024-32768}")
        if c == 0:
            k("v_add_u32 v12, 32768, v8")
            k("s_waitcnt lgkmcnt(3)")
    for c in range(2):
        k(f"s_waitcnt lgkmcnt({12 if c == 0 else 3})")
        for e in range(3):
            b = 48 + c * 12 + e * 4
            k(f"v_add_f32 v{b}, v{b}, v{b+1}")
            k(f"v_add_f32 v{b+2}, v{b+2}, v{b+3}")
        for e in range(3):
            b = 48 + c * 12 + e * 4
            k(f"v_add_f32 v{b}, v{b}, v{b+2}")
        for e in range(3):
            b = 48 + c * 12 + e * 4
            k(f"v_cvt_pk_bf16_f32 v{b}, v{b}, v{b}")
        for e in range(3):
            k(f"ds_write_b16 v9, v{48+c*12+e*4} offset:{T16+c*1536+e*512}")
    k(f"v_mov_b32 v10, {C_K2}")
    lds_signal(k, 10, 248)
    k("s_lshr_b32 s40, s3, 1")
    k("s_and_b32 s41, s3, 1")
    k("v_and_b32 v12, 14, v6")
    k("v_lshlrev_b32 v12, 1, v12")
    k("v_lshlrev_b32 v13, 4, v7")
    k("v_sub_u32 v12, v13, v12")
    k("v_and_b32 v13, 1, v6")
    k(f"v_mul_u32_u24 v13, {KR_CP}, v13")
    k("v_sub_u32 v12, v12, v13")
    k(f"s_mul_i32 s42, s40, {KR_CH}")
    k("s_lshl_b32 s43, s41, 8")
    k("s_sub_u32 s42, s42, s43")
    k(f"s_add_u32 s42, s42, {KB + KR_CP + 4060 - 512}")
    k("v_add_u32 v20, s42, v12")
    for a_ in range(1, 4):
        k(f"v_subrev_u32 v{20+a_}, {1024*a_}, v20")
    k("v_lshlrev_b32 v12, 5, v6")
    k("v_lshl_add_u32 v12, v7, 4, v12")
    k("s_mul_i32 s42, s40, 4608")
    k("s_sub_u32 s42, s42, s43")
    k(f"s_add_u32 s42, s42, {HB + 512 - 32}")
    k("v_add_u32 v24, s42, v12")
    k("v_lshlrev_b32 v12, 5, v6")
    k("v_lshl_add_u32 v12, v7, 3, v12")
    k("s_lshl_b32 s43, s41, 11")
    k("s_mul_i32 s42, s40, 4608")
    k("s_add_u32 s42, s42, s43")
    k(f"s_add_u32 s42, s42, {HB + 512}")
    k("v_add_u32 v25, s42, v12")
    k("v_lshlrev_b32 v12, 6, v6")
    k("v_lshrrev_b32 v13, 1, v7")
    k("v_lshl_add_u32 v12, v13, 5, v12")
    k("v_and_b32 v13, 1, v7")
    k("v_lshl_add_u32 v12, v13, 3, v12")
    k("s_lshl_b32 s42, s40, 4")
    k("s_lshl_b32 s45, s41, 12")
    k("s_add_u32 s42, s42, s45")
    k(f"s_add_u32 s42, s42, {XB}")
    k("v_add_u32 v26, s42, v12")
    k("v_lshrrev_b32 v12, 1, v6")
    k("v_lshlrev_b32 v12, 3, v12")
    k("v_and_b32 v13, 1, v7")
    k("v_lshl_add_u32 v12, v13, 2, v12")
    k("v_and_b32 v13, 1, v6")
    k("v_lshl_add_u32 v12, v13, 1, v12")
    k("v_lshrrev_b32 v13, 1, v7")
    k("v_add_u32 v12, v12, v13")
    k("v_lshlrev_b32 v27, 3, v12")
    k("s_lshl_b32 s44, s40, 1")
    k("s_add_u32 s44, s44, s88")
    k("s_lshl_b32 s44, s44, 12")
    k("s_add_u32 s44, s44, s43")
    k("s_lshl_b32 s42, s3, 12")
    k(f"s_add_u32 s42, s42, {RB}")
    k("v_add_u32 v28, s42, v3")
    k("s_xor_b32 s42, s3, 1")
    k("s_lshl_b32 s42, s42, 12")
    k(f"s_add_u32 s42, s42, {RB}")
    k("v_add_u32 v29, s42, v3")
    k.srd(16, 36, 512 * 4096, WS_X1T)
    k("v_lshlrev_b32 v12, 16, v111")
    k("v_readlane_b32 s47, v12, 0")
    k("v_readlane_b32 s48, v12, 32")
    k("s_cmp_eq_u32 s40, 0")
    k("s_cselect_b32 s47, s47, s48")
    lds_wait(k, 10, 11, 4)
    k.stamp(5)
    for c in range(2):
        for e in range(9):
            k(f"ds_read_u16 v{48+c*10+e}, v{30+e} offset:{T16+c*1536}")
        if c == 0:
            k("s_waitcnt lgkmcnt(6)")
    k("v_lshlrev_b32 v8, 4, v0")
    for r in range(72, 76):
        k(f"v_mov_b32 v{r}, 0")
    k("v_cmp_eq_u32 vcc, 255, v0")
    for c in range(2):
        k(f"s_waitcnt lgkmcnt({9 if c == 0 else 2})")
        b = 48 + c * 10
        o = 80 + c * 8
        k(f"v_cndmask_b32 v{b+8}, v{b+8}, v72, vcc")
        for j in range(4):
            k(f"v_lshl_or_b32 v{o+j}, v{b+1+2*j}, 16, v{b+2*j}")
        k(f"ds_write_b128 v8, v[{o}:{o+3}] offset:{KB + c*KR_CH}")
        for j in range(4):
            k(f"v_lshl_or_b32 v{o+4+j}, v{b+2+2*j}, 16, v{b+1+2*j}")
        k(f"ds_write_b128 v8, v[{o+4}:{o+7}] offset:{KB + c*KR_CH + KR_CP}")
    for r in range(44, 76):
        k(f"v_mov_b32 v{r}, 0")
    k("s_waitcnt lgkmcnt(0)")
    k.stamp(9)
    if NTPF:
        k("s_waitcnt vmcnt(0)")
        for i in range(2):
            k(f"buffer_load_dwordx4 v[116:119], v112, s[28:31], s61 offen offset:{i*512}")
    k("s_barrier")
    k.stamp(10)

    FA = (76, 144)
    FB = (176, 208)

    def reads(s):
        out = []
        for m in range(8):
            a_ = m >> 1
            o = 0 if (m & 1) else 128
            x = FA[s] + 4 * m
            out.append(f"ds_read2_b32 v[{x}:{x+1}], v{20+a_} offset0:{o} offset1:{o+1}")
            out.append(f"ds_read2_b32 v[{x+2}:{x+3}], v{20+a_} offset0:{o+2} offset1:{o+3}")
            y = FB[s] + 4 * m
            out.append(f"ds_read_b128 v[{y}:{y+3}], v24 offset:{512*m}")
        return out

    def adv():
        return [f"v_subrev_u32 v{r}, 64, v{r}" for r in range(20, 25)]

    def mfmas(s):
        pairs = sorted([(m, t) for m in range(8) for t in range(8) if m + t <= 7], key=lambda p: (max(p), p[0] + p[1]))
        return [f"v_mfma_f32_16x16x32_bf16 v[{44+4*(m+t)}:{47+4*(m+t)}], v[{FA[s]+4*m}:{FA[s]+4*m+3}], v[{FB[s]+4*t}:{FB[s]+4*t+3}], v[{44+4*(m+t)}:{47+4*(m+t)}]"
                for (m, t) in pairs]

    k("s_lshl_b32 s42, s40, 2")
    k(f"v_mov_b32 v12, s42")
    k(f"ds_read_b32 v12, v12 offset:{PAR+16}")
    for r_ in reads(0):
        k(r_)
    for x in adv():
        k(x)
    k("s_mov_b32 s50, 0")
    k("s_waitcnt lgkmcnt(0)")
    k("v_readfirstlane_b32 s46, v12")
    k.label("kab_cloop")
    for s in range(2):
        k("s_waitcnt lgkmcnt(0)")
        rd = reads(1 - s)
        mf = mfmas(s)
        ad = adv()
        for idx, x in enumerate(mf):
            k(x)
            if idx < len(rd):
                k(rd[idx])
            elif idx - len(rd) < len(ad):
                k(ad[idx - len(rd)])
    k("s_add_u32 s50, s50, 1")
    k("s_cmp_lt_u32 s50, 2")
    k("s_cbranch_scc1 kab_cloop")
    k("s_waitcnt lgkmcnt(0)")
    k.stamp(11) if not os.environ.get("ZDBG") else None
    L1, L2 = k.newlabel(), k.newlabel()
    k("s_cmp_eq_u32 s41, 0")
    k(f"s_cbranch_scc0 {L1}")
    for kk in range(4):
        k(f"ds_write_b128 v28, v[{60+4*kk}:{63+4*kk}] offset:{1024*kk}")
    k(f"s_branch {L2}")
    k.label(L1)
    for kk in range(4):
        k(f"ds_write_b128 v28, v[{44+4*kk}:{47+4*kk}] offset:{1024*kk}")
    for r in range(0, 16, 2):
        k(f"v_pk_mov_b32 v[{44+r}:{45+r}], v[{60+r}:{61+r}], v[{60+r}:{61+r}] op_sel:[0,1]")
    k.label(L2)
    k("s_lshl_b32 s42, s40, 2")
    k(f"s_add_u32 s42, s42, {C_R}")
    k("v_mov_b32 v10, s42")
    lds_signal(k, 10, 248)
    for kk in range(4):
        k(f"ds_read_b64 v[{76+2*kk}:{77+2*kk}], v25 offset:{512*kk}")
        k(f"ds_read_b64 v[{84+2*kk}:{85+2*kk}], v26 offset:{1024*kk}")
    k("s_waitcnt lgkmcnt(0)")
    HD, XF = 144, 160
    for p in range(8):
        t = HD + 2 * p
        k(f"v_lshlrev_b32 v{t}, 16, v{76+p}")
        k(f"v_and_b32 v{t+1}, 0xffff0000, v{76+p}")
    for p in range(8):
        t = HD + 2 * p
        k(f"v_pk_mul_f32 v[{t}:{t+1}], v[{t}:{t+1}], s[46:47] op_sel:[0,1] op_sel_hi:[1,1]")
    for p in range(8):
        t = HD + 2 * p
        k(f"v_cvt_pk_bf16_f32 v{76+p}, v{t}, v{t+1}")
    lds_wait(k, 10, 11, 2)
    k.stamp(12) if not os.environ.get("ZDBG") else None
    for kk in range(4):
        k(f"ds_read_b128 v[{60+4*kk}:{63+4*kk}], v29 offset:{1024*kk}")
    for p in range(8):
        t = HD + 2 * p
        k(f"v_lshlrev_b32 v{t}, 16, v{76+p}")
        k(f"v_and_b32 v{t+1}, 0xffff0000, v{76+p}")
        u = XF + 2 * p
        k(f"v_lshlrev_b32 v{u}, 16, v{84+p}")
        k(f"v_and_b32 v{u+1}, 0xffff0000, v{84+p}")
    k("s_waitcnt lgkmcnt(0)")
    P8 = range(8)

    def rnd():
        for p in P8:
            k(f"v_cvt_pk_bf16_f32 v{76+p}, v{44+2*p}, v{45+2*p}")
        for p in P8:
            k(f"v_lshlrev_b32 v{44+2*p}, 16, v{76+p}")
            k(f"v_and_b32 v{45+2*p}, 0xffff0000, v{76+p}")

    for p in P8:
        k(f"v_pk_add_f32 v[{44+2*p}:{45+2*p}], v[{44+2*p}:{45+2*p}], v[{60+2*p}:{61+2*p}]")
    rnd()
    for p in P8:
        k(f"v_pk_add_f32 v[{44+2*p}:{45+2*p}], v[{44+2*p}:{45+2*p}], v[{HD+2*p}:{HD+2*p+1}]")
    rnd()
    for p in P8:
        k(f"v_pk_mul_f32 v[{44+2*p}:{45+2*p}], v[{44+2*p}:{45+2*p}], s[46:47] op_sel:[0,0] op_sel_hi:[1,0]")
    rnd()
    for p in P8:
        k(f"v_pk_add_f32 v[{44+2*p}:{45+2*p}], v[{44+2*p}:{45+2*p}], v[{XF+2*p}:{XF+2*p+1}]")
    for kk in range(4):
        for h in range(2):
            p = 2 * kk + h
            k(f"v_cvt_pk_bf16_f32 v{76+p}, v{44+2*p}, v{45+2*p}")
        k(f"buffer_store_dwordx2 v[{76+2*kk}:{77+2*kk}], v27, s[16:19], s44 offen offset:{512*kk} sc1")
    k("s_branch kcd_entry")

    k.label("kab_h")
    k("s_setprio 2")
    k("v_and_b32 v0, 255, v0")
    for r in range(8, 12):
        k(f"v_mov_b32 v{r}, 0")
    k("s_cmp_lg_u32 s3, 0")
    k("s_cbranch_scc1 kab_h0")
    k("v_lshrrev_b32 v7, 5, v1")
    k("v_mul_u32_u24 v7, 4608, v7")
    k("v_and_b32 v6, 31, v1")
    k("v_lshl_add_u32 v7, v6, 4, v7")
    k(f"ds_write_b128 v7, v[8:11] offset:{HB}")
    k("v_lshrrev_b32 v6, 2, v1")
    k(f"v_mul_u32_u24 v7, {KR_CP}, v6")
    k("v_and_b32 v6, 3, v1")
    k("v_lshl_add_u32 v7, v6, 4, v7")
    k(f"v_add_u32 v7, {KB + 4096}, v7")
    k("v_lshlrev_b32 v6, 4, v6")
    k("v_cmp_gt_u32 vcc, 16, v1")
    k("v_cndmask_b32 v7, v6, v7, vcc")
    k("ds_write_b128 v7, v[8:11]")
    k.label("kab_h0")
    k("s_lshl_b32 s10, s2, 13")
    k("s_add_u32 s38, s10, 4096")
    k("s_lshl_b32 s39, s3, 11")
    k("s_add_u32 s39, s39, s10")
    k("v_lshlrev_b32 v4, 2, v0")
    k("v_and_b32 v2, 3, v0")
    k("s_mul_i32 s24, s2, 3")
    k("s_add_u32 s24, s24, s3")
    k(f"s_mul_hi_u32 s25, s24, {(2**32 + 47)//48}")
    k("s_mul_i32 s26, s25, 48")
    k("s_sub_u32 s26, s24, s26")
    k("v_lshrrev_b32 v12, 3, v1")
    k("v_and_b32 v113, 7, v1")
    k(f"v_mul_u32_u24 v112, {4*6144}, v12")
    k("v_lshl_add_u32 v112, v113, 4, v112")
    k("v_lshlrev_b32 v13, 3, v12")
    k(f"s_mul_i32 s27, s25, {32*6144}")
    k("s_lshl_b32 s28, s26, 7")
    k("s_add_u32 s27, s27, s28")
    k("s_lshl_b32 s28, s25, 6")
    k("s_lshr_b32 s29, s2, 3")
    k("s_lshl_b32 s29, s29, 2")
    k("s_add_u32 s29, s29, s3")
    k("s_and_b32 s30, s2, 7")
    k("s_lshl_b32 s30, s30, 11")
    k("s_waitcnt lgkmcnt(0)")
    k("s_mov_b64 s[36:37], s[34:35]")
    k("s_cmp_lg_u32 s29, 67")
    k("s_cbranch_scc1 kab_nz")
    k.srd(40, 36, 65536, WS_BAR)
    k("buffer_store_dwordx4 v[8:11], v3, s[40:43], s30 offen sc1")
    k("buffer_store_dwordx4 v[8:11], v3, s[40:43], s30 offen offset:1024 sc1")
    k.srd(40, 36, 8192, WS_ST1)
    k("s_lshr_b32 s31, s30, 1")
    k("buffer_store_dwordx4 v[8:11], v3, s[40:43], s31 offen sc1")
    k.label("kab_nz")
    k("s_barrier")
    k.stamp(6)
    k.srd(12, 64, 2048 * 1024)
    k("buffer_load_dwordx4 v[16:19], v3, s[12:15], s39 offen nt")
    k("buffer_load_dwordx4 v[20:23], v3, s[12:15], s39 offen offset:1024 nt")
    for r in range(8):
        k(f"buffer_load_dword v{24+r}, v4, s[12:15], s{(10, 38)[r//4]} offen offset:{(r%4)*1024} nt")
    k.srd(72, 92, 1024)
    k.srd(76, 94, 512 * 6144)
    k("s_cmp_eq_u32 s3, 3")
    k("s_cselect_b32 s74, 0, s74")
    k("s_cselect_b32 s78, 0, s78")
    k("buffer_load_dwordx2 v[114:115], v13, s[72:75], s28 offen")
    for i in range(4):
        k(f"buffer_load_dwordx4 v[{128+4*i}:{131+4*i}], v112, s[76:79], s27 offen nt")
        if i < 3:
            k("s_add_u32 s27, s27, 6144")
    k("s_lshr_b32 s5, s2, 4")
    k("s_and_b32 s6, s2, 15")
    k("s_lshl_b32 s6, s6, 1")
    k("s_add_u32 s6, s6, s3")
    k("s_mul_i32 s6, s6, 43")
    k("s_lshr_b32 s6, s6, 3")
    k("s_min_u32 s6, s6, 166")
    k("v_lshrrev_b32 v92, 3, v1")
    k("v_and_b32 v95, 7, v1")
    k(f"v_mul_u32_u24 v93, {4*2752}, v92")
    k("v_lshl_add_u32 v93, v95, 4, v93")
    k("v_cmp_gt_u32 vcc, 6, v95")
    k("v_mov_b32 v94, 0x7fff0000")
    k("v_cndmask_b32 v93, v94, v93, vcc")
    k("s_lshl_b32 s8, s2, 13")
    k("v_add_u32 v94, s8, v3")
    k(f"s_mul_i32 s8, s5, {32*2752}")
    k("s_lshl_b32 s9, s6, 4")
    k("s_add_u32 s8, s8, s9")
    k("s_cmp_lt_u32 s3, 2")
    k("s_cselect_b64 vcc, -1, 0")
    k("s_cselect_b64 s[68:69], s[80:81], s[86:87]")
    k(f"s_mov_b32 s70, {688*1024}")
    k(f"s_cselect_b32 s70, {512*2752}, s70")
    k("s_cselect_b32 s8, s8, 0")
    k("s_movk_i32 s9, 1024")
    k("s_cselect_b32 s9, 2752, s9")
    k("v_cndmask_b32 v93, v94, v93, vcc")
    k("s_and_b32 s69, s69, 0xffff")
    k("s_mov_b32 s71, 0x00020000")

    def raw_loads(lo, hi):
        for e in range(lo, hi):
            k(f"buffer_load_dwordx4 v[{RAW+e*4}:{RAW+3+e*4}], v93, s[68:71], s8 offen nt")
            k("s_add_u32 s8, s8, s9")

    k.srd(60, 32, 256)
    k.srd(40, 36, 65536, WS_BAR)
    k.srd(44, 36, (2 << 20) + 8192, WS_XT)
    k.srd(52, 36, 16 * 12288, WS_MP)
    k("v_and_b32 v84, 7, v1")
    k("v_lshlrev_b32 v84, 5, v84")
    k("s_mov_b32 s48, 0x05040100")
    k("s_mov_b32 s49, 0x07060302")
    k(f"s_mov_b32 s50, {f32(1.0/512)}")
    k(f"s_mov_b32 s51, {f32(1e-5)}")
    k("v_lshrrev_b32 v4, 1, v1")
    k("s_lshl_b32 s15, s3, 6")
    k("v_add_u32 v4, s15, v4")
    k("v_and_b32 v7, 1, v1")
    k("v_lshlrev_b32 v6, 13, v4")
    k("v_lshl_add_u32 v6, v7, 4, v6")
    k("v_mul_u32_u24 v9, 4608, v7")
    k(f"v_add_u32 v9, {HB+512}, v9")
    k("v_lshl_add_u32 v9, v4, 4, v9")
    k("v_lshlrev_b32 v10, 2, v7")
    k("v_lshlrev_b32 v11, 5, v4")
    k("v_lshl_add_u32 v14, v7, 4, v11")
    k(f"v_add_u32 v14, {XB}, v14")
    k(f"s_mov_b32 s19, {WS_ST1 - WS_XT}")
    k("s_lshl_b32 s20, s89, 12")
    k("s_lshr_b32 s21, s4, 1")
    k("s_lshl_b32 s21, s21, 5")
    k("s_add_u32 s20, s20, s21")
    k(f"s_add_u32 s21, s20, {32*8192}")
    k("s_lshr_b32 s15, s2, 3")
    k("s_and_b32 s15, s15, 15")
    k("s_lshl_b32 s15, s15, 7")
    k("v_lshl_add_u32 v88, v1, 11, s15")
    k("s_and_b32 s15, s2, 7")
    k("s_lshl_b32 s15, s15, 11")
    k("v_and_b32 v89, 15, v1")
    k("v_lshl_add_u32 v89, v89, 7, s15")
    k(f"v_mov_b32 v86, {C_A}")
    k(f"v_mov_b32 v90, {C_G}")
    k("v_and_b32 v82, 15, v1")
    k("v_lshrrev_b32 v83, 4, v1")
    k("v_mul_u32_u24 v82, 12288, v82")
    k("v_and_b32 v8, 1, v83")
    k("v_lshl_add_u32 v85, v8, 11, v82")
    k("v_add_u32 v85, 8192, v85")
    k("v_lshl_add_u32 v82, v83, 11, v82")
    k("s_lshl_b32 s58, s88, 2")
    k("v_lshlrev_b32 v5, 4, v0")
    k("v_bfe_u32 v15, v1, 3, 1")
    k("s_lshl_b32 s15, s3, 3")
    k("v_lshl_add_u32 v15, v15, 2, s15")
    k("s_lshl_b32 s14, s2, 5")
    k("s_add_u32 s14, s14, s19")
    k(f"v_mov_b32 v81, {C_L}")
    k("s_cmp_lg_u32 s29, 67")
    k("s_cbranch_scc1 kab_nr")
    k("s_lshr_b32 s31, s30, 6")
    k("v_mov_b32 v8, 0")
    k("s_waitcnt vmcnt(15)")
    k("s_mov_b64 exec, 1")
    k("buffer_store_dword v248, v8, s[60:63], s31 offen sc1")
    k("s_mov_b64 exec, -1")
    for r in range(116, 120):
        k(f"v_mov_b32 v{r}, 0")
    for b_ in (1, 2, 3):
        k(f"s_add_u32 s31, s30, {b_*16384}")
        k("buffer_store_dwordx4 v[116:119], v3, s[40:43], s31 offen sc1")
        k("buffer_store_dwordx4 v[116:119], v3, s[40:43], s31 offen offset:1024 sc1")
    k("s_waitcnt vmcnt(7)")
    k("s_branch kab_nr2")
    k.label("kab_nr")
    k("s_waitcnt vmcnt(5)")
    k.label("kab_nr2")
    k.stamp(2)
    for q in range(4):
        k(f"v_perm_b32 v{68+q}, v{25+2*q}, v{24+2*q}, s48")
        k(f"v_perm_b32 v{76+q}, v{25+2*q}, v{24+2*q}, s49")
    k("buffer_store_dwordx4 v[68:71], v5, s[44:47], s10 offen sc1")
    k("buffer_store_dwordx4 v[76:79], v5, s[44:47], s38 offen sc1")
    for r in range(2):
        for j in range(4):
            k(f"v_lshlrev_b32 v{32+8*r+2*j}, 16, v{16+4*r+j}")
            k(f"v_and_b32 v{33+8*r+2*j}, 0xffff0000, v{16+4*r+j}")

    def wave_reduce2(a, b, d, t):
        k(f"v_add_f32_dpp v{d}, v{a}, v{a} row_ror:8 row_mask:0xf bank_mask:0x3")
        k(f"v_add_f32_dpp v{d}, v{b}, v{b} row_ror:8 row_mask:0xf bank_mask:0xc")
        k(f"v_add_f32_dpp v{d}, v{d}, v{d} row_half_mirror row_mask:0xf bank_mask:0xf")
        k(f"v_add_f32_dpp v{d}, v{d}, v{d} quad_perm:[2,3,0,1] row_mask:0xf bank_mask:0xf")
        k(f"v_add_f32_dpp v{d}, v{d}, v{d} quad_perm:[1,0,3,2] row_mask:0xf bank_mask:0xf")
        k(f"v_mov_b32 v{t}, v{d}")
        k(f"v_permlane16_swap_b32 v{t}, v{d}")
        k(f"v_add_f32 v{d}, v{d}, v{t}")
        k(f"v_mov_b32 v{t}, v{d}")
        k(f"v_permlane32_swap_b32 v{t}, v{d}")
        k(f"v_add_f32 v{d}, v{d}, v{t}")

    for r in range(2):
        x, t = 32 + 8 * r, 48 + 4 * r
        k(f"v_pk_add_f32 v[{t}:{t+1}], v[{x}:{x+1}], v[{x+2}:{x+3}]")
        k(f"v_pk_add_f32 v[{t+2}:{t+3}], v[{x+4}:{x+5}], v[{x+6}:{x+7}]")
    for r in range(2):
        t = 48 + 4 * r
        k(f"v_pk_add_f32 v[{t}:{t+1}], v[{t}:{t+1}], v[{t+2}:{t+3}]")
    for r in range(2):
        t = 48 + 4 * r
        k(f"v_add_f32 v{t}, v{t}, v{t+1}")
    wave_reduce2(48, 52, 56, 57)
    k("v_mul_f32 v56, s50, v56")
    k("v_readlane_b32 s16, v56, 0")
    k("v_readlane_b32 s17, v56, 8")
    for r in range(2):
        sel = "op_sel_hi:[1,0]" if r == 0 else "op_sel:[0,1] op_sel_hi:[1,1]"
        for j in range(4):
            x = 32 + 8 * r + 2 * j
            k(f"v_pk_add_f32 v[{x}:{x+1}], v[{x}:{x+1}], s[16:17] {sel} neg_lo:[0,1] neg_hi:[0,1]")
    for j in range(4):
        for r in range(2):
            x, t = 32 + 8 * r + 2 * j, 48 + 4 * r
            if j == 0:
                k(f"v_pk_mul_f32 v[{t}:{t+1}], v[{x}:{x+1}], v[{x}:{x+1}]")
            else:
                k(f"v_pk_fma_f32 v[{t}:{t+1}], v[{x}:{x+1}], v[{x}:{x+1}], v[{t}:{t+1}]")
    for r in range(2):
        t = 48 + 4 * r
        k(f"v_add_f32 v{t}, v{t}, v{t+1}")
    wave_reduce2(48, 52, 58, 57)
    k("v_mul_f32 v58, s50, v58")
    round_bf16(k, "v58", "v58")
    k("v_add_f32 v58, s51, v58")
    round_bf16(k, "v58", "v58")
    k("v_sqrt_f32 v58, v58")
    k("v_cvt_pk_bf16_f32 v58, v56, v58")
    k(f"ds_write_b32 v15, v58 offset:{PAR+32}")
    lds_signal(k, 81, 248)
    k.stamp(3)
    k("s_cmp_eq_u32 s3, 3")
    k("s_cbranch_scc1 kab_sync")
    k(f"s_mov_b32 s31, {f32(-LOG2E)}")
    k("s_waitcnt vmcnt(6)")
    for j in range(2):
        k(f"v_lshlrev_b32 v{44+2*j}, 16, v{114+j}")
        k(f"v_and_b32 v{45+2*j}, 0xffff0000, v{114+j}")
    for j in range(4):
        k(f"v_mul_f32 v{48+j}, s31, v{44+j}")
    for j in range(4):
        k(f"v_exp_f32 v{48+j}, v{48+j}")
    for j in range(4):
        k(f"v_add_f32 v{48+j}, 1.0, v{48+j}")
    for j in range(4):
        k(f"v_rcp_f32 v{48+j}, v{48+j}")
    for j in range(4):
        k(f"v_mul_f32 v{48+j}, v{44+j}, v{48+j}")
    for j in range(2):
        k(f"v_cvt_pk_bf16_f32 v{114+j}, v{48+2*j}, v{49+2*j}")
    for j in range(2):
        k(f"v_lshlrev_b32 v{44+4*j}, 16, v{114+j}")
        k(f"v_and_b32 v{46+4*j}, 0xffff0000, v{114+j}")
    for i in range(4):
        sp = 44 + 2 * i
        k(f"s_waitcnt vmcnt({5-i})")
        for j in range(4):
            w = 128 + 4 * i + j
            k(f"v_lshlrev_b32 v{60+2*j}, 16, v{w}")
            k(f"v_and_b32 v{61+2*j}, 0xffff0000, v{w}")
        for j in range(4):
            a_ = 52 + 2 * j
            if i == 0:
                k(f"v_pk_mul_f32 v[{a_}:{a_+1}], v[{60+2*j}:{61+2*j}], v[{sp}:{sp+1}] op_sel_hi:[1,0]")
            else:
                sel = "op_sel:[0,0,0] op_sel_hi:[1,0,1]"
                k(f"v_pk_fma_f32 v[{a_}:{a_+1}], v[{60+2*j}:{61+2*j}], v[{sp}:{sp+1}], v[{a_}:{a_+1}] {sel}")
    for q in range(4):
        k(f"v_add_f32_dpp v{60+q}, v{52+q}, v{52+q} row_ror:8 row_mask:0xf bank_mask:0x3")
        k(f"v_add_f32_dpp v{60+q}, v{56+q}, v{56+q} row_ror:8 row_mask:0xf bank_mask:0xc")
    k("v_bfe_u32 v64, v1, 3, 1")
    k("v_lshlrev_b32 v65, 5, v113")
    k("v_lshl_add_u32 v65, v64, 4, v65")
    k("v_permlane16_swap_b32 v60, v61")
    k("v_permlane16_swap_b32 v62, v63")
    k("v_bfe_u32 v64, v1, 5, 1")
    k("v_lshl_add_u32 v65, v64, 3, v65")
    k("v_add_f32 v60, v60, v61")
    k("v_add_f32 v62, v62, v63")
    k("v_bfe_u32 v64, v1, 4, 1")
    k("v_lshl_add_u32 v65, v64, 2, v65")
    k("v_permlane32_swap_b32 v60, v62")
    k("s_mul_i32 s56, s25, 12288")
    k("s_lshl_b32 s57, s26, 8")
    k("s_add_u32 s56, s56, s57")
    k("v_add_f32 v60, v60, v62")
    k("buffer_store_dword v60, v65, s[52:55], s56 offen sc1")
    k.stamp(8)
    k("s_waitcnt vmcnt(0)")
    k.stamp(4)
    lds_signal(k, 86, 248)
    k.label("kab_gs")
    k("s_sleep 1")
    k("ds_read_b32 v87, v90")
    k("s_waitcnt lgkmcnt(0)")
    k("v_readfirstlane_b32 s90, v87")
    k("s_cmp_eq_u32 s90, 0")
    k("s_cbranch_scc1 kab_gs")
    k("s_branch kab_go")
    k.label("kab_sync")
    k("s_mov_b32 s56, 0")
    lds_wait(k, 81, 87, 4)
    k("v_and_b32 v15, 1, v1")
    k("v_lshlrev_b32 v15, 4, v15")
    k(f"ds_read_b128 v[60:63], v15 offset:{PAR+32}")
    k.label("kab_rp")
    k("buffer_load_dword v91, v84, s[60:63], 0 offen sc1")
    k("s_add_u32 s56, s56, 1")
    k("s_waitcnt vmcnt(0) lgkmcnt(0)")
    k("v_cmp_eq_u32 vcc, 0, v91")
    k("s_cbranch_vccz kab_rg")
    k("s_sleep 4")
    k(f"s_cmp_lt_u32 s56, {SPIN}")
    k("s_cbranch_scc1 kab_rp")
    k.label("kab_rg")
    k("s_mov_b64 exec, 3")
    k("buffer_store_dwordx4 v[60:63], v15, s[44:47], s14 offen sc1")
    k("s_mov_b64 exec, -1")
    k.stamp(8)
    lds_wait(k, 86, 87, 3)
    k("s_mov_b64 exec, 0xff")
    k("buffer_atomic_add v248, v88, s[40:43], 0 offen sc1")
    k("s_mov_b64 exec, -1")
    k.stamp(4)
    if int(os.environ.get("SL0", 16)):
        k(f"s_sleep {int(os.environ.get('SL0', 16))}")
    gpoll(k, "kab_b1", 0, int(os.environ.get("SL1", 4)))
    k("s_mov_b64 exec, 1")
    k("ds_write_b32 v90, v248")
    k("s_mov_b64 exec, -1")
    k("buffer_load_dword v56, v82, s[52:55], s58 offen sc1")
    k("buffer_load_dword v57, v82, s[52:55], s58 offen offset:8 sc1")
    k.label("kab_go")
    k.stamp(5)
    for i in range(2):
        k(f"buffer_load_dwordx4 v[{16+i*4}:{19+i*4}], v6, s[44:47], s{20+i} offen sc1")
    for i in range(2):
        for h in range(2):
            k(f"buffer_load_dwordx4 v[{128+i*8+h*4}:{131+i*8+h*4}], v11, s[44:47], s19 offen offset:{i*1024+h*16} sc1")
    k(f"v_mov_b32 v86, {C_P}")
    k("s_cmp_lg_u32 s3, 3")
    k("s_cbranch_scc1 kab_p0")
    k("s_waitcnt vmcnt(6)")
    for rot in (8, 4, 2, 1):
        for r in (56, 57):
            k(f"v_add_f32_dpp v{r}, v{r}, v{r} row_ror:{rot} row_mask:0xf bank_mask:0xf")
    for r in (56, 57):
        round_bf16(k, f"v{r}", f"v{r}")
    k("v_lshlrev_b32 v66, 3, v83")
    k("s_mov_b32 exec_lo, 0x00010001")
    k("s_mov_b32 exec_hi, 0x00010001")
    k(f"ds_write_b64 v66, v[56:57] offset:{PAR}")
    k("s_mov_b64 exec, -1")
    lds_signal(k, 86, 248)
    cg_emit("s22")
    k("s_lshl_b32 s22, s22, 8")
    k(f"s_add_u32 s22, s22, {5*2048}")
    k("v_and_b32 v8, 15, v1")
    k("v_mul_u32_u24 v8, 12288, v8")
    k("v_lshl_add_u32 v8, v83, 4, v8")
    for i in range(4):
        k(f"buffer_load_dwordx4 v[{SBR+4*i}:{SBR+4*i+3}], v8, s[52:55], s22 offen offset:{64*i} sc1")
    k("s_waitcnt vmcnt(4)")
    k("s_branch kab_pw")
    k.label("kab_p0")
    raw_loads(0, 4)
    k("s_cmp_eq_u32 s3, 2")
    k("s_cbranch_scc1 kab_p2")
    k("v_mul_u32_u24 v8, 12288, v95")
    k("v_lshl_add_u32 v8, v92, 4, v8")
    k("s_lshl_b32 s22, s5, 7")
    k("s_add_u32 s22, s22, 6144")
    k(f"s_add_u32 s23, s22, {8*12288}")
    for j in range(2):
        k(f"buffer_load_dwordx4 v[{SBR+8*j}:{SBR+8*j+3}], v8, s[52:55], s{22+j} offen sc1")
        k(f"buffer_load_dwordx4 v[{SBR+8*j+4}:{SBR+8*j+7}], v8, s[52:55], s{22+j} offen offset:2048 sc1")
    k("s_branch kab_p3")
    k.label("kab_p2")
    raw_loads(4, 8)
    k.label("kab_p3")
    k("s_waitcnt vmcnt(8)")
    k.label("kab_pw")
    k("s_mov_b32 s56, 0")
    k.label("kab_sc")
    k("v_min3_u32 v24, v128, v129, v130")
    for j in range(131, 143, 2):
        k(f"v_min3_u32 v24, v24, v{j}, v{j+1}")
    k("v_min_u32 v24, v24, v143")
    k("v_cmp_eq_u32 vcc, 0, v24")
    k("s_cbranch_vccz kab_so")
    for i in range(2):
        for h in range(2):
            k(f"buffer_load_dwordx4 v[{128+i*8+h*4}:{131+i*8+h*4}], v11, s[44:47], s19 offen offset:{i*1024+h*16} sc1")
    k("s_add_u32 s56, s56, 1")
    k("s_waitcnt vmcnt(0)")
    k(f"s_cmp_lt_u32 s56, {SPIN}")
    k("s_cbranch_scc1 kab_sc")
    k.label("kab_so")
    k.stamp(7)
    for i in range(2):
        k(f"ds_write_b128 v14, v[{16+i*4}:{19+i*4}] offset:{i*1024}")
    M_, RS = 144, 160
    for j in range(16):
        k(f"v_lshlrev_b32 v{M_+j}, 16, v{128+j}")
        k(f"v_and_b32 v{RS+j}, 0xffff0000, v{128+j}")
    for j in range(16):
        k(f"v_rcp_f32 v{RS+j}, v{RS+j}")
    it = [(32 + 2 * j, 16 + j) for j in range(8)]
    for (t, w) in it:
        k(f"v_lshlrev_b32 v{t}, 16, v{w}")
        k(f"v_and_b32 v{t+1}, 0xffff0000, v{w}")
    for j, (t, w) in enumerate(it):
        k(f"v_pk_add_f32 v[{t}:{t+1}], v[{t}:{t+1}], v[{M_+2*j}:{M_+2*j+1}] neg_lo:[0,1] neg_hi:[0,1]")
    for (t, w) in it:
        k(f"v_cvt_pk_bf16_f32 v{w}, v{t}, v{t+1}")
    for (t, w) in it:
        k(f"v_lshlrev_b32 v{t}, 16, v{w}")
        k(f"v_and_b32 v{t+1}, 0xffff0000, v{w}")
    for j, (t, w) in enumerate(it):
        k(f"v_pk_mul_f32 v[{t}:{t+1}], v[{t}:{t+1}], v[{RS+2*j}:{RS+2*j+1}]")
    for (t, w) in it:
        k(f"v_cvt_pk_bf16_f32 v{w}, v{t}, v{t+1}")
    lds_wait(k, 86, 87, 1)
    k(f"ds_read_b32 v26, v10 offset:{PAR}")
    k(f"ds_read_b32 v12, v10 offset:{PAR+8}")
    for (t, w) in it:
        k(f"v_lshlrev_b32 v{t}, 16, v{w}")
        k(f"v_and_b32 v{t+1}, 0xffff0000, v{w}")
    k("s_waitcnt lgkmcnt(0)")
    k("v_add_f32 v12, 1.0, v12")
    round_bf16(k, "v12", "v12")
    for (t, w) in it:
        k(f"v_pk_mul_f32 v[{t}:{t+1}], v[{t}:{t+1}], v[12:13] op_sel:[0,0] op_sel_hi:[1,0]")
    for (t, w) in it:
        k(f"v_cvt_pk_bf16_f32 v{w}, v{t}, v{t+1}")
    for (t, w) in it:
        k(f"v_lshlrev_b32 v{t}, 16, v{w}")
        k(f"v_and_b32 v{t+1}, 0xffff0000, v{w}")
    for (t, w) in it:
        k(f"v_pk_add_f32 v[{t}:{t+1}], v[{t}:{t+1}], v[26:27] op_sel_hi:[1,0]")
    for (t, w) in it:
        k(f"v_cvt_pk_bf16_f32 v{w}, v{t}, v{t+1}")
    for i in range(2):
        k(f"ds_write_b128 v9, v[{16+i*4}:{19+i*4}] offset:{i*512}")
    k("s_waitcnt lgkmcnt(0)")
    k.stamp(9)
    k("s_barrier")
    k("s_setprio 0")
    k("s_cmp_lt_u32 s3, 2")
    k("s_cbranch_scc1 kab_wpj")
    k("s_cmp_eq_u32 s3, 2")
    k("s_cbranch_scc1 kab_woj")
    k("v_mov_b32 v8, -1")
    k("v_mov_b32 v9, -1")
    k("v_lshlrev_b32 v7, 3, v1")
    k("s_lshl_b32 s58, s2, 9")
    k.srd(52, 36, 131072, WS_XST)
    k("buffer_store_dwordx2 v[8:9], v7, s[52:55], s58 offen sc1")
    k.srd(28, 82, 2048 * 4096)
    k("s_lshl_b32 s22, s4, 15")
    k("v_lshrrev_b32 v8, 3, v1")
    k("v_lshlrev_b32 v8, 12, v8")
    k("v_and_b32 v9, 7, v1")
    k("v_lshl_add_u32 v8, v9, 4, v8")
    for i in range(PF1):
        k(f"buffer_load_dwordx4 v[244:247], v8, s[28:31], s22 offen offset:{i*128}")
    k(f"s_waitcnt vmcnt({PF1})")
    for rot in (8, 4, 2, 1):
        for r in range(SBR, SBR + 16):
            k(f"v_add_f32_dpp v{r}, v{r}, v{r} row_ror:{rot} row_mask:0xf bank_mask:0xf")
    for e in range(0, 16, 2):
        k(f"v_cvt_pk_bf16_f32 v8, v{SBR+e}, v{SBR+e+1}")
        k(f"v_lshlrev_b32 v{SBR+e}, 16, v8")
        k(f"v_and_b32 v{SBR+e+1}, 0xffff0000, v8")
    k("v_lshlrev_b32 v8, 4, v83")
    k(f"v_add_u32 v8, {GBL}, v8")
    for i in range(4):
        k(f"ds_write_b128 v8, v[{SBR+4*i}:{SBR+4*i+3}] offset:{64*i}")
    k("s_branch kcd_entry")
    k.label("kab_woj")
    k("s_cmp_ge_u32 s2, 88")
    k("s_cbranch_scc1 kcd_entry")
    k.srd(16, 36, 32 * 22 * 1024, WS_WOF)
    k("v_mul_u32_u24 v6, 144, v1")
    k(f"v_add_u32 v6, {STA + 2*7168}, v6")
    k("v_lshrrev_b32 v7, 3, v1")
    k("v_mul_u32_u24 v8, 144, v7")
    k("v_lshl_add_u32 v8, v95, 4, v8")
    k(f"v_add_u32 v8, {STA + 2*7168}, v8")
    k("v_lshrrev_b32 v94, 4, v1")
    k(f"v_mul_u32_u24 v94, {22*1024}, v94")
    k("v_and_b32 v7, 1, v7")
    k("v_lshl_add_u32 v94, v7, 7, v94")
    k("v_lshl_add_u32 v94, v95, 4, v94")
    k("s_lshl_b32 s23, s2, 8")
    k("s_waitcnt vmcnt(0)")
    for cc in range(8):
        for q in range(4):
            j = cc >> 1
            k(f"v_perm_b32 v{OUTR+4*cc+q}, v{RAW+(2*q+1)*4+j}, v{RAW+2*q*4+j}, s{48 + (cc & 1)}")
        k(f"ds_write_b128 v6, v[{OUTR+4*cc}:{OUTR+3+4*cc}] offset:{16*cc}")
    k("s_waitcnt lgkmcnt(0)")
    for i in range(8):
        k(f"ds_read_b128 v[{RAW+4*i}:{RAW+4*i+3}], v8 offset:{i*8*144}")
    for i in range(8):
        k(f"s_waitcnt lgkmcnt({7-i})")
        k(f"buffer_store_dwordx4 v[{RAW+4*i}:{RAW+4*i+3}], v94, s[16:19], s23 offen sc1")
        k(f"s_add_u32 s23, s23, {4*22528}")
    k("s_waitcnt vmcnt(0)")
    k("s_branch kcd_entry")
    k.label("kab_wpj")
    k.srd(16, 36, 86 * 16384, WS_WPF)
    k.srd(24, 36, 32 * CSB_B, WS_CSB)
    k("s_mul_i32 s22, s3, 7168")
    k(f"s_add_u32 s22, s22, {STA}")
    k("v_lshrrev_b32 v4, 4, v1")
    k("v_lshl_add_u32 v6, v4, 3, v95")
    k("v_mul_u32_u24 v6, 144, v6")
    k("v_and_b32 v7, 1, v92")
    k("v_lshl_add_u32 v6, v7, 3, v6")
    k("v_add_u32 v6, s22, v6")
    k("v_mul_u32_u24 v8, 144, v92")
    k("v_lshl_add_u32 v8, v95, 4, v8")
    k("v_add_u32 v8, s22, v8")
    k("v_add_u32 v9, s6, v92")
    k("v_lshrrev_b32 v7, 1, v9")
    k("v_lshlrev_b32 v7, 14, v7")
    k("v_and_b32 v9, 1, v9")
    k("v_lshl_add_u32 v7, v9, 7, v7")
    k("v_lshl_add_u32 v7, v95, 4, v7")
    k("v_cmp_gt_u32 vcc, 6, v92")
    k("v_mov_b32 v9, 0x7fff0000")
    k("v_cndmask_b32 v7, v9, v7, vcc")
    k("v_add_u32 v10, s6, v95")
    k("v_lshlrev_b32 v10, 5, v10")
    k("v_bfe_u32 v11, v1, 3, 1")
    k(f"v_mul_u32_u24 v11, {CSB_B}, v11")
    k("v_add_u32 v10, v10, v11")
    k("v_bfe_u32 v11, v1, 4, 1")
    k("v_lshl_add_u32 v10, v11, 4, v10")
    k("v_bfe_u32 v11, v1, 5, 1")
    k("v_lshl_add_u32 v10, v11, 3, v10")
    k("v_cmp_gt_u32 vcc, 6, v95")
    k("v_cndmask_b32 v10, v9, v10, vcc")
    k("s_lshl_b32 s23, s5, 10")
    k(f"s_mul_i32 s21, s5, {2*CSB_B}")
    k("s_mov_b32 s28, 0x3f803f80")
    k("s_waitcnt vmcnt(0)")
    k.stamp(10)
    for e in range(0, 8, 2):
        k(f"v_pk_add_f32 v[{SBR+e}:{SBR+e+1}], v[{SBR+e}:{SBR+e+1}], v[{SBR+8+e}:{SBR+9+e}]")
    for dpp in ("row_half_mirror", "quad_perm:[2,3,0,1]", "quad_perm:[1,0,3,2]"):
        for r in range(SBR, SBR + 8):
            k(f"v_add_f32_dpp v{r}, v{r}, v{r} {dpp} row_mask:0xf bank_mask:0xf")
    for e in range(0, 8, 2):
        k(f"v_cvt_pk_bf16_f32 v{SBR+8+e}, v{SBR+e}, v{SBR+e+1}")
    for e in range(0, 8, 2):
        k(f"v_lshlrev_b32 v{160+2*e}, 16, v{SBR+8+e}")
        k(f"v_and_b32 v{162+2*e}, 0xffff0000, v{SBR+8+e}")
    for e in range(4):
        k(f"v_add_f32 v{168+2*e}, 1.0, v{168+2*e}")
    for e in range(0, 4, 2):
        k(f"v_cvt_pk_bf16_f32 v{SBR+e}, v{168+2*e}, v{170+2*e}")
    for e in range(0, 4, 2):
        k(f"v_lshlrev_b32 v{168+2*e}, 16, v{SBR+e}")
        k(f"v_and_b32 v{170+2*e}, 0xffff0000, v{SBR+e}")
    for q in range(2):
        for h in range(2):
            e = 2 * q + h
            for j in range(4):
                t = 144 + h * 8 + 2 * j
                w = RAW + e * 4 + j
                k(f"v_lshlrev_b32 v{t}, 16, v{w}")
                k(f"v_and_b32 v{t+1}, 0xffff0000, v{w}")
            for j in range(4):
                t = 144 + h * 8 + 2 * j
                if e == 0:
                    k(f"v_pk_mul_f32 v[{64+2*j}:{65+2*j}], v[{t}:{t+1}], v[{160+2*e}:{161+2*e}] op_sel_hi:[1,0]")
                else:
                    k(f"v_pk_fma_f32 v[{64+2*j}:{65+2*j}], v[{t}:{t+1}], v[{160+2*e}:{161+2*e}], v[{64+2*j}:{65+2*j}] op_sel_hi:[1,0,1]")
            for j in range(4):
                t = 144 + h * 8 + 2 * j
                k(f"v_pk_mul_f32 v[{t}:{t+1}], v[{t}:{t+1}], v[{168+2*e}:{169+2*e}] op_sel_hi:[1,0]")
        for cc in range(8):
            k(f"v_cvt_pk_bf16_f32 v{OUTR+2*cc+q}, v{144+cc}, v{152+cc}")
    for cc in range(8):
        k(f"ds_write_b64 v6, v[{OUTR+2*cc}:{OUTR+2*cc+1}] offset:{16*cc}")
    for cc in range(8):
        k(f"v_dot2_f32_bf16 v{72+cc}, v{OUTR+2*cc}, s28, 0")
    for cc in range(8):
        k(f"v_dot2_f32_bf16 v{72+cc}, v{OUTR+2*cc+1}, s28, v{72+cc}")
    k("s_waitcnt lgkmcnt(0)")
    for i in range(4):
        k(f"ds_read_b128 v[{RAW+4*i}:{RAW+4*i+3}], v8 offset:{i*8*144}")
    for i in range(4):
        k(f"s_waitcnt lgkmcnt({3-i})")
        k(f"buffer_store_dwordx4 v[{RAW+4*i}:{RAW+4*i+3}], v7, s[16:19], s23 offen offset:{i*256} sc1")
    k.stamp(11)
    for cc in range(8):
        k(f"v_add_f32_dpp v{80+cc}, v{72+cc}, v{72+cc} row_ror:8 row_mask:0xf bank_mask:0x3")
        k(f"v_add_f32_dpp v{80+cc}, v{64+cc}, v{64+cc} row_ror:8 row_mask:0xf bank_mask:0xc")
    for cc in range(4):
        k(f"v_permlane16_swap_b32 v{80+cc}, v{84+cc}")
    for cc in range(4):
        k(f"v_add_f32 v{80+cc}, v{80+cc}, v{84+cc}")
    for cc in range(2):
        k(f"v_permlane32_swap_b32 v{80+cc}, v{82+cc}")
    for cc in range(2):
        k(f"v_add_f32 v{80+cc}, v{80+cc}, v{82+cc}")
    k("buffer_store_dwordx2 v[80:81], v10, s[24:27], s21 offen sc1")
    k("s_waitcnt vmcnt(0)")
```

```python
from gfx import Kernel
from layout import *
from common import f32, LOG2E
from kc import ln_finalize, gelu_batch, GC0, GC1
import os

GRID = 256
BLOCK = 512
SPIN = 0x100000
SB = 0
ZB = 512
NB = ZB + 1024
CSL = NB + 512
AB = 4096
BB = AB + 65536
BSTG = 12288
NST = 7
LDS = BB + BSTG * NST + 256
DB = 4096
STG = 20480
NSTAGES = 32
NREG = int(os.environ.get("NREG", 6))
AR = 80
EGROUPS = [(0, 4), (4, 8), (8, 13), (13, 18), (18, 22)]
ELOOK = 8
PRO = 3
ROT = int(os.environ.get('ROT', 0))
A1 = int(os.environ.get('A1', 12))
A2 = int(os.environ.get('A2', 0))
ZF_FLAGS = os.environ.get('ZFF', 'sc1')
SL2 = int(os.environ.get('SL2', 16))
CSAT = 6
X, Y = 24, 44
ACC = 104
R4 = 128
YK = 144
SS = 168
TP = 184
PK = 192
CSR = 204
XR = 232
GR = 240
BR = 228
Z1 = 144
BS = 168


CB = int(os.environ.get("CMAP", 1))
SL3 = int(os.environ.get("SL3", 8))


def cg_emitter(k):
    def f(dst):
        k(f"s_lshr_b32 {dst}, s2, 3")
        k(f"s_and_b32 {dst}, {dst}, {(8 >> CB) - 1}")
        k(f"s_and_b32 s23, s2, {(1 << CB) - 1}")
        k(f"s_lshl_b32 s23, s23, {3-CB}")
        k(f"s_add_u32 {dst}, {dst}, s23")
    return f


def emit_CD(k, GBL):
    L_end = "kcd_end"
    k.label("kcd_entry")
    k.restamp(2, 23)
    k("s_load_dwordx4 s[84:87], s[0:1], 72")
    k("s_load_dwordx2 s[38:39], s[0:1], 112")
    k("s_and_b32 s6, s2, 7")
    k("s_lshr_b32 s5, s2, 3")
    k(f"s_lshr_b32 s4, s6, {CB}")
    k(f"s_lshl_b32 s4, s4, {2+CB}")
    k(f"s_lshr_b32 s7, s5, {3-CB}")
    k("s_add_u32 s4, s4, s7")
    k(f"s_and_b32 s5, s5, {(8 >> CB) - 1}")
    k(f"s_and_b32 s6, s6, {(1 << CB) - 1}")
    k(f"s_lshl_b32 s6, s6, {3-CB}")
    k("s_add_u32 s5, s5, s6")
    k("v_lshlrev_b32 v4, 4, v1")
    k("s_and_b32 s3, s11, 3")
    k("s_lshr_b32 s7, s3, 1")
    k("s_and_b32 s8, s3, 1")
    k("s_mul_i32 s6, s5, 5")
    k("s_max_u32 s40, s5, 5")
    k("s_add_u32 s40, s40, s6")
    k("s_add_u32 s40, s40, 38")
    k("s_cmp_ge_u32 s5, 5")
    k("s_cselect_b32 s42, 6, 5")
    k("s_mul_i32 s41, s5, 6")
    k("s_sub_u32 s43, 43, s41")
    k("s_min_u32 s43, s43, 6")
    k("v_and_b32 v3, 15, v1")
    k("v_lshrrev_b32 v9, 4, v1")
    k("v_bfe_u32 v15, v1, 2, 2")
    k("v_lshl_add_u32 v16, v9, 3, v15")
    k("v_lshlrev_b32 v16, 7, v16")
    k("v_and_b32 v17, 3, v1")
    k("v_lshl_add_u32 v16, v17, 3, v16")
    k(f"v_add_u32 v16, {AB}, v16")
    k("v_lshrrev_b32 v15, 1, v15")
    k("v_and_b32 v17, 1, v9")
    k("v_lshl_or_b32 v15, v17, 1, v15")
    k(f"s_mov_b32 s27, {f32(1e-5)}")
    k("s_cmp_lt_u32 s11, 4")
    k("s_cbranch_scc1 kcd_comp")

    def mk_srd(d, offreg, nreg):
        k(f"s_add_u32 s{d}, s36, {offreg}")
        k(f"s_addc_u32 s{d+1}, s37, 0")
        k(f"s_and_b32 s{d+1}, s{d+1}, 0xffff")
        k(f"s_mov_b32 s{d+2}, {nreg}")
        k(f"s_mov_b32 s{d+3}, 0x00020000")

    k("v_lshrrev_b32 v10, 3, v1")
    k("v_and_b32 v8, 2, v10")
    k("s_lshl_b32 s16, s8, 2")
    k("v_or_b32 v8, s16, v8")
    k("v_and_b32 v11, 7, v1")
    k("v_xor_b32 v8, v8, v11")
    k("v_lshlrev_b32 v8, 4, v8")
    k("s_lshl_b32 s16, s3, 3")
    k("v_add_u32 v10, s16, v10")
    k("v_lshl_add_u32 v8, v10, 12, v8")
    k("s_mul_i32 s16, s8, 49152")
    k("v_add_u32 v5, s16, v4")
    k("v_add_u32 v6, 16384, v5")
    k("v_add_u32 v7, 32768, v5")
    k("s_lshl_b32 s21, s4, 7")
    k("s_lshl_b32 s22, s3, 10")
    k(f"s_add_u32 s22, s22, {AB}")
    k("s_mul_i32 s23, s3, 3072")
    k(f"s_add_u32 s23, s23, {BB}")
    k("s_lshl_b32 s24, s7, 10")
    k("s_waitcnt lgkmcnt(0)")
    k.srd(12, 36, 512 * 4096, WS_X1T)
    for p in range(2):
        k(f"s_lshl_b32 s16, s{40+p}, 14")
        k(f"s_add_u32 s16, s16, {WS_WPF}")
        k(f"s_lshl_b32 s17, s{42+p}, 14")
        mk_srd(64 + 4 * p, "s16", "s17")

    cnt = []
    state = {"vm": 0}

    def dma(s, fill=()):
        p, sl = s // 8, s % 8
        n = 0
        fill = list(fill)
        per = (len(fill) + (4 if p == 0 else 2)) // (5 if p == 0 else 3)

        def f_():
            for _ in range(per):
                if fill:
                    k(fill.pop(0))
        if p == 0:
            for kk in range(2):
                kap = 2 * sl + kk
                k(f"s_add_u32 m0, s22, {kap*4096}")
                k(f"s_add_u32 s25, s21, {kap*32*4096}")
                k("buffer_load_dwordx4 v8, s[12:15], s25 offen sc1 lds")
                f_()
                n += 1
        k(f"s_add_u32 s25, s24, {sl*2048}")
        for i in range(3):
            k(f"s_add_u32 m0, s23, {(s % NST)*BSTG + i*1024}")
            k("s_nop 0")
            k(f"buffer_load_dwordx4 v{5+i}, s[{64+4*p}:{67+4*p}], s25 offen sc1 lds")
            f_()
            n += 1
        assert not fill
        state["vm"] += n
        cnt.append(state["vm"])

    k("v_xor_b32 v17, s3, v15")
    k("v_lshl_add_u32 v14, v17, 5, v16")
    for r in (20, 21, 12, 13):
        k(f"v_mov_b32 v{r}, 0")
    k("s_mov_b32 s26, 0x3f803f80")
    k.srd(32, 36, 131072, WS_XST)
    k("s_lshl_b32 s44, s4, 12")
    k("s_lshl_b32 s45, s5, 9")
    k("s_add_u32 s45, s45, s44")
    k("v_lshlrev_b32 v18, 3, v1")
    k("s_cmp_eq_u32 s7, 0")
    k("s_cselect_b32 s16, s40, s41")
    k("s_cselect_b32 s17, s42, s43")
    k("s_lshl_b32 s49, s16, 6")
    k(f"s_mul_i32 s18, s8, {CSB_B}")
    k("s_add_u32 s49, s49, s18")
    k("s_lshl_b32 s17, s17, 2")
    k.srd(72, 36, 32 * CSB_B, WS_CSB)
    k("v_and_b32 v11, 31, v1")
    k("v_lshrrev_b32 v10, 5, v1")
    k(f"v_mul_u32_u24 v10, {2*CSB_B}, v10")
    k("v_lshl_add_u32 v10, v11, 4, v10")
    k("v_cmp_gt_u32 vcc, s17, v11")
    k("v_mov_b32 v19, 0x7fff0000")
    k("v_cndmask_b32 v10, v19, v10, vcc")
    k("s_mul_i32 s16, s3, 384")
    k("v_lshl_add_u32 v19, v11, 4, s16")
    k.srd(76, 36, 65536, WS_BAR)
    k("s_lshr_b32 s16, s2, 3")
    k("s_and_b32 s16, s16, 15")
    k("s_lshl_b32 s16, s16, 7")
    k("v_lshl_add_u32 v72, v1, 11, s16")
    k("s_and_b32 s16, s2, 7")
    k("s_lshl_b32 s16, s16, 11")
    k("v_lshl_add_u32 v73, v3, 7, s16")
    k("v_mov_b32 v74, 1")

    def gbar(name, setoff, wave, sl):
        k(f"s_cmp_lg_u32 s3, {wave}")
        k(f"s_cbranch_scc1 {name}_x")
        k(f"s_mov_b32 s62, {setoff}")
        k("s_mov_b64 exec, 0xff")
        k("buffer_atomic_add v74, v72, s[76:79], s62 offen sc1")
        k("s_mov_b64 exec, -1")
        k("s_mov_b32 s47, 0")
        k(f"s_sleep {sl}")
        k.label(f"{name}_p")
        k("buffer_load_dword v75, v73, s[76:79], s62 offen sc1")
        k("s_add_u32 s47, s47, 1")
        k("s_waitcnt vmcnt(0)")
        k("v_cmp_gt_u32 vcc, 16, v75")
        k(f"s_cbranch_vccz {name}_x")
        k("s_sleep 4")
        k(f"s_cmp_lt_u32 s47, {SPIN}")
        k(f"s_cbranch_scc1 {name}_p")
        k.label(f"{name}_x")

    k("s_barrier")
    k.stamp(2)
    gbar("kcd_g1", 3 * 16384, 2, SL3)
    k("s_barrier")
    k.stamp(9)
    for s in range(PRO):
        dma(s)

    def waitstage(s):
        k(f"s_waitcnt vmcnt({min(63, state['vm'] - cnt[s])})")

    def stats(s):
        for kk in range(2):
            for h in range(2):
                x = 24 + (s & 1) * 8 + kk * 4 + h * 2
                k(f"ds_read_b64_tr_b16 v[{x}:{x+1}], v14 offset:{(2*s+kk)*4096 + h*512}")

    def stats2(s):
        out = []
        for j in range(8):
            a_, b_ = ((20, 21), (12, 13))[j & 1]
            x = 24 + (s & 1) * 8 + j
            out.append(f"v_dot2_f32_bf16 v{a_}, v{x}, s26, v{a_}")
            out.append(f"v_dot2_f32_bf16 v{b_}, v{x}, v{x}, v{b_}")
        return out

    nxt_stage = PRO
    k("s_setprio 2")
    for j in range(9):
        waitstage(j)
        k("s_barrier")
        fill = ["s_waitcnt lgkmcnt(0)"] + stats2(j - 1) if j >= 1 else []
        todo = [nxt_stage] if nxt_stage <= 8 else []
        if j == 6:
            k(f"s_waitcnt vmcnt({state['vm'] - state['cs']})")
            for st_ in (4, 2, 1):
                for t in range(st_):
                    for h in range(2):
                        x, y = 40 + 4 * t + 2 * h, 40 + 4 * (t + st_) + 2 * h
                        fill.append(f"v_pk_add_f32 v[{x}:{x+1}], v[{x}:{x+1}], v[{y}:{y+1}]")
            for r in range(4):
                fill.append(f"v_mov_b32 v{44+r}, v{40+r}")
            fill.append("s_nop 1")
            for r in range(4):
                fill.append(f"v_permlane32_swap_b32 v{40+r}, v{44+r}")
            for h in range(2):
                fill.append(f"v_pk_add_f32 v[{40+2*h}:{41+2*h}], v[{40+2*h}:{41+2*h}], v[{44+2*h}:{45+2*h}]")
            fill.append("s_mov_b64 exec, 0xffffff")
            fill.append(f"ds_write_b128 v19, v[40:43] offset:{CSL}")
            fill.append("s_mov_b64 exec, -1")
        if j == 8:
            for x in fill:
                k(x)
            fill = []
            k("v_add_f32 v20, v20, v12")
            k("v_add_f32 v21, v21, v13")
            for r in (20, 21):
                k(f"v_mov_b32 v17, v{r}")
                k(f"v_permlane16_swap_b32 v17, v{r}")
                k(f"v_add_f32 v{r}, v{r}, v17")
                k(f"v_mov_b32 v17, v{r}")
                k(f"v_permlane32_swap_b32 v17, v{r}")
                k(f"v_add_f32 v{r}, v{r}, v17")
            k(f"s_mov_b32 s46, {f32(1.0/512)}")
            ln_finalize(k, 20, 21, 17, "s46", "s27")
            k("v_mul_f32 v20, v20, v21")
            k("s_lshl_b32 s16, s3, 6")
            k("v_lshl_add_u32 v17, v3, 2, s16")
            k(f"ds_write_b32 v17, v21 offset:{SB}")
            k(f"ds_write_b32 v17, v20 offset:{SB+256}")
            k("s_waitcnt lgkmcnt(0)")
            k("s_barrier")
            k("s_setprio 0")
            todo = list(range(nxt_stage, 15))
        for t in todo:
            dma(t, fill)
            fill = []
            nxt_stage = t + 1
            if t == CSAT:
                for tt in range(8):
                    k(f"s_add_u32 s25, s49, {tt*4*CSB_B}")
                    k(f"buffer_load_dwordx4 v[{40+4*tt}:{43+4*tt}], v10, s[72:75], s25 offen sc1")
                state["vm"] += 8
                state["cs"] = state["vm"]
        for x in fill:
            k(x)
        if j < 8:
            stats(j)
    k("v_lshrrev_b32 v12, 3, v1")
    k("v_lshrrev_b32 v13, 2, v12")
    k("v_lshlrev_b32 v13, 3, v13")
    k("v_and_b32 v14, 3, v12")
    k("v_add_u32 v13, v13, v14")
    k("v_lshlrev_b32 v13, 12, v13")
    k("v_lshrrev_b32 v12, 1, v12")
    k("v_and_b32 v14, 7, v1")
    k("v_xor_b32 v12, v12, v14")
    k("v_lshl_add_u32 v10, v12, 4, v13")
    k("v_xor_b32 v12, 4, v12")
    k("v_lshl_add_u32 v11, v12, 4, v13")
    k(f"v_add_u32 v11, {16*4096}, v11")
    k("s_lshl_b32 s16, s4, 18")
    k("s_lshl_b32 s17, s7, 17")
    k("s_add_u32 s16, s16, s17")
    k("s_lshl_b32 s17, s8, 14")
    k("s_add_u32 s50, s16, s17")
    k.srd(52, 84, 2048 * 4096)
    k("s_and_b32 s51, s2, 7")
    k(f"s_mul_i32 s51, s51, {ROT*128}")
    areg = {"n": 0}

    def aload(n):
        for _ in range(n):
            i = areg["n"]
            if i >= 2 * NREG:
                return
            st, p = i // 2, i % 2
            r = AR + 4 * i
            k(f"s_add_u32 s48, s51, {st*128}")
            k("s_and_b32 s48, s48, 0xfff")
            k("s_add_u32 s48, s48, s50")
            k(f"buffer_load_dwordx4 v[{r}:{r+3}], v{10+p}, s[52:55], s48 offen")
            areg["n"] += 1
            state["vm"] += 1

    aload(A1)
    k("s_barrier")
    k.stamp(3)
    k("s_cmp_eq_u32 s3, 0")
    k("s_cselect_b32 s34, s34, 0")
    k(f"ds_read_b64 v[32:33], v18 offset:{ZB}")
    k(f"ds_read_b64 v[34:35], v18 offset:{ZB+512}")
    k("s_waitcnt lgkmcnt(0)")
    k("v_pk_add_f32 v[32:33], v[32:33], v[34:35]")
    k("buffer_store_dwordx2 v[32:33], v18, s[32:35], s45 offen sc1")
    state["vm"] += 1

    def poll_loads():
        for p in range(8):
            k(f"buffer_load_dwordx2 v[{32+2*p}:{33+2*p}], v18, s[32:35], s44 offen offset:{p*512} sc1")

    for s in range(8, 16):
        if s < 15:
            waitstage(s + 1)
        k("s_barrier")
        if s == 9:
            dma(15)
        if s == 12:
            poll_loads()
            state["vm"] += 8
            state["poll"] = state["vm"]
        if s != 9:
            aload(A2)
    k("s_cmp_lg_u32 s3, 0")
    k("s_cbranch_scc1 kcd_lfin")
    k("s_mov_b32 s47, 0")
    k(f"s_waitcnt vmcnt({state['vm'] - state['poll']})")
    k.label("kcd_poll")
    k("v_max3_u32 v48, v33, v35, v37")
    k("v_max3_u32 v49, v39, v41, v43")
    k("v_max3_u32 v48, v48, v45, v47")
    k("v_max_u32 v48, v48, v49")
    k("v_cmp_eq_u32 vcc, -1, v48")
    k("s_cbranch_vccz kcd_got")
    k("s_add_u32 s47, s47, 1")
    k(f"s_cmp_ge_u32 s47, {SPIN}")
    k("s_cbranch_scc1 kcd_got")
    poll_loads()
    k("s_waitcnt vmcnt(0)")
    k("s_branch kcd_poll")
    k.label("kcd_got")
    k.stamp(4)
    for s_ in (4, 2, 1):
        for p in range(s_):
            k(f"v_pk_add_f32 v[{32+2*p}:{33+2*p}], v[{32+2*p}:{33+2*p}], v[{32+2*(p+s_)}:{33+2*(p+s_)}]")
    k(f"s_mov_b32 s46, {f32(1.0/688)}")
    ln_finalize(k, 32, 33, 48, "s46", "s27")
    k("v_mul_f32 v32, -v32, v33")
    k("v_lshlrev_b32 v17, 2, v1")
    k(f"ds_write_b32 v17, v33 offset:{NB}")
    k(f"ds_write_b32 v17, v32 offset:{NB+256}")
    k("s_waitcnt lgkmcnt(0)")
    k.label("kcd_lfin")
    k("s_barrier")
    k("s_mul_i32 s16, s8, 196608")
    k("v_add_u32 v5, s16, v4")
    k("v_add_u32 v6, 0x10000, v5")
    k("v_add_u32 v7, 0x20000, v5")
    k("s_lshl_b32 s16, s41, 16")
    k(f"s_add_u32 s16, s16, {WS_ZF + 43*65536}")
    k("s_lshl_b32 s17, s43, 16")
    mk_srd(56, "s16", "s17")
    k("s_lshl_b32 s60, s3, 11")
    k(f"s_add_u32 s60, s60, {DB}")
    k("s_mul_i32 s61, s3, 3072")
    k(f"s_add_u32 s61, s61, {DB + 8192}")
    k("v_add_u32 v12, s60, v4")
    k(f"v_add_u32 v13, {3*STG}, v12")
    k(f"v_add_u32 v14, {6*STG}, v12")

    def awrite(st):
        slot = st % NST
        base, off = (12, slot * STG) if slot < 3 else ((13, (slot - 3) * STG) if slot < 6 else (14, 0))
        for p in range(2):
            r = AR + 4 * (2 * st + p)
            k(f"ds_write_b128 v{base}, v[{r}:{r+3}] offset:{off + p*1024}")

    aload(99)
    k("s_waitcnt vmcnt(0)")
    for st in range(NST - 1):
        awrite(st)
    k("s_barrier")
    k.stamp(5)
    gbar("kcd_g2", 16384, 0, SL2)
    k("s_barrier")
    k.stamp(6)
    dcnt = []
    dstate = {"vm": 0}

    def ddma(st, awr=True):
        slot = st % NST
        k(f"s_add_u32 s48, s51, {st*128}")
        k("s_and_b32 s48, s48, 0xfff")
        if st >= NREG:
            for p in range(2):
                k(f"s_add_u32 m0, s60, {slot*STG + p*1024}")
                k("s_add_u32 s25, s50, s48")
                k(f"buffer_load_dwordx4 v{10+p}, s[52:55], s25 offen lds")
                dstate["vm"] += 1
        k("s_lshl_b32 s25, s48, 4")
        k("s_add_u32 s25, s25, s24")
        for i in range(3):
            k(f"s_add_u32 m0, s61, {slot*STG + i*1024}")
            k("s_nop 0")
            k(f"buffer_load_dwordx4 v{5+i}, s[56:59], s25 offen {ZF_FLAGS} lds")
            dstate["vm"] += 1
        if st < NREG and awr:
            awrite(st)
        dcnt.append(dstate["vm"])

    for st in range(NST - 1):
        ddma(st, False)
    k(f"s_mul_i32 s16, s5, {4*22528}")
    k(f"s_add_u32 s16, s16, {WS_WOF}")
    mk_srd(64, "s16", 4 * 22528)
    k("s_mul_i32 s63, s3, 5120")
    k("v_add_u32 v15, s63, v4")
    k(f"s_add_u32 s63, s63, {DB}")
    k("s_lshl_b32 s16, s4, 2")
    k("s_add_u32 s16, s16, s3")
    k("s_mul_i32 s16, s16, 22528")
    k(f"s_add_u32 s16, s16, {WS_UT}")
    mk_srd(68, "s16", 22528)
    k("s_lshl_b32 s16, s4, 7")
    k("s_add_u32 s16, s16, 0x8000")
    k("v_mov_b32 v21, s16")
    k("s_mul_i32 s26, s3, 22528")
    k(f"s_add_u32 s26, s26, {DB}")
    for j in range(NSTAGES + 1):
        if j < NSTAGES:
            lg = 0 if (j == 0 or j + NST - 3 >= NREG + 1) else 4
            k(f"s_waitcnt vmcnt({dstate['vm'] - dcnt[j]}) lgkmcnt({lg})")
        k("s_barrier")
        st = j + NST - 2
        if j >= 1 and st < NSTAGES:
            ddma(st)
        elif st >= NSTAGES and st - NSTAGES < 5:
            i = st - NSTAGES
            slot = st % NST
            for jj in range(5):
                if jj % 4 == 0:
                    k(f"s_add_u32 m0, s63, {slot*STG + jj*1024}")
                    k(f"v_add_u32 v22, {i*20480 + jj*1024}, v15")
                k(f"buffer_load_dwordx4 v22, s[64:67], 0 offen offset:{(jj%4)*1024} sc1 lds")
                dstate["vm"] += 1
    k("s_waitcnt vmcnt(0)")
    k("s_barrier")
    k("s_barrier")
    k.stamp(7)
    k("s_cmp_lg_u32 s3, 0")
    k("s_cbranch_scc1 kcd_pg")
    k("s_mov_b64 exec, 1")
    k("buffer_atomic_add v74, v21, s[76:79], 0 offen sc1")
    k("s_mov_b32 s28, 0")
    k.label("kcd_pl")
    k("buffer_load_dword v20, v21, s[76:79], 0 offen sc1")
    k("s_add_u32 s28, s28, 1")
    k("s_waitcnt vmcnt(0)")
    k("v_readfirstlane_b32 s29, v20")
    k("s_cmp_ge_u32 s29, 8")
    k("s_cbranch_scc1 kcd_po")
    k("s_sleep 1")
    k(f"s_cmp_lt_u32 s28, {SPIN}")
    k("s_cbranch_scc1 kcd_pl")
    k.label("kcd_po")
    k("s_mov_b64 exec, -1")
    k.label("kcd_pg")
    k("s_barrier")
    k.stamp(8)

    def udma(lo, hi):
        for ph in range(lo, hi):
            if ph % 4 == 0 or ph == lo:
                k(f"s_add_u32 m0, s26, {(ph & ~3)*1024}")
                k(f"s_mov_b32 s27, {(ph & ~3)*1024}")
            k(f"buffer_load_dwordx4 v4, s[68:71], s27 offen offset:{(ph%4)*1024} sc1 lds")

    issued = 0
    for (a_, b_) in EGROUPS:
        tgt = min(22, b_ + ELOOK)
        udma(issued, tgt)
        issued = tgt
        k(f"s_waitcnt vmcnt({issued - b_})")
        k("s_barrier")
    k.endpgm()

    k.label("kcd_comp")
    k("s_mul_i32 s16, s8, 192")
    k("v_lshl_add_u32 v5, v3, 2, s16")
    k("s_mul_i32 s16, s8, 196608")
    k("v_add_u32 v6, s16, v4")
    k("v_add_u32 v7, 0x10000, v6")
    k("v_add_u32 v8, 0x20000, v6")
    k("s_lshl_b32 s30, s4, 1")
    k("s_add_u32 s30, s30, s7")
    k("s_lshl_b32 s29, s30, 10")
    k("v_lshlrev_b32 v21, 4, v9")
    k("s_lshl_b32 s18, s30, 6")
    k("s_lshl_b32 s19, s5, 8")
    k("s_lshl_b32 s16, s8, 7")
    k("s_add_u32 s19, s19, s16")
    k(f"s_add_u32 s19, s19, {5*2048}")
    k("s_waitcnt lgkmcnt(0)")
    k.srd(52, 86, 4096)
    k(f"buffer_load_dwordx4 v[{BR}:{BR+3}], v21, s[52:55], s18 offen")
    k("s_lshl_b32 s16, s8, 7")
    k(f"s_add_u32 s16, s16, {GBL}")
    k(f"v_add_u32 v{GR+7}, s16, v21")
    k("s_lshl_b32 s16, s40, 16")
    k(f"s_add_u32 s16, s16, {WS_ZF}")
    k("s_lshl_b32 s17, s42, 16")
    mk_srd(44, "s16", "s17")
    for t in range(2):
        k("s_lshl_b32 s16, s7, 1")
        k(f"s_add_u32 s16, s16, {t}")
        k("v_xor_b32 v17, s16, v15")
        k(f"v_lshl_add_u32 v{10+t}, v17, 5, v16")
    k("s_mul_i32 s16, s8, 3072")
    k(f"s_add_u32 s16, s16, {BB}")
    k("v_add_u32 v12, s16, v4")
    k("v_mov_b32 v18, v10")
    k("v_mov_b32 v19, v11")
    k("v_mov_b32 v20, v12")
    for r in range(24):
        k(f"v_mov_b32 v{ACC+r}, 0")
    for r in range(16):
        k(f"v_mov_b32 v{SS+r}, 0")
    k(f"s_mov_b32 s60, {f32(GC0)}")
    k(f"s_mov_b32 s61, {f32(GC1)}")
    k("s_lshl_b32 s16, s7, 7")
    k("v_lshl_add_u32 v13, v9, 4, s16")
    k("s_mul_i32 s24, s30, 88")
    k("s_mul_i32 s25, s8, 3")
    k("s_add_u32 s25, s25, s41")
    k("s_add_u32 s24, s24, s25")
    k("s_lshl_b32 s24, s24, 9")
    k(f"s_add_u32 s24, s24, {WS_UT}")
    k("s_sub_i32 s26, 44, s25")
    k("s_max_i32 s26, s26, 0")
    k("s_min_u32 s26, s26, 3")
    k("s_lshl_b32 s26, s26, 9")
    mk_srd(48, "s24", "s26")
    k(f"s_add_u32 s24, s24, {44*512}")
    mk_srd(56, "s24", "s26")
    k.srd(80, 38, 2048 * 1024)
    k("v_lshrrev_b32 v22, 2, v3")
    k("v_lshlrev_b32 v22, 3, v22")
    k("v_and_b32 v17, 3, v3")
    k("v_add_u32 v22, v22, v17")
    k("v_lshlrev_b32 v22, 10, v22")
    k("v_lshl_add_u32 v22, v9, 3, v22")
    k("s_lshl_b32 s64, s30, 15")
    k("s_lshl_b32 s65, s5, 7")
    k("s_add_u32 s64, s64, s65")
    k("s_lshl_b32 s65, s8, 6")
    k("s_add_u32 s64, s64, s65")
    k("s_add_u32 s65, s64, 4096")
    k("v_lshrrev_b32 v21, 1, v9")
    k("v_lshlrev_b32 v21, 2, v21")
    k("v_xor_b32 v21, v21, v1")
    k("v_lshlrev_b32 v21, 3, v21")
    k("v_bfe_u32 v14, v1, 2, 2")
    k("v_lshl_add_u32 v17, v9, 2, v14")
    k("v_lshlrev_b32 v17, 7, v17")
    k("v_and_b32 v2, 3, v1")
    k("v_lshl_add_u32 v17, v2, 3, v17")
    k("s_lshl_b32 s16, s5, 13")
    k("s_lshl_b32 s17, s8, 12")
    k("s_add_u32 s16, s16, s17")
    k(f"s_add_u32 s16, s16, {AB}")
    k("v_add_u32 v17, s16, v17")
    k("v_lshrrev_b32 v14, 1, v14")
    k("v_and_b32 v2, 2, v9")
    k("v_or_b32 v14, v14, v2")
    k("s_lshl_b32 s16, s7, 1")
    k("v_xor_b32 v14, s16, v14")
    k("v_lshl_add_u32 v2, v14, 5, v17")
    k("v_xor_b32 v14, 32, v2")

    def rd(S, kk):
        out = []
        for t in range(2):
            for h in range(2):
                out.append(f"ds_read_b64_tr_b16 v[{S+4*t+2*h}:{S+4*t+2*h+1}], v{18+t} offset:{kk*4096 + h*512}")
        for t in range(3):
            out.append(f"ds_read_b128 v[{S+8+4*t}:{S+11+4*t}], v20 offset:{kk*6144 + t*1024}")
        return out

    def mf(S):
        out = []
        for t in range(3):
            for r in range(2):
                a = ACC + (r * 3 + t) * 4
                out.append(f"v_mfma_f32_16x16x32_bf16 v[{a}:{a+3}], v[{S+4*r}:{S+4*r+3}], v[{S+8+4*t}:{S+11+4*t}], v[{a}:{a+3}]")
        return out

    def affine(p, dst):
        for t in range(3):
            c = CSR + 2 * (p * 6 + 2 * t)
            for r in range(2):
                for h in range(2):
                    w = dst + t * 8 + r * 4 + 2 * h
                    RM = R4 + 8 * r + 4 + 2 * h
                    k(f"v_pk_fma_f32 v[{w}:{w+1}], v[{RM}:{RM+1}], v[{c}:{c+1}], v[{c+2}:{c+3}] op_sel_hi:[1,0,0] neg_lo:[1,0,0] neg_hi:[1,0,0]")
        for t in range(3):
            for r in range(2):
                for h in range(2):
                    x = ACC + (r * 3 + t) * 4 + 2 * h
                    w = dst + t * 8 + r * 4 + 2 * h
                    R_ = R4 + 8 * r + 2 * h
                    k(f"v_pk_fma_f32 v[{w}:{w+1}], v[{x}:{x+1}], v[{R_}:{R_+1}], v[{w}:{w+1}]")

    k("s_waitcnt vmcnt(1)")
    k("s_barrier")
    k.stamp(2)
    k(f"v_mov_b32 v17, v{GR+7}")
    for t in range(2):
        k(f"ds_read_b128 v[{GR+4*t}:{GR+4*t+3}], v17 offset:{64*t}")
    k("s_barrier")
    k("s_waitcnt lgkmcnt(0)")
    k("s_barrier")
    k.stamp(3)
    for x in rd(X, 0) + rd(Y, 1):
        k(x)
    k("s_mov_b32 s28, 0")
    k("s_mov_b32 s70, 8192")
    k(f"s_mov_b32 s71, {BSTG}")
    k("v_add_u32 v18, s70, v10")
    k("v_add_u32 v19, s70, v11")
    k("v_add_u32 v20, s71, v12")
    k(".p2align 6")
    k.label("kcd_cloop")
    for par in range(2):
        cur, nxt = par * 40, (1 - par) * 40
        for (S, kk) in ((X, 0), (Y, 1)):
            k("s_waitcnt lgkmcnt(7)")
            if kk == 0:
                k("s_barrier")
            m = mf(S + cur)
            rr = rd(S + nxt, kk)
            r = [rr[0:2], rr[2:4]] + [[x] for x in rr[4:]] + [[]]
            if kk == 0:
                r[2] += ["s_add_u32 s70, s70, 8192"]
                r[3] += ["s_and_b32 s70, s70, 0xffff"]
                r[4] += [f"s_add_u32 s71, s71, {BSTG}"]
                r[5] += [f"s_cmp_eq_u32 s71, {BSTG*NST}", "s_cselect_b32 s71, 0, s71"]
            else:
                r[2] += ["v_add_u32 v18, s70, v10"]
                r[3] += ["v_add_u32 v19, s70, v11"]
                r[5] += ["v_add_u32 v20, s71, v12"]
            for i, x in enumerate(m):
                k(x)
                for y in r[i]:
                    k(y)
    k("s_add_u32 s28, s28, 2")
    k("s_cmp_eq_u32 s28, 16")
    k("s_cbranch_scc1 kcd_last")
    k("s_cmp_lg_u32 s28, 8")
    k("s_cbranch_scc1 kcd_cloop")
    k("s_barrier")
    k.stamp(4)
    for r in range(2):
        k(f"ds_read_b128 v[{R4+8*r}:{R4+8*r+3}], v13 offset:{SB + r*64}")
        k(f"ds_read_b128 v[{R4+8*r+4}:{R4+8*r+7}], v13 offset:{SB + 256 + r*64}")
    k("s_waitcnt lgkmcnt(3)")
    for p in range(2):
        for t in range(3):
            for cb in range(2):
                k(f"ds_read_b32 v{CSR+2*(p*6+2*t+cb)}, v5 offset:{CSL + (2*p+cb)*384 + t*64}")
    k("s_waitcnt lgkmcnt(0)")
    for r in range(2):
        for t in range(2):
            k(f"ds_read_b64_tr_b16 v[{XR+4*r+2*t}:{XR+4*r+2*t+1}], v{(2, 14)[r]} offset:{t*2048}")
    affine(0, YK)
    for r in range(24):
        k(f"v_mov_b32 v{ACC+r}, 0")
    for t in range(3):
        ps = [(YK + 8 * t + 2 * q, TP + 2 * q, PK + q) for q in range(4)]
        for (x, tm, p) in ps:
            k(f"v_cvt_pk_bf16_f32 v{tm}, v{x}, v{x+1}")
        for (x, tm, p) in ps:
            k(f"v_lshlrev_b32 v{x}, 16, v{tm}")
            k(f"v_and_b32 v{x+1}, 0xffff0000, v{tm}")
        gelu_batch(k, ps)
        for (x, tm, p) in ps:
            k(f"v_lshlrev_b32 v{x}, 16, v{p}")
            k(f"v_and_b32 v{x+1}, 0xffff0000, v{p}")
        for q, (x, tm, p) in enumerate(ps):
            ss = SS + 2 * q
            k(f"v_pk_add_f32 v[{ss}:{ss+1}], v[{ss}:{ss+1}], v[{x}:{x+1}]")
            k(f"v_pk_fma_f32 v[{ss+8}:{ss+9}], v[{x}:{x+1}], v[{x}:{x+1}], v[{ss+8}:{ss+9}]")
    src = lambda r, e, b: SS + 8 * b + 4 * r + e
    for e in range(4):
        for b in range(2):
            d = TP + e * 2 + b
            k(f"v_add_f32_dpp v{d}, v{src(0,e,b)}, v{src(0,e,b)} row_ror:8 row_mask:0xf bank_mask:0x3")
            k(f"v_add_f32_dpp v{d}, v{src(1,e,b)}, v{src(1,e,b)} row_ror:8 row_mask:0xf bank_mask:0xc")
    for m in range(4):
        k(f"v_add_f32_dpp v{SS+m}, v{TP+m}, v{TP+m} row_half_mirror row_mask:0xf bank_mask:0x5")
        k(f"v_add_f32_dpp v{SS+m}, v{TP+4+m}, v{TP+4+m} row_half_mirror row_mask:0xf bank_mask:0xa")
    for m in range(4):
        k(f"v_add_f32_dpp v{SS+m}, v{SS+m}, v{SS+m} quad_perm:[2,3,0,1] row_mask:0xf bank_mask:0xf")
    for m in range(4):
        k(f"v_add_f32_dpp v{SS+m}, v{SS+m}, v{SS+m} quad_perm:[1,0,3,2] row_mask:0xf bank_mask:0xf")
    k("v_bfe_u32 v17, v1, 3, 1")
    k("v_lshlrev_b32 v17, 7, v17")
    k("v_lshl_add_u32 v17, v9, 5, v17")
    k("v_bfe_u32 v14, v1, 2, 1")
    k("v_lshl_add_u32 v17, v14, 4, v17")
    k("s_lshl_b32 s16, s7, 8")
    k("s_lshl_b32 s17, s8, 9")
    k("s_add_u32 s16, s16, s17")
    k("v_add_u32 v17, s16, v17")
    k(f"ds_write_b128 v17, v[{SS}:{SS+3}] offset:{ZB}")
    k("s_waitcnt lgkmcnt(0)")
    k("s_barrier")
    k.stamp(5)
    k("s_branch kcd_cloop")
    k.label("kcd_last")
    k("s_waitcnt lgkmcnt(0)")
    k.stamp(6)
    W1 = X + 40
    affine(1, W1)
    for q in range(12):
        k(f"v_cvt_pk_bf16_f32 v{PK+q}, v{W1+2*q}, v{W1+2*q+1}")
    k("s_barrier")
    k.stamp(7)
    for r in range(2):
        k(f"ds_read_b128 v[{R4+8*r}:{R4+8*r+3}], v13 offset:{NB + r*64}")
        k(f"ds_read_b128 v[{R4+8*r+4}:{R4+8*r+7}], v13 offset:{NB + 256 + r*64}")
    k("s_waitcnt lgkmcnt(0)")
    for t in range(3):
        for r in range(2):
            for h in range(2):
                x = YK + t * 8 + r * 4 + 2 * h
                R_ = R4 + 8 * r + 2 * h
                k(f"v_pk_fma_f32 v[{x}:{x+1}], v[{x}:{x+1}], v[{R_}:{R_+1}], v[{R_+4}:{R_+5}]")
        for q in range(4):
            x = YK + 8 * t + 2 * q
            k(f"v_cvt_pk_bf16_f32 v{X+4*t+q}, v{x}, v{x+1}")
        k(f"buffer_store_dwordx4 v[{X+4*t}:{X+4*t+3}], v{6+t}, s[44:47], s29 offen sc1")

    def gelu_z1(t):
        ps = [(Z1 + 8 * t + 2 * q, TP + 2 * q, 64 + q) for q in range(4)]
        for q, (x, tm, p) in enumerate(ps):
            k(f"v_lshlrev_b32 v{x}, 16, v{PK+4*t+q}")
            k(f"v_and_b32 v{x+1}, 0xffff0000, v{PK+4*t+q}")
        gelu_batch(k, ps)
        for (x, tm, p) in ps:
            k(f"v_lshlrev_b32 v{x}, 16, v{p}")
            k(f"v_and_b32 v{x+1}, 0xffff0000, v{p}")

    gelu_z1(0)
    gelu_z1(1)
    k("s_waitcnt vmcnt(0)")
    k("s_barrier")
    k.stamp(8)
    gelu_z1(2)
    for q in range(4):
        k(f"v_lshlrev_b32 v{BS+2*q}, 16, v{BR+q}")
        k(f"v_and_b32 v{BS+2*q+1}, 0xffff0000, v{BR+q}")
    k("v_lshrrev_b32 v13, 1, v3")
    k("v_xor_b32 v13, v13, v9")
    k("v_lshlrev_b32 v14, 7, v3")
    k("s_lshl_b32 s24, s7, 12")
    k(f"s_add_u32 s24, s24, {DB}")
    k("v_add_u32 v14, s24, v14")
    k("v_lshl_add_u32 v15, v13, 4, v14")
    k("v_xor_b32 v13, 4, v13")
    k("v_lshl_add_u32 v16, v13, 4, v14")
    k("s_mul_i32 s24, s8, 3072")
    k(f"s_add_u32 s24, s24, {DB + 8192}")
    k("v_add_u32 v17, s24, v4")
    k("v_mov_b32 v18, v15")
    k("v_mov_b32 v19, v16")
    k("v_mov_b32 v20, v17")
    for r in range(24):
        k(f"v_mov_b32 v{ACC+r}, 0")

    def drd(S, kk):
        out = []
        for t in range(2):
            out.append(f"ds_read_b128 v[{S+4*t}:{S+4*t+3}], v{18+kk} offset:{t*2048}")
        for t in range(3):
            out.append(f"ds_read_b128 v[{S+8+4*t}:{S+11+4*t}], v20 offset:{kk*6144 + t*1024}")
        return out

    k("s_barrier")
    k.stamp(9)
    k("s_barrier")
    k.stamp(10)
    for x in drd(X, 0) + drd(Y, 1):
        k(x)
    k("s_mov_b32 s28, 0")
    k(f"s_mov_b32 s71, {STG}")
    k("v_add_u32 v18, s71, v15")
    k("v_add_u32 v19, s71, v16")
    k("v_add_u32 v20, s71, v17")
    k(".p2align 6")
    k.label("kcd_dloop")
    for par in range(2):
        cur, nxt = par * 40, (1 - par) * 40
        for (S, kk) in ((X, 0), (Y, 1)):
            k("s_waitcnt lgkmcnt(5)")
            if kk == 0:
                k("s_barrier")
            m = mf(S + cur)
            r = [[x] for x in drd(S + nxt, kk)]
            if kk == 1:
                r[0] += [f"s_add_u32 s71, s71, {STG}"]
                r[1] += [f"s_cmp_eq_u32 s71, {STG*NST}"]
                r[2] += ["s_cselect_b32 s71, 0, s71"]
                r[3] += ["v_add_u32 v18, s71, v15"]
                r[4] += ["v_add_u32 v19, s71, v16"]
                r.append(["v_add_u32 v20, s71, v17"])
            for i, x in enumerate(m):
                k(x)
                if i < len(r):
                    for y in r[i]:
                        k(y)
    k("s_add_u32 s28, s28, 2")
    k(f"s_cmp_lt_u32 s28, {NSTAGES}")
    k("s_cbranch_scc1 kcd_dloop")
    k("s_waitcnt lgkmcnt(0)")
    k.stamp(11)
    for t in range(3):
        items = [(ACC + (r * 3 + t) * 4 + 2 * h, X + 2 * r + h, 2 * r + h) for r in range(2) for h in range(2)]
        for (x, tm, q) in items:
            k(f"v_cvt_pk_bf16_f32 v{tm}, v{x}, v{x+1}")
        for (x, tm, q) in items:
            k(f"v_lshlrev_b32 v{x}, 16, v{tm}")
            k(f"v_and_b32 v{x+1}, 0xffff0000, v{tm}")
        for (x, tm, q) in items:
            k(f"v_pk_add_f32 v[{x}:{x+1}], v[{x}:{x+1}], v[{BS+2*q}:{BS+2*q+1}]")
        for (x, tm, q) in items:
            k(f"v_cvt_pk_bf16_f32 v{tm}, v{x}, v{x+1}")
        for (x, tm, q) in items:
            k(f"v_lshlrev_b32 v{x}, 16, v{tm}")
            k(f"v_and_b32 v{x+1}, 0xffff0000, v{tm}")
        for (x, tm, q) in items:
            z = Z1 + 8 * t + 2 * q
            k(f"v_pk_mul_f32 v[{x}:{x+1}], v[{x}:{x+1}], v[{z}:{z+1}]")
        for (x, tm, q) in items:
            k(f"v_cvt_pk_bf16_f32 v{Y+4*t+q}, v{x}, v{x+1}")
        for r in range(2):
            k(f"buffer_store_dwordx2 v[{Y+4*t+2*r}:{Y+4*t+2*r+1}], v21, s[{48+8*r}:{51+8*r}], 0 offen offset:{t*512} sc1")
    WR = 56
    k("s_barrier")
    k(f"v_add_u32 v5, {DB}, v4")
    k(f"v_add_u32 v6, {DB + 3*STG}, v4")
    k(f"v_add_u32 v7, {DB + 6*STG}, v4")
    k("s_cmp_eq_u32 s8, 1")
    k("s_cbranch_scc1 kcd_w1")
    for bb in range(2):
        if bb == 1:
            k("s_branch kcd_w2")
            k.label("kcd_w1")
        for t in range(2):
            for ph in range(22):
                w = (2 * bb + t) * 22 + ph
                addr = ((NSTAGES + w // 20) % NST) * STG + (w % 20) * 1024
                base, off = (5, addr) if addr < 3 * STG else ((6, addr - 3 * STG) if addr < 6 * STG else (7, addr - 6 * STG))
                r = WR + (t * 22 + ph) * 4
                k(f"ds_read_b128 v[{r}:{r+3}], v{base} offset:{off}")
    k.label("kcd_w2")
    k("v_bfe_u32 v18, v1, 2, 2")
    k("v_and_b32 v19, 3, v1")
    k("v_and_b32 v20, 1, v9")
    k("v_lshl_add_u32 v18, v20, 3, v18")
    k("v_lshrrev_b32 v20, 1, v19")
    k("v_lshl_add_u32 v18, v20, 2, v18")
    k("v_lshl_add_u32 v18, v19, 4, v18")
    k("v_lshlrev_b32 v18, 3, v18")
    k("v_lshrrev_b32 v20, 1, v9")
    k("v_lshl_add_u32 v18, v20, 9, v18")
    k(f"s_mul_i32 s24, s7, {2*22528}")
    k(f"s_add_u32 s24, s24, {DB}")
    k("v_add_u32 v18, s24, v18")
    k("v_xor_b32 v19, 32, v18")
    k("s_waitcnt vmcnt(0) lgkmcnt(0)")
    k("s_barrier")
    k("s_barrier")
    k.stamp(12)
    SETS = (24, 32, 248)
    EAC = 40

    def ureads(ph):
        S = SETS[ph % 3]
        return [f"ds_read_b64_tr_b16 v[{S+4*r+2*h}:{S+4*r+2*h+1}], v{18+h} offset:{r*22528 + ph*1024}" for r in range(2) for h in range(2)]

    for (a_, b_) in EGROUPS:
        k("s_barrier")
        for x in ureads(a_) + ureads(a_ + 1):
            k(x)
        for ph in range(a_, b_):
            nxt = ureads(ph + 2) if ph + 2 < b_ else []
            k(f"s_waitcnt lgkmcnt({4 if ph + 1 < b_ else 0})")
            S = SETS[ph % 3]
            i = 0
            for t in range(2):
                for r in range(2):
                    ac = EAC + (r * 2 + t) * 4
                    w = WR + (t * 22 + ph) * 4
                    c = "0" if ph == 0 else f"v[{ac}:{ac+3}]"
                    k(f"v_mfma_f32_16x16x32_bf16 v[{ac}:{ac+3}], v[{w}:{w+3}], v[{S+4*r}:{S+4*r+3}], {c}")
                    if i < len(nxt):
                        k(nxt[i])
                    i += 1
    items = [(EAC + (r * 2 + t) * 4 + 2 * h, 56 + 2 * ((r * 2 + t) * 2 + h), r, t, h) for r in range(2) for t in range(2) for h in range(2)]
    for (x, tm, r, t, h) in items:
        k(f"v_cvt_pk_bf16_f32 v{tm}, v{x}, v{x+1}")
    for (x, tm, r, t, h) in items:
        k(f"v_lshlrev_b32 v{x}, 16, v{tm}")
        k(f"v_and_b32 v{x+1}, 0xffff0000, v{tm}")
    for (x, tm, r, t, h) in items:
        k(f"v_pk_mul_f32 v[{x}:{x+1}], v[{x}:{x+1}], v[{GR+4*t+2*h}:{GR+4*t+2*h+1}]")
    for (x, tm, r, t, h) in items:
        k(f"v_cvt_pk_bf16_f32 v{tm}, v{x}, v{x+1}")
    for (x, tm, r, t, h) in items:
        k(f"v_lshlrev_b32 v{x}, 16, v{tm}")
        k(f"v_and_b32 v{x+1}, 0xffff0000, v{tm}")
    for (x, tm, r, t, h) in items:
        z = XR + 4 * r + 2 * t + h
        k(f"v_lshlrev_b32 v{tm}, 16, v{z}")
        k(f"v_and_b32 v{tm+1}, 0xffff0000, v{z}")
    for (x, tm, r, t, h) in items:
        k(f"v_pk_add_f32 v[{x}:{x+1}], v[{x}:{x+1}], v[{tm}:{tm+1}]")
    for (x, tm, r, t, h) in items:
        k(f"v_cvt_pk_bf16_f32 v{80+(r*2+t)*2+h}, v{x}, v{x+1}")
    for r in range(2):
        for t in range(2):
            o = 80 + (r * 2 + t) * 2
            k(f"buffer_store_dwordx2 v[{o}:{o+1}], v22, s[80:83], s{64+r} offen offset:{32*t}")
    k.label(L_end)
    k.endpgm()
    k.label("kab_oob")
    k("s_endpgm")
```

```python
import sys, os
import gfx
gfx.PROF = bool(os.environ.get('PROF'))
from gfx import Module, Kernel
import kab2, kcd2
NAME = "adaLN_cond__ssm_conv_s4d__mixer_gmlp__prompt_kernel"
HEADER = open("adaLN_cond__ssm_conv_s4d__mixer_gmlp__prompt.s.ref").read().split("; Override launch")[0]
def build(path, aslist):
    m = Module()
    k = Kernel(NAME, 0, 250)
    kab2.emit_AB(k, kcd2.cg_emitter(k))
    kcd2.emit_CD(k, kab2.GBL)
    if aslist:
        m.add(k, 256, 512, kcd2.LDS)
    else:
        m.add_single(k, 256, 512, kcd2.LDS)
    open(path, "w").write(m.text(HEADER))
build(sys.argv[1], len(sys.argv) > 2)
```
